```python
import torch

def _softmax(x, axis=-1):
    return torch.softmax(x, dim=axis)
def _gelu(x):
    return torch.nn.functional.gelu(x, approximate="tanh")
def _silu(x):
    return torch.nn.functional.silu(x)
def _sigmoid(x):
    return torch.sigmoid(x)
def _layernorm(x, axis=-1, eps=1e-5):
    m = x.mean(dim=axis, keepdim=True)
    v = x.var(dim=axis, keepdim=True, unbiased=False)
    return (x - m) / torch.sqrt(v + eps)
def _scatter_add(tgt, idx, src, axis=0):
    return tgt.clone().index_add_(axis, idx, src)
def _segment_sum(src, seg, n):
    out = torch.zeros((n,) + src.shape[1:], dtype=src.dtype)
    return out.index_add_(0, seg, src)
def _pad(x, pw):
    flat = tuple(v for pair in reversed(pw) for v in pair)
    return torch.nn.functional.pad(x, flat)

kernel_name = 'sequential_preLN__gqa_block_cached__glu_gated_glu__decode'

def setup_inputs():

    _w = (lambda a: (lambda t: t.to(torch.bfloat16) if t.is_floating_point() else t)(torch.as_tensor(a)))
    def _A_setup():
        B, Sq, D = 1, 1, 512
        Hq, Hkv, Sk, Dh = 32, 8, 65536, 128
        assert Hq % Hkv == 0, (Hq, Hkv)
        return {
            "x": _w((lambda *s: torch.randn(*s, dtype=torch.bfloat16) * 0.05)(B, Sq, D)),
            "k_cache": _w((lambda *s: torch.randn(*s, dtype=torch.bfloat16) * 3.2)(B, Hkv, Sk, Dh)),
            "v_cache": _w((lambda *s: torch.randn(*s, dtype=torch.bfloat16) * 0.4)(B, Hkv, Sk, Dh)),
            "wq": _w((lambda *s: torch.randn(*s, dtype=torch.bfloat16) * 3.2)(D, Hq * Dh) * (D ** -0.5)),
            "wo": _w((lambda *s: torch.randn(*s, dtype=torch.bfloat16) * 0.4)(Hq * Dh, D) * ((Hq * Dh) ** -0.5)),
        }
    _A_in = _A_setup()

    def _B_setup():
        B, S, D, F = 1, 1, 512, 1792
        return {
            "x": _w((lambda *s: torch.randn(*s, dtype=torch.bfloat16) * 0.05)(B, S, D)),
            "w_gate": _w((lambda *s: torch.randn(*s, dtype=torch.bfloat16) * 0.2)(D, F)),
            "w_up": _w((lambda *s: torch.randn(*s, dtype=torch.bfloat16) * 0.05)(D, F)),
            "w_down": _w((lambda *s: torch.randn(*s, dtype=torch.bfloat16) * 0.05)(F, D)),
        }
    _B_in = _B_setup()

    return {
        "A_x": _A_in["x"],
        "A_k_cache": _A_in["k_cache"],
        "A_v_cache": _A_in["v_cache"],
        "A_wq": _A_in["wq"],
        "A_wo": _A_in["wo"],
        "B_x": _B_in["x"],
        "B_w_gate": _B_in["w_gate"],
        "B_w_up": _B_in["w_up"],
        "B_w_down": _B_in["w_down"],
    }

def reference(A_x, A_k_cache, A_v_cache, A_wq, A_wo, B_x, B_w_gate, B_w_up, B_w_down):
    def _A_ref(x, k_cache, v_cache, wq, wo):
        B, Sq, D = x.shape
        Hq, Dh = 32, 128
        Hkv = k_cache.shape[1]
        rep = Hq // Hkv
        q = (lambda x, *d: x.permute(*d))((x @ wq).reshape(B, Sq, Hq, Dh), 0, 2, 1, 3)
        k = (lambda x, n, axis: torch.repeat_interleave(x, n, dim=axis))(k_cache, rep, axis=1)
        v = (lambda x, n, axis: torch.repeat_interleave(x, n, dim=axis))(v_cache, rep, axis=1)
        scores = torch.einsum("bhqd,bhkd->bhqk", q, k) * (Dh ** -0.5)
        p = _softmax(scores, axis=-1)
        o = torch.einsum("bhqk,bhkd->bhqd", p, v)
        return (lambda x, *d: x.permute(*d))(o, 0, 2, 1, 3).reshape(B, Sq, Hq * Dh) @ wo

    def _B_ref(x, w_gate, w_up, w_down):
        g = torch.einsum("bsd,df->bsf", x, w_gate)
        u = torch.einsum("bsd,df->bsf", x, w_up)
        h = _sigmoid(g) * u
        return torch.einsum("bsf,fd->bsd", h, w_down)

    x = A_x
    h = x + _A_ref(_layernorm(x, axis=-1), A_k_cache, A_v_cache, A_wq, A_wo)
    h2 = h + _B_ref(_layernorm(h, axis=-1), B_w_gate, B_w_up, B_w_down)
    return h2
```

```python
import sys, struct

KN = "sequential_preLN__gqa_block_cached__glu_gated_glu__decode"

def f32bits(x):
    return struct.unpack("<I", struct.pack("<f", x))[0]

WS_EPOCH = 0
WS_Q     = 4096
WS_PML   = 32768
WS_HP    = 49152
WS_PO    = 65536
WS_OP    = WS_PO + 524288
WS_STAMP = 1 << 20
WS_SIZE  = 2 << 20

L_Q  = 0
L_O  = 1024
L_M  = 9216
L_L  = 10240
L_W  = 11264
L_R  = 13312
L_G  = 17408
LDS_BYTES = 21504

NB, NC, NE_WG = 64, 56, 16
B0, C0, E0 = 0, 64, 120
POLL_MAX = 200000


class Gen:
    def __init__(self, nst=4, stamps=False, throttle=2, xcdmap=True, wearly=0):
        self.L = []
        self.nst = nst
        self.stamps = stamps
        self.throttle = throttle
        self.xcdmap = xcdmap
        self.wearly = wearly
        self.lbl = 0

    def A(self, s):
        self.L.append("  " + s)

    def C(self, s):
        self.L.append("  ; " + s)

    def label(self, name):
        self.L.append(name + ":")

    def newlabel(self, p="L"):
        self.lbl += 1
        return f"{p}_{self.lbl}"

    def srd(self, d, base_lo, off_sgpr, size, off_imm=0):
        A = self.A
        if off_sgpr is not None:
            A(f"s_add_u32 s{d}, s{base_lo}, s{off_sgpr}")
            A(f"s_addc_u32 s{d+1}, s{base_lo+1}, 0")
            if off_imm:
                A(f"s_add_u32 s{d}, s{d}, {off_imm}")
                A(f"s_addc_u32 s{d+1}, s{d+1}, 0")
        elif off_imm:
            A(f"s_add_u32 s{d}, s{base_lo}, {off_imm}")
            A(f"s_addc_u32 s{d+1}, s{base_lo+1}, 0")
        else:
            A(f"s_mov_b32 s{d}, s{base_lo}")
            A(f"s_mov_b32 s{d+1}, s{base_lo+1}")
        if isinstance(size, str):
            A(f"s_mov_b32 s{d+2}, {size}")
        else:
            A(f"s_mov_b32 s{d+2}, {size}")
        A(f"s_mov_b32 s{d+3}, 0x00020000")

    def dpp(self, op, d, s0, s1, ctrl):
        self.A(f"{op}_dpp v{d}, v{s0}, v{s1} {ctrl} row_mask:0xf bank_mask:0xf")

    def row_allreduce(self, op, regs):
        for ctrl in ("quad_perm:[1,0,3,2]", "quad_perm:[2,3,0,1]", "row_half_mirror", "row_mirror"):
            if len(regs) < 3:
                self.A("s_nop 1")
            for r in regs:
                self.dpp(op, r, r, r, ctrl)

    def cross_rows_allreduce(self, op, r, t, do16=True, do32=True):
        A = self.A
        for sw, en in (("v_permlane32_swap_b32", do32), ("v_permlane16_swap_b32", do16)):
            if not en:
                continue
            A(f"v_mov_b32 v{t}, v{r}")
            A("s_nop 1")
            A(f"{sw} v{r}, v{t}")
            A("s_nop 0")
            A(f"{op} v{r}, v{r}, v{t}")

    def wave_allreduce(self, op, r, t):
        self.row_allreduce(op, [r])
        self.cross_rows_allreduce(op, r, t)

    def bf16_round1(self, d, s):
        self.A(f"v_cvt_pk_bf16_f32 v{d}, v{s}, v{s}")
        self.A(f"v_and_b32 v{d}, s60, v{d}")

    def unpack(self, lo, hi, p):
        self.A(f"v_lshlrev_b32 v{lo}, 16, v{p}")
        self.A(f"v_and_b32 v{hi}, s60, v{p}")

    def stamp(self, idx, vt0, vt1, lanereg):
        if not self.stamps:
            return
        A = self.A
        A("s_memrealtime s[98:99]")
        A("s_waitcnt lgkmcnt(0)")
        A(f"s_mul_i32 s100, s2, {5*64}")
        A("s_lshl_b32 s101, s28, 6")
        A("s_add_u32 s100, s100, s101")
        A(f"s_add_u32 s100, s100, {WS_STAMP + idx*4}")
        A(f"v_mov_b32 v{vt0}, s98")
        A(f"v_mov_b32 v{vt1}, s100")
        A(f"s_mov_b64 s[98:99], exec")
        A("s_mov_b64 exec, 1")
        A(f"buffer_store_dword v{vt0}, v{vt1}, s[44:47], 0 offen")
        A("s_mov_b64 exec, s[98:99]")

    def layernorm(self, X, n, T, cnt_inv):
        A = self.A
        t0, t1, t2, t3 = T, T + 1, T + 2, T + 3
        A(f"v_add_f32 v{t0}, v{X}, v{X+1}")
        for i in range(2, n):
            A(f"v_add_f32 v{t0}, v{t0}, v{X+i}")
        self.wave_allreduce("v_add_f32", t0, t1)
        A(f"v_mul_f32 v{t0}, {cnt_inv}, v{t0}")
        A(f"v_sub_f32 v{t1}, v{X}, v{t0}")
        A(f"v_mul_f32 v{t2}, v{t1}, v{t1}")
        for i in range(1, n):
            A(f"v_sub_f32 v{t1}, v{X+i}, v{t0}")
            A(f"v_fmac_f32 v{t2}, v{t1}, v{t1}")
        self.wave_allreduce("v_add_f32", t2, t1)
        A(f"v_mul_f32 v{t2}, {cnt_inv}, v{t2}")
        self.bf16_round1(t0, t0)
        self.bf16_round1(t2, t2)
        A(f"v_add_f32 v{t2}, {hex(f32bits(1e-5))}, v{t2}")
        self.bf16_round1(t2, t2)
        A(f"v_sqrt_f32 v{t2}, v{t2}")
        A("s_nop 0")
        self.bf16_round1(t2, t2)
        A(f"v_rcp_f32 v{t3}, v{t2}")
        for i in range(n):
            A(f"v_sub_f32 v{X+i}, v{X+i}, v{t0}")
        for i in range(0, n, 2):
            A(f"v_cvt_pk_bf16_f32 v{t1}, v{X+i}, v{X+i+1}")
            self.unpack(X + i, X + i + 1, t1)
        for i in range(n):
            A(f"v_mul_f32 v{t1}, v{X+i}, v{t3}")
            A(f"v_fma_f32 v{X+i}, -v{t1}, v{t2}, v{X+i}")
            A(f"v_fma_f32 v{X+i}, v{X+i}, v{t3}, v{t1}")
        for i in range(0, n, 2):
            A(f"v_cvt_pk_bf16_f32 v{t1}, v{X+i}, v{X+i+1}")
            self.unpack(X + i, X + i + 1, t1)

    def gather_loop(self, loads, regs, vt, active_mask=None, name="G"):
        A = self.A
        lp = self.newlabel(name + "_poll")
        dn = self.newlabel(name + "_done")
        if active_mask is None:
            A("s_mov_b64 s[66:67], -1")
        else:
            A(f"s_mov_b32 s66, {hex(active_mask & 0xffffffff)}")
            A(f"s_mov_b32 s67, {hex(active_mask >> 32)}")
        A(f"s_mov_b32 s68, {POLL_MAX}")
        self.label(lp)
        A("s_mov_b64 exec, s[66:67]")
        loads()
        A("s_waitcnt vmcnt(0)")
        rs = list(regs)
        if len(rs) == 1:
            A(f"v_mov_b32 v{vt}, v{rs[0]}")
        elif len(rs) == 2:
            A(f"v_max_u32 v{vt}, v{rs[0]}, v{rs[1]}")
        else:
            A(f"v_max3_u32 v{vt}, v{rs[0]}, v{rs[1]}, v{rs[2]}")
            i = 3
            while i < len(rs):
                if i + 1 < len(rs):
                    A(f"v_max3_u32 v{vt}, v{vt}, v{rs[i]}, v{rs[i+1]}")
                    i += 2
                else:
                    A(f"v_max_u32 v{vt}, v{vt}, v{rs[i]}")
                    i += 1
        A(f"v_cmp_eq_u32 vcc, -1, v{vt}")
        A("s_sub_u32 s68, s68, 1")
        A("s_cmp_eq_u32 s68, 0")
        A(f"s_cbranch_scc1 {dn}")
        A("s_mov_b64 s[66:67], vcc")
        A(f"s_cbranch_vccz {dn}")
        A("s_sleep 1")
        A(f"s_branch {lp}")
        self.label(dn)
        A("s_mov_b64 exec, -1")

    def gen(self):
        A, C = self.A, self.C
        NST = self.nst
        T = 32
        assert T % NST == 0
        self.L.append(f"; @launch grid=(256,1,1) block=(320,1,1) lds={LDS_BYTES}")
        self.L.append('.amdgcn_target "amdgcn-amd-amdhsa--gfx950"')
        self.L.append(".text")
        self.L.append(f".globl {KN}_kernel")
        self.L.append(".p2align 8")
        self.L.append(f".type {KN}_kernel,@function")
        self.label(f"{KN}_kernel")
        A("s_cmp_ge_u32 s2, 256")
        A("s_cbranch_scc1 L_end")
        A("s_load_dwordx16 s[4:19], s[0:1], 0")
        A("s_load_dwordx8 s[20:27], s[0:1], 64")
        A("v_lshrrev_b32 v2, 6, v0")
        A("v_and_b32 v1, 63, v0")
        A("s_mov_b32 s60, 0xffff0000")
        A("v_readfirstlane_b32 s28, v2")
        A(f"s_mov_b32 s61, {hex(f32bits(128 ** -0.5))}")
        A(f"s_mov_b32 s62, {hex(f32bits(1.4426950408889634))}")
        A(f"s_mov_b32 s63, {hex(f32bits(-1.4426950408889634))}")
        if self.xcdmap:
            A("s_lshr_b32 s33, s2, 3")
            A("s_lshr_b32 s31, s33, 2")
            A("s_and_b32 s33, s33, 3")
            A("s_and_b32 s32, s2, 7")
            A("s_lshl_b32 s32, s32, 2")
            A("s_add_u32 s32, s32, s33")
        else:
            A("s_and_b32 s31, s2, 7")
            A("s_lshr_b32 s32, s2, 3")
        A("s_waitcnt lgkmcnt(0)")
        A("s_load_dword s29, s[26:27], 0")
        self.srd(44, 26, None, WS_SIZE)
        self.srd(48, 24, None, 256)
        self.stamp(0, 2, 3, 1)
        A("s_cmp_eq_u32 s28, 4")
        A("s_cbranch_scc1 L_helper")

        vKo, vVo = 2, 3
        vQ = 4
        vS = 20
        vO = 24
        vM, vL = 32, 33
        vMk0, vMk1 = 34, 35
        vT0, vT1 = 36, 37
        vX = 38
        vF, vNM = 42, 43
        RB = 44
        self.RB = RB
        def kreg(st, m): return RB + st * 32 + m * 4
        def vreg(st, m): return RB + st * 32 + 16 + m * 4
        C("K/V SRDs: base + ga*16MiB + sa*512KiB + wave*4KiB")
        A("s_lshl_b32 s33, s31, 24")
        A("s_lshl_b32 s34, s32, 19")
        A("s_add_u32 s33, s33, s34")
        A("s_lshl_b32 s34, s28, 12")
        A("s_add_u32 s33, s33, s34")
        rng = 524288 - 3 * 4096
        self.srd(36, 6, 33, rng)
        self.srd(40, 8, 33, rng)
        A(f"v_lshlrev_b32 v{vVo}, 4, v1")
        A(f"v_and_b32 v{vT0}, 3, v1")
        A(f"v_lshlrev_b32 v{vT0}, 2, v{vT0}")
        A(f"v_bfe_u32 v{vT1}, v1, 2, 2")
        A(f"v_add_u32 v{vT0}, v{vT0}, v{vT1}")
        A(f"v_lshlrev_b32 v{vT0}, 8, v{vT0}")
        A(f"v_lshrrev_b32 v{vT1}, 4, v1")
        A(f"v_lshl_add_u32 v{vKo}, v{vT1}, 4, v{vT0}")
        def loadK(st):
            for m in range(4):
                r = kreg(st, m)
                A(f"buffer_load_dwordx4 v[{r}:{r+3}], v{vKo}, s[36:39], s64 offen offset:{m*64} nt")
        def loadV(st):
            for m in range(4):
                r = vreg(st, m)
                A(f"buffer_load_dwordx4 v[{r}:{r+3}], v{vVo}, s[40:43], s64 offen offset:{m*1024} nt")
        A("s_mov_b32 s64, 0")
        for st in range(NST):
            if st >= self.throttle:
                A(f"s_waitcnt vmcnt({8*(self.throttle-1)})")
            loadK(st); loadV(st)
            A("s_add_u32 s64, s64, 16384")
        C("masks: e''=l&3 ; X0: e''==0 -> lo, ==1 -> hi ; X1: ==2 -> lo, ==3 -> hi")
        A(f"v_and_b32 v{vT0}, 3, v1")
        A(f"v_mov_b32 v{vMk0}, 0")
        A(f"v_mov_b32 v{vMk1}, 0")
        A(f"v_mov_b32 v{vT1}, 0xffff")
        A(f"v_mov_b32 v{vF}, s60")
        A(f"v_cmp_eq_u32 vcc, 0, v{vT0}")
        A("s_nop 1")
        A(f"v_cndmask_b32 v{vMk0}, v{vMk0}, v{vT1}, vcc")
        A(f"v_cmp_eq_u32 vcc, 1, v{vT0}")
        A("s_nop 1")
        A(f"v_cndmask_b32 v{vMk0}, v{vMk0}, v{vF}, vcc")
        A(f"v_cmp_eq_u32 vcc, 2, v{vT0}")
        A("s_nop 1")
        A(f"v_cndmask_b32 v{vMk1}, v{vMk1}, v{vT1}, vcc")
        A(f"v_cmp_eq_u32 vcc, 3, v{vT0}")
        A("s_nop 1")
        A(f"v_cndmask_b32 v{vMk1}, v{vMk1}, v{vF}, vcc")
        for i in range(8):
            A(f"v_mov_b32 v{vO+i}, 0")
        A(f"v_mov_b32 v{vM}, 0xff800000")
        A(f"v_mov_b32 v{vL}, 0")
        C("Q operand address: h*256 + g*16 (+m*64)")
        A(f"v_bfe_u32 v{vT0}, v1, 2, 2")
        A(f"v_lshlrev_b32 v{vT0}, 8, v{vT0}")
        A(f"v_lshrrev_b32 v{vT1}, 4, v1")
        A(f"v_lshl_add_u32 v{vT0}, v{vT1}, 4, v{vT0}")
        A("s_barrier")
        for m in range(4):
            A(f"ds_read_b128 v[{vQ+4*m}:{vQ+4*m+3}], v{vT0} offset:{L_Q + m*64}")
        A(f"s_mov_b32 s65, {T//NST}")
        self.stamp(1, vT1, vF, 1)
        A("s_waitcnt lgkmcnt(0)")
        self.label("L_loop")
        W = 8 * NST - 4
        for st in range(NST):
            C(f"---- tile stage {st}")
            A(f"s_waitcnt vmcnt({W})")
            for m in range(4):
                k = kreg(st, m)
                c = "0" if m == 0 else f"v[{vS}:{vS+3}]"
                A(f"v_mfma_f32_16x16x32_bf16 v[{vS}:{vS+3}], v[{k}:{k+3}], v[{vQ+4*m}:{vQ+4*m+3}], {c}")
            loadK(st)
            A("s_nop 4")
            A(f"v_cvt_pk_bf16_f32 v{vT0}, v{vS}, v{vS+1}")
            A(f"v_cvt_pk_bf16_f32 v{vT1}, v{vS+2}, v{vS+3}")
            self.unpack(vS, vS + 1, vT0)
            self.unpack(vS + 2, vS + 3, vT1)
            for r in range(4):
                A(f"v_mul_f32 v{vS+r}, s61, v{vS+r}")
            A(f"v_cvt_pk_bf16_f32 v{vT0}, v{vS}, v{vS+1}")
            A(f"v_cvt_pk_bf16_f32 v{vT1}, v{vS+2}, v{vS+3}")
            self.unpack(vS, vS + 1, vT0)
            self.unpack(vS + 2, vS + 3, vT1)
            A(f"v_max3_f32 v{vT0}, v{vS}, v{vS+1}, v{vS+2}")
            A(f"v_max3_f32 v{vT0}, v{vT0}, v{vS+3}, v{vM}")
            self.cross_rows_allreduce("v_max_f32", vT0, vT1)
            A(f"v_sub_f32 v{vF}, v{vM}, v{vT0}")
            A(f"v_mul_f32 v{vNM}, s63, v{vT0}")
            A(f"v_mul_f32 v{vF}, s62, v{vF}")
            A(f"v_mov_b32 v{vM}, v{vT0}")
            A(f"v_exp_f32 v{vF}, v{vF}")
            for r in range(4):
                A(f"v_fma_f32 v{vS+r}, v{vS+r}, s62, v{vNM}")
            for r in range(4):
                A(f"v_exp_f32 v{vS+r}, v{vS+r}")
            for i in range(8):
                A(f"v_mul_f32 v{vO+i}, v{vF}, v{vO+i}")
            A(f"v_add_f32 v{vT0}, v{vS}, v{vS+1}")
            A(f"v_add_f32 v{vT1}, v{vS+2}, v{vS+3}")
            A(f"v_add_f32 v{vT0}, v{vT0}, v{vT1}")
            A(f"v_fma_f32 v{vL}, v{vL}, v{vF}, v{vT0}")
            for r in range(4):
                A(f"v_cvt_pk_bf16_f32 v{vS+r}, v{vS+r}, v{vS+r}")
            A(f"v_and_b32 v{vX}, v{vMk0}, v{vS}")
            A(f"v_and_b32 v{vX+1}, v{vMk1}, v{vS}")
            A(f"s_waitcnt vmcnt({W})")
            for r in range(4):
                x = vX + 2 * (r & 1)
                if r < 3:
                    xn = vX + 2 * ((r + 1) & 1)
                    A(f"v_and_b32 v{xn}, v{vMk0}, v{vS+r+1}")
                    A(f"v_and_b32 v{xn+1}, v{vMk1}, v{vS+r+1}")
                v = vreg(st, r)
                A(f"v_mfma_f32_16x16x16_bf16 v[{vO}:{vO+3}], v[{v}:{v+1}], v[{x}:{x+1}], v[{vO}:{vO+3}]")
                A(f"v_mfma_f32_16x16x16_bf16 v[{vO+4}:{vO+7}], v[{v+2}:{v+3}], v[{x}:{x+1}], v[{vO+4}:{vO+7}]")
            loadV(st)
            A("s_add_u32 s64, s64, 16384")
        A("s_sub_u32 s65, s65, 1")
        A("s_cmp_lg_u32 s65, 0")
        A("s_cbranch_scc1 L_loop")
        self.stamp(2, vT1, vF, 1)
        A("s_waitcnt vmcnt(0)")

        vI = vNM
        A(f"v_mov_b32 v{vT0}, 0")
        A(f"buffer_load_dword v{vI}, v{vT0}, s[48:51], 0 offen sc1")
        self.role_prefetch(RB)

        C("---- WG combine")
        self.cross_rows_allreduce("v_add_f32", vL, vT1)
        A("s_lshl_b32 s33, s28, 11")
        A(f"v_lshl_add_u32 v{vT0}, v1, 4, s33")
        A(f"ds_write_b128 v{vT0}, v[{vO}:{vO+3}] offset:{L_O}")
        A(f"ds_write_b128 v{vT0}, v[{vO+4}:{vO+7}] offset:{L_O+1024}")
        A("s_lshl_b32 s33, s28, 8")
        A(f"v_lshl_add_u32 v{vT0}, v1, 2, s33")
        A(f"ds_write_b32 v{vT0}, v{vM} offset:{L_M}")
        A(f"ds_write_b32 v{vT0}, v{vL} offset:{L_L}")
        A("s_waitcnt lgkmcnt(0)")
        A("s_barrier")
        A("s_cmp_ge_u32 s28, 2")
        A("s_cbranch_scc1 L_after_publish")
        m_, l_ = vQ, vQ + 4
        Ob = [vQ + 8, vQ + 12, vS, vO]
        A(f"v_lshlrev_b32 v{vT0}, 2, v1")
        for w in range(4):
            A(f"ds_read_b32 v{m_+w}, v{vT0} offset:{L_M + w*256}")
            A(f"ds_read_b32 v{l_+w}, v{vT0} offset:{L_L + w*256}")
        A("s_lshl_b32 s33, s28, 10")
        A(f"v_lshl_add_u32 v{vT0}, v1, 4, s33")
        for w in range(4):
            A(f"ds_read_b128 v[{Ob[w]}:{Ob[w]+3}], v{vT0} offset:{L_O + w*2048}")
        A("s_waitcnt lgkmcnt(4)")
        A(f"v_max3_f32 v{vM}, v{m_}, v{m_+1}, v{m_+2}")
        A(f"v_max_f32 v{vM}, v{vM}, v{m_+3}")
        for w in range(4):
            A(f"v_sub_f32 v{m_+w}, v{m_+w}, v{vM}")
        for w in range(4):
            A(f"v_mul_f32 v{m_+w}, s62, v{m_+w}")
        for w in range(4):
            A(f"v_exp_f32 v{m_+w}, v{m_+w}")
        A("s_nop 0")
        A(f"v_mul_f32 v{vL}, v{m_}, v{l_}")
        for w in range(1, 4):
            A(f"v_fmac_f32 v{vL}, v{m_+w}, v{l_+w}")
        A("s_waitcnt lgkmcnt(0)")
        acc = vO + 4
        for r in range(4):
            A(f"v_mul_f32 v{acc+r}, v{m_}, v{Ob[0]+r}")
        for w in range(1, 4):
            for r in range(4):
                A(f"v_fmac_f32 v{acc+r}, v{m_+w}, v{Ob[w]+r}")
        C("store O: PO + rec*2048 + h*512 + hf*256 + g'*64 + e''*16 ; rec = ga*32+sa")
        A("s_lshl_b32 s33, s31, 5")
        A("s_add_u32 s33, s33, s32")
        A("s_lshl_b32 s34, s33, 11")
        A("s_lshl_b32 s35, s28, 8")
        A("s_add_u32 s34, s34, s35")
        A(f"s_add_u32 s34, s34, {WS_PO}")
        A(f"v_bfe_u32 v{vT0}, v1, 2, 2")
        A(f"v_lshlrev_b32 v{vT0}, 9, v{vT0}")
        A(f"v_lshrrev_b32 v{vT1}, 4, v1")
        A(f"v_lshl_add_u32 v{vT0}, v{vT1}, 6, v{vT0}")
        A(f"v_and_b32 v{vT1}, 3, v1")
        A(f"v_lshl_add_u32 v{vT0}, v{vT1}, 4, v{vT0}")
        A(f"buffer_store_dwordx4 v[{acc}:{acc+3}], v{vT0}, s[44:47], s34 offen sc1")
        A("s_cmp_lg_u32 s28, 0")
        A("s_cbranch_scc1 L_after_publish")
        C("ML: lanes 0,4,8,12 -> PML + rec*32 + h*8")
        A("s_lshl_b32 s34, s33, 5")
        A(f"s_add_u32 s34, s34, {WS_PML}")
        A(f"v_lshlrev_b32 v{vT0}, 1, v1")
        A("s_mov_b64 exec, 0x1111")
        A(f"buffer_store_dwordx2 v[{vM}:{vL}], v{vT0}, s[44:47], s34 offen sc1")
        A("s_mov_b64 exec, -1")
        self.label("L_after_publish")
        self.stamp(3, vT1, vF, 1)
        A(f"s_cmp_ge_u32 s2, {E0 + NE_WG}")
        A("s_cbranch_scc1 L_end")
        self.init_check(vI, vT0)
        A(f"s_cmp_lt_u32 s2, {C0}")
        A("s_cbranch_scc1 L_roleB")
        A(f"s_cmp_lt_u32 s2, {E0}")
        A("s_cbranch_scc1 L_roleC")
        A("s_branch L_roleE")

        self.roleB(RB)
        self.roleC(RB)
        self.roleE(RB)
        self.helper()

        self.label("L_end")
        A("s_endpgm")
        nv = RB + NST * 32
        nv = max(nv, 176)
        self.L.append('.section .rodata,"a"')
        self.L.append(".p2align 6")
        self.L.append(f".amdhsa_kernel {KN}_kernel")
        self.L.append(f"  .amdhsa_next_free_vgpr {nv}")
        self.L.append("  .amdhsa_next_free_sgpr 102")
        self.L.append(f"  .amdhsa_accum_offset {(nv+3)//4*4}")
        self.L.append("  .amdhsa_group_segment_fixed_size 0")
        self.L.append("  .amdhsa_kernarg_size 96")
        self.L.append("  .amdhsa_user_sgpr_count 2")
        self.L.append("  .amdhsa_user_sgpr_kernarg_segment_ptr 1")
        self.L.append("  .amdhsa_system_sgpr_workgroup_id_x 1")
        self.L.append("  .amdhsa_float_denorm_mode_32 3")
        self.L.append(".end_amdhsa_kernel")
        return "\n".join(self.L) + "\n"

    def init_check(self, vI, vt):
        A = self.A
        lp = self.newlabel("init_poll")
        ok = self.newlabel("init_ok")
        A(f"s_mov_b32 s68, {POLL_MAX}")
        A("s_waitcnt vmcnt(0)")
        self.label(lp)
        A(f"v_readfirstlane_b32 s33, v{vI}")
        A("s_cmp_ge_u32 s33, 256")
        A(f"s_cbranch_scc1 {ok}")
        A("s_sub_u32 s68, s68, 1")
        A("s_cmp_eq_u32 s68, 0")
        A(f"s_cbranch_scc1 {ok}")
        A("s_sleep 2")
        A(f"v_mov_b32 v{vt}, 0")
        A(f"buffer_load_dword v{vI}, v{vt}, s[48:51], 0 offen sc1")
        A("s_waitcnt vmcnt(0)")
        A(f"s_branch {lp}")
        self.label(ok)

    def role_prefetch(self, RB):
        A, C = self.A, self.C
        t0, t1 = 36, 37
        done = self.newlabel("pf_done")
        notB = self.newlabel("pf_notB")
        A(f"s_cmp_ge_u32 s2, {E0}")
        A(f"s_cbranch_scc1 {done}")
        A(f"s_cmp_ge_u32 s2, {C0}")
        A(f"s_cbranch_scc1 {notB}")
        C("role B weights: wo rows (kg*4+w)*128 + d, cols cb*64")
        A("s_and_b32 s33, s2, 7")
        A("s_lshl_b32 s33, s33, 2")
        A("s_add_u32 s33, s33, s28")
        A("s_lshl_b32 s33, s33, 17")
        A("s_lshr_b32 s34, s2, 3")
        A("s_lshl_b32 s34, s34, 7")
        A("s_add_u32 s33, s33, s34")
        self.srd(52, 12, 33, 131072 - 896)
        A(f"v_bfe_u32 v{t0}, v1, 3, 2")
        A(f"v_lshlrev_b32 v{t0}, 15, v{t0}")
        A(f"v_lshrrev_b32 v{t1}, 5, v1")
        A(f"v_lshl_add_u32 v{t0}, v{t1}, 12, v{t0}")
        A(f"v_and_b32 v{t1}, 7, v1")
        A(f"v_lshl_add_u32 v{t0}, v{t1}, 4, v{t0}")
        for j in range(16):
            off = (8 * (j & 3) + (j >> 2)) * 1024
            r = RB + 4 * j
            so, io = off & ~4095, off & 4095
            A(f"s_mov_b32 s34, {so}")
            A(f"buffer_load_dwordx4 v[{r}:{r+3}], v{t0}, s[52:55], s34 offen offset:{io} nt")
        A(f"s_branch {done}")
        self.label(notB)
        C("role C weights")
        A(f"s_sub_u32 s33, s2, {C0}")
        A("s_lshl_b32 s34, s33, 6")
        A(f"s_mul_i32 s35, s28, {128*3584}")
        A("s_add_u32 s34, s34, s35")
        self.srd(52, 16, 34, 128 * 3584 - 3584 + 64)
        self.srd(56, 18, 34, 128 * 3584 - 3584 + 64)
        A(f"v_lshrrev_b32 v{t0}, 2, v1")
        A(f"v_mul_u32_u24 v{t0}, {8*3584}, v{t0}")
        A(f"v_and_b32 v{t1}, 3, v1")
        A(f"v_lshl_add_u32 v{t0}, v{t1}, 4, v{t0}")
        for j in range(8):
            A(f"s_mov_b32 s35, {j*3584}")
            r = RB + 4 * j
            A(f"buffer_load_dwordx4 v[{r}:{r+3}], v{t0}, s[52:55], s35 offen nt")
            r = RB + 32 + 4 * j
            A(f"buffer_load_dwordx4 v[{r}:{r+3}], v{t0}, s[56:59], s35 offen nt")
        C("down weights: rows f0+8g+j, cols w*128 + c16*8")
        A("s_lshl_b32 s34, s33, 15")
        A("s_lshl_b32 s35, s28, 8")
        A("s_add_u32 s34, s34, s35")
        self.srd(52, 20, 34, 32768 - 768)
        A(f"v_lshrrev_b32 v{t0}, 4, v1")
        A(f"v_lshlrev_b32 v{t0}, 13, v{t0}")
        A(f"v_and_b32 v{t1}, 15, v1")
        A(f"v_lshl_add_u32 v{t0}, v{t1}, 4, v{t0}")
        for j in range(8):
            off = j * 1024
            so, io = off & ~4095, off & 4095
            r = RB + 64 + 4 * j
            A(f"s_mov_b32 s35, {so}")
            A(f"buffer_load_dwordx4 v[{r}:{r+3}], v{t0}, s[52:55], s35 offen offset:{io} nt")
        C("x")
        self.srd(56, 4, None, 1024)
        A(f"v_lshlrev_b32 v{t0}, 4, v1")
        r = RB + 96
        A(f"buffer_load_dwordx4 v[{r}:{r+3}], v{t0}, s[56:59], 0 offen")
        self.label(done)

    def emasks(self, mk, t0, t1, t2):
        A = self.A
        A(f"v_and_b32 v{t0}, 1, v1")
        A(f"v_mov_b32 v{t1}, 0xffff")
        A(f"v_mov_b32 v{t2}, s60")
        A(f"v_cmp_eq_u32 vcc, 1, v{t0}")
        A("s_nop 1")
        A(f"v_cndmask_b32 v{t1}, v{t1}, v{t2}, vcc")
        A(f"v_bfe_u32 v{t0}, v1, 1, 2")
        for r in range(4):
            A(f"v_cmp_eq_u32 vcc, {r}, v{t0}")
            A("s_nop 1")
            A(f"v_cndmask_b32 v{mk+r}, 0, v{t1}, vcc")

    def roleB(self, RB):
        A, C = self.A, self.C
        self.label("L_roleB")
        Wt = RB
        G = RB + 64
        vML = 2
        vA0, vA1 = 4, 5
        t0, t1, t2 = 6, 7, 8
        mk = 12
        acc = 16
        X = 20
        D = 28
        wj = 32
        self.emasks(mk, t0, t1, t2)
        A("s_and_b32 s33, s2, 7")
        A("s_lshl_b32 s34, s33, 16")
        A("s_lshl_b32 s35, s28, 9")
        A("s_add_u32 s34, s34, s35")
        A(f"s_add_u32 s34, s34, {WS_PO}")
        A(f"v_lshrrev_b32 v{t0}, 5, v1")
        A(f"v_lshlrev_b32 v{t0}, 11, v{t0}")
        A(f"v_and_b32 v{t1}, 31, v1")
        A(f"v_lshl_add_u32 v{vA0}, v{t1}, 4, v{t0}")
        A(f"v_add_u32 v{vA0}, s34, v{vA0}")
        A("s_lshl_b32 s34, s33, 10")
        A("s_lshl_b32 s35, s28, 3")
        A("s_add_u32 s34, s34, s35")
        A(f"s_add_u32 s34, s34, {WS_PML}")
        A(f"v_and_b32 v{t0}, 15, v1")
        A(f"v_lshlrev_b32 v{t0}, 6, v{t0}")
        A(f"v_lshrrev_b32 v{t1}, 5, v1")
        A(f"v_lshl_add_u32 v{vA1}, v{t1}, 5, v{t0}")
        A(f"v_add_u32 v{vA1}, s34, v{vA1}")
        def loads():
            A(f"buffer_load_dwordx2 v[{vML}:{vML+1}], v{vA1}, s[44:47], 0 offen sc1")
            for j in range(16):
                A(f"s_mov_b32 s35, {j*4096}")
                A(f"buffer_load_dwordx4 v[{G+4*j}:{G+4*j+3}], v{vA0}, s[44:47], s35 offen sc1")
        self.gather_loop(loads, [vML, vML + 1] + list(range(G, G + 64)), t0, name="B")
        self.stamp(4, t0, t1, 1)
        A(f"v_mov_b32 v{t0}, v{vML}")
        self.row_allreduce("v_max_f32", [t0])
        self.cross_rows_allreduce("v_max_f32", t0, t1, do16=False)
        A(f"v_sub_f32 v{t0}, v{vML}, v{t0}")
        A(f"v_mul_f32 v{t0}, s62, v{t0}")
        A(f"v_exp_f32 v{t0}, v{t0}")
        A("s_nop 0")
        A(f"v_mul_f32 v{t2}, v{t0}, v{vML+1}")
        self.row_allreduce("v_add_f32", [t2])
        self.cross_rows_allreduce("v_add_f32", t2, t1, do16=False)
        A(f"v_rcp_f32 v{t2}, v{t2}")
        A("s_nop 0")
        A(f"v_mul_f32 v{t0}, v{t0}, v{t2}")
        for half in range(2):
            for jj in range(8):
                j = half * 8 + jj
                A(f"ds_swizzle_b32 v{wj+jj}, v{t0} offset:{j << 5}")
            for jj in range(8):
                j = half * 8 + jj
                A(f"s_waitcnt lgkmcnt({7-jj})")
                for r in range(4):
                    if j == 0:
                        A(f"v_mul_f32 v{acc+r}, v{wj+jj}, v{G+4*j+r}")
                    else:
                        A(f"v_fmac_f32 v{acc+r}, v{wj+jj}, v{G+4*j+r}")
        A("s_nop 1")
        A(f"v_permlane32_swap_b32 v{acc}, v{acc+1}")
        A(f"v_permlane32_swap_b32 v{acc+2}, v{acc+3}")
        A("s_nop 0")
        A(f"v_add_f32 v{acc}, v{acc}, v{acc+1}")
        A(f"v_add_f32 v{acc+2}, v{acc+2}, v{acc+3}")
        A(f"v_cvt_pk_bf16_f32 v{acc}, v{acc}, v{acc}")
        A(f"v_cvt_pk_bf16_f32 v{acc+2}, v{acc+2}, v{acc+2}")
        A("s_lshl_b32 s34, s28, 9")
        A(f"v_and_b32 v{t0}, 31, v1")
        A(f"v_lshlrev_b32 v{t0}, 4, v{t0}")
        A(f"v_lshrrev_b32 v{t1}, 5, v1")
        A(f"v_lshl_add_u32 v{t0}, v{t1}, 2, v{t0}")
        A(f"v_add_u32 v{t0}, s34, v{t0}")
        A(f"ds_write_b32 v{t0}, v{acc} offset:{L_W}")
        A(f"ds_write_b32 v{t0}, v{acc+2} offset:{L_W+8}")
        A(f"v_lshrrev_b32 v{t0}, 3, v1")
        A(f"v_lshlrev_b32 v{t0}, 6, v{t0}")
        A(f"v_add_u32 v{t0}, s34, v{t0}")
        A("s_waitcnt lgkmcnt(0)")
        for i in range(4):
            A(f"ds_read_b128 v[{G+4*i}:{G+4*i+3}], v{t0} offset:{L_W + 16*i}")
        A("s_waitcnt lgkmcnt(0)")
        for r in range(4):
            A(f"v_and_b32 v{X+r}, v{mk+r}, v{G}")
        for j in range(16):
            x = X + 4 * (j & 1)
            if j < 15:
                xn = X + 4 * ((j + 1) & 1)
                for r in range(4):
                    A(f"v_and_b32 v{xn+r}, v{mk+r}, v{G+j+1}")
            else:
                A("s_nop 1")
            c = "0" if j == 0 else f"v[{D}:{D+3}]"
            A(f"v_mfma_f32_16x16x32_bf16 v[{D}:{D+3}], v[{Wt+4*j}:{Wt+4*j+3}], v[{x}:{x+3}], {c}")
        A("s_lshl_b32 s34, s28, 9")
        A(f"v_lshrrev_b32 v{t0}, 5, v1")
        A(f"v_lshlrev_b32 v{t0}, 8, v{t0}")
        A(f"v_bfe_u32 v{t1}, v1, 4, 1")
        A(f"v_lshl_add_u32 v{t0}, v{t1}, 7, v{t0}")
        A(f"v_and_b32 v{t1}, 7, v1")
        A(f"v_lshl_add_u32 v{t0}, v{t1}, 2, v{t0}")
        A(f"v_add_u32 v{t0}, s34, v{t0}")
        A("s_mov_b32 exec_lo, 0x00ff00ff")
        A("s_mov_b32 exec_hi, 0xff00ff00")
        A("s_nop 1")
        for r in range(4):
            A(f"ds_write_b32 v{t0}, v{D+r} offset:{L_R + 32*r}")
        A("s_mov_b64 exec, -1")
        A("s_waitcnt lgkmcnt(0)")
        A("s_barrier")
        A("s_cmp_lg_u32 s28, 0")
        A("s_cbranch_scc1 L_end")
        A(f"v_lshlrev_b32 v{t0}, 2, v1")
        for i in range(8):
            A(f"ds_read_b32 v{wj+i}, v{t0} offset:{L_R + 256*i}")
        A("s_lshl_b32 s34, s33, 11")
        A("s_lshr_b32 s35, s2, 3")
        A("s_lshl_b32 s35, s35, 8")
        A("s_add_u32 s34, s34, s35")
        A(f"s_add_u32 s34, s34, {WS_HP}")
        A("s_waitcnt lgkmcnt(0)")
        for i in range(4):
            A(f"v_add_f32 v{wj+2*i}, v{wj+2*i}, v{wj+2*i+1}")
        A(f"v_add_f32 v{wj}, v{wj}, v{wj+2}")
        A(f"v_add_f32 v{wj+4}, v{wj+4}, v{wj+6}")
        A(f"v_add_f32 v{wj}, v{wj}, v{wj+4}")
        A(f"buffer_store_dword v{wj}, v{t0}, s[44:47], s34 offen sc1")
        self.stamp(5, t1, t2, 1)
        A("s_branch L_end")

    def roleC(self, RB):
        A, C = self.A, self.C
        self.label("L_roleC")
        Wg, Wu, Wd, Xr = RB, RB + 32, RB + 64, RB + 96
        G = RB + 100
        H = RB + 116
        vA0 = 2
        t0, t1, t2, t3 = 4, 5, 6, 7
        sel = 8
        mk = 12
        P = 16
        X = 20
        D = 28
        self.emasks(mk, t0, t1, t2)
        A(f"v_and_b32 v{t0}, 3, v1")
        vals = {0: (0x0c0c0100, 0x0c0c0302), 1: (0x01000c0c, 0x03020c0c)}
        for i in range(4):
            A(f"v_mov_b32 v{sel+i}, 0x0c0c0c0c")
        for e in range(4):
            A(f"v_cmp_eq_u32 vcc, {e}, v{t0}")
            base = sel + (0 if e < 2 else 2)
            A(f"v_mov_b32 v{t1}, {hex(vals[e & 1][0])}")
            A(f"v_mov_b32 v{t2}, {hex(vals[e & 1][1])}")
            A(f"v_cndmask_b32 v{base}, v{base}, v{t1}, vcc")
            A(f"v_cndmask_b32 v{base+1}, v{base+1}, v{t2}, vcc")
        A("s_and_b32 s33, s28, 1")
        A("s_lshl_b32 s33, s33, 10")
        A("s_lshr_b32 s34, s28, 1")
        A("s_lshl_b32 s35, s34, 13")
        A("s_add_u32 s35, s35, s33")
        A(f"s_add_u32 s35, s35, {WS_HP}")
        A(f"v_lshl_add_u32 v{vA0}, v1, 4, s35")
        def loads():
            for k in range(4):
                A(f"s_mov_b32 s35, {k*2048}")
                A(f"buffer_load_dwordx4 v[{G+4*k}:{G+4*k+3}], v{vA0}, s[44:47], s35 offen sc1")
        self.gather_loop(loads, list(range(G, G + 16)), t0, name="C")
        self.stamp(4, t0, t1, 1)
        for r in range(4):
            A(f"v_add_f32 v{G+r}, v{G+r}, v{G+4+r}")
            A(f"v_add_f32 v{G+8+r}, v{G+8+r}, v{G+12+r}")
        for r in range(4):
            A(f"v_add_f32 v{G+r}, v{G+r}, v{G+8+r}")
        A("s_lshl_b32 s34, s34, 11")
        A("s_add_u32 s34, s34, s33")
        A(f"v_lshl_add_u32 v{t0}, v1, 4, s34")
        A(f"ds_write_b128 v{t0}, v[{G}:{G+3}] offset:{L_R}")
        A("s_waitcnt lgkmcnt(0)")
        A("s_barrier")
        A(f"v_lshlrev_b32 v{t0}, 5, v1")
        A(f"ds_read_b128 v[{G}:{G+3}], v{t0} offset:{L_R}")
        A(f"ds_read_b128 v[{G+4}:{G+7}], v{t0} offset:{L_R+16}")
        A(f"ds_read_b128 v[{G+8}:{G+11}], v{t0} offset:{L_R+2048}")
        A(f"ds_read_b128 v[{G+12}:{G+15}], v{t0} offset:{L_R+2048+16}")
        for i in range(4):
            self.unpack(H + 2 * i, H + 2 * i + 1, Xr + i)
        A("s_waitcnt lgkmcnt(0)")
        for i in range(8):
            A(f"v_add_f32 v{G+i}, v{G+i}, v{G+8+i}")
        for i in range(0, 8, 2):
            A(f"v_cvt_pk_bf16_f32 v{t0}, v{G+i}, v{G+i+1}")
            self.unpack(G + i, G + i + 1, t0)
        for i in range(8):
            A(f"v_add_f32 v{H+i}, v{H+i}, v{G+i}")
        for i in range(0, 8, 2):
            A(f"v_cvt_pk_bf16_f32 v{t0}, v{H+i}, v{H+i+1}")
            self.unpack(H + i, H + i + 1, t0)
        self.layernorm(H, 8, t0, hex(f32bits(1.0 / 512)))
        for i in range(4):
            A(f"v_cvt_pk_bf16_f32 v{G+i}, v{H+2*i}, v{H+2*i+1}")
        A("s_lshl_b32 s34, s28, 6")
        A(f"v_lshrrev_b32 v{t0}, 2, v1")
        A(f"v_lshl_add_u32 v{t0}, v{t0}, 2, s34")
        for i in range(4):
            A(f"ds_bpermute_b32 v{P+i}, v{t0}, v{G+i}")
        A("s_waitcnt lgkmcnt(0)")
        def mkx(j):
            x = X + 2 * (j & 1)
            A(f"v_perm_b32 v{x}, v{P+(j>>1)}, v{P+(j>>1)}, v{sel+(j&1)}")
            A(f"v_perm_b32 v{x+1}, v{P+(j>>1)}, v{P+(j>>1)}, v{sel+2+(j&1)}")
        mkx(0)
        for j in range(8):
            x = X + 2 * (j & 1)
            if j < 7:
                mkx(j + 1)
            else:
                A("s_nop 1")
            for mat, Wb in ((0, Wg), (1, Wu)):
                for hf in range(2):
                    d = D + (mat * 2 + hf) * 4
                    c = "0" if j == 0 else f"v[{d}:{d+3}]"
                    a = Wb + 4 * j + 2 * hf
                    A(f"v_mfma_f32_16x16x16_bf16 v[{d}:{d+3}], v[{a}:{a+1}], v[{x}:{x+1}], {c}")
        A("s_lshl_b32 s34, s28, 4")
        A(f"v_and_b32 v{t0}, 3, v1")
        A(f"v_lshlrev_b32 v{t0}, 6, v{t0}")
        A(f"v_lshrrev_b32 v{t1}, 4, v1")
        A(f"v_lshl_add_u32 v{t0}, v{t1}, 2, v{t0}")
        A(f"v_add_u32 v{t0}, s34, v{t0}")
        A("s_mov_b32 exec_lo, 0x00f0000f")
        A("s_mov_b32 exec_hi, 0xf0000f00")
        A("s_nop 3")
        for mat in range(2):
            for hf in range(2):
                for r in range(4):
                    off = L_G + (mat * 32 + 8 * r + 4 * hf) * 64
                    A(f"ds_write_b32 v{t0}, v{D+(mat*2+hf)*4+r} offset:{off}")
        A("s_mov_b64 exec, -1")
        A("s_waitcnt lgkmcnt(0)")
        A("s_barrier")
        A(f"v_lshlrev_b32 v{t0}, 6, v1")
        for i in range(4):
            A(f"ds_read_b128 v[{G+4*i}:{G+4*i+3}], v{t0} offset:{L_G + 16*i}")
        A("s_waitcnt lgkmcnt(0)")
        n = 16
        while n > 1:
            n //= 2
            for i in range(n):
                A(f"v_add_f32 v{G+i}, v{G+i}, v{G+n+i}")
        self.bf16_round1(G, G)
        A(f"v_mov_b32 v{t1}, v{G}")
        A("s_nop 1")
        A(f"v_permlane32_swap_b32 v{G}, v{t1}")
        A("s_nop 0")
        A(f"v_mul_f32 v{t0}, s63, v{G}")
        A(f"v_exp_f32 v{t0}, v{t0}")
        A("s_nop 0")
        A(f"v_add_f32 v{t0}, 1.0, v{t0}")
        A(f"v_rcp_f32 v{t2}, v{t0}")
        A("s_nop 0")
        self.bf16_round1(t2, t2)
        A(f"v_mul_f32 v{t2}, v{t2}, v{t1}")
        A(f"v_cvt_pk_bf16_f32 v{t2}, v{t2}, v{t2}")
        A(f"v_lshrrev_b32 v{t0}, 4, v1")
        A(f"v_lshlrev_b32 v{t0}, 5, v{t0}")
        for j in range(8):
            A(f"ds_bpermute_b32 v{G+j}, v{t0}, v{t2} offset:{4*j}")
        A("s_waitcnt lgkmcnt(0)")
        for r in range(4):
            A(f"v_and_b32 v{X+r}, v{mk+r}, v{G}")
        for j in range(8):
            x = X + 4 * (j & 1)
            if j < 7:
                xn = X + 4 * ((j + 1) & 1)
                for r in range(4):
                    A(f"v_and_b32 v{xn+r}, v{mk+r}, v{G+j+1}")
            else:
                A("s_nop 1")
            c = "0" if j == 0 else f"v[{D}:{D+3}]"
            A(f"v_mfma_f32_16x16x32_bf16 v[{D}:{D+3}], v[{Wd+4*j}:{Wd+4*j+3}], v[{x}:{x+3}], {c}")
        A(f"s_sub_u32 s33, s2, {C0}")
        A("s_lshl_b32 s33, s33, 11")
        A("s_lshl_b32 s34, s28, 9")
        A("s_add_u32 s33, s33, s34")
        A(f"s_add_u32 s33, s33, {WS_OP}")
        A(f"v_lshrrev_b32 v{t0}, 4, v1")
        A(f"v_lshlrev_b32 v{t0}, 7, v{t0}")
        A(f"v_and_b32 v{t1}, 7, v1")
        A(f"v_lshl_add_u32 v{t0}, v{t1}, 4, v{t0}")
        A("s_mov_b32 exec_lo, 0x00ff00ff")
        A("s_mov_b32 exec_hi, 0x00ff00ff")
        A("s_nop 1")
        A(f"buffer_store_dwordx4 v[{D}:{D+3}], v{t0}, s[44:47], s33 offen sc1")
        A("s_mov_b64 exec, -1")
        self.stamp(5, t1, t2, 1)
        A("s_branch L_end")

    def roleE(self, RB):
        A, C = self.A, self.C
        self.label("L_roleE")
        a = RB
        hp = RB + 8
        xr = RB + 10
        vA0, vA1, vA2 = 2, 3, 4
        t0, t1, t2 = 6, 7, 8
        A(f"s_sub_u32 s33, s2, {E0}")
        A("s_lshl_b32 s33, s33, 2")
        A("s_add_u32 s33, s33, s28")
        A("s_lshr_b32 s34, s33, 2")
        A("s_lshl_b32 s34, s34, 5")
        A("s_and_b32 s35, s33, 3")
        A("s_lshl_b32 s35, s35, 1")
        A("s_add_u32 s34, s34, s35")
        A(f"v_lshrrev_b32 v{t0}, 4, v1")
        A(f"v_lshlrev_b32 v{t0}, 3, v{t0}")
        A(f"v_add_u32 v{t0}, s34, v{t0}")
        A(f"v_lshlrev_b32 v{vA2}, 1, v{t0}")
        self.srd(56, 4, None, 1024)
        A(f"buffer_load_dword v{xr}, v{vA2}, s[56:59], 0 offen")
        A(f"v_and_b32 v{t1}, 7, v1")
        A(f"v_lshlrev_b32 v{t1}, 11, v{t1}")
        A(f"v_lshl_add_u32 v{vA1}, v{t0}, 2, v{t1}")
        A(f"v_add_u32 v{vA1}, {WS_HP}, v{vA1}")
        def loads_hp():
            A(f"buffer_load_dwordx2 v[{hp}:{hp+1}], v{vA1}, s[44:47], 0 offen sc1")
        self.gather_loop(loads_hp, [hp, hp + 1], t0, name="EH")
        for ctrl in ("quad_perm:[1,0,3,2]", "quad_perm:[2,3,0,1]", "row_half_mirror"):
            A("s_nop 1")
            self.dpp("v_add_f32", hp, hp, hp, ctrl)
            self.dpp("v_add_f32", hp + 1, hp + 1, hp + 1, ctrl)
        A(f"v_cvt_pk_bf16_f32 v{t0}, v{hp}, v{hp+1}")
        self.unpack(hp, hp + 1, t0)
        self.unpack(t0, t1, xr)
        A(f"v_add_f32 v{hp}, v{hp}, v{t0}")
        A(f"v_add_f32 v{hp+1}, v{hp+1}, v{t1}")
        A(f"v_cvt_pk_bf16_f32 v{t0}, v{hp}, v{hp+1}")
        self.unpack(hp, hp + 1, t0)
        A("s_lshl_b32 s35, s33, 5")
        A(f"s_add_u32 s35, s35, {WS_OP}")
        A(f"v_lshlrev_b32 v{vA0}, 11, v1")
        A(f"v_add_u32 v{vA0}, s35, v{vA0}")
        for i in range(8):
            A(f"v_mov_b32 v{a+i}, 0")
        def loads_op():
            A(f"buffer_load_dwordx4 v[{a}:{a+3}], v{vA0}, s[44:47], 0 offen sc1")
            A(f"buffer_load_dwordx4 v[{a+4}:{a+7}], v{vA0}, s[44:47], 0 offen offset:16 sc1")
        self.gather_loop(loads_op, list(range(a, a + 8)), t0, active_mask=(1 << NC) - 1, name="EO")
        self.stamp(4, t0, t1, 1)
        A("s_nop 1")
        for e in range(2):
            for r in range(2):
                A(f"v_permlane32_swap_b32 v{a+4*e+r}, v{a+4*e+r+2}")
        A("s_nop 0")
        for e in range(2):
            for r in range(2):
                A(f"v_add_f32 v{a+4*e+r}, v{a+4*e+r}, v{a+4*e+r+2}")
        A("s_nop 1")
        for e in range(2):
            A(f"v_permlane16_swap_b32 v{a+4*e}, v{a+4*e+1}")
        A("s_nop 0")
        for e in range(2):
            A(f"v_add_f32 v{a+4*e}, v{a+4*e}, v{a+4*e+1}")
        self.row_allreduce("v_add_f32", [a, a + 4])
        A(f"v_cvt_pk_bf16_f32 v{t0}, v{a}, v{a+4}")
        self.unpack(a, a + 4, t0)
        A(f"v_add_f32 v{a}, v{a}, v{hp}")
        A(f"v_add_f32 v{a+4}, v{a+4}, v{hp+1}")
        A(f"v_cvt_pk_bf16_f32 v{t0}, v{a}, v{a+4}")
        self.srd(52, 22, None, 1024)
        A("s_mov_b32 exec_lo, 0x00010001")
        A("s_mov_b32 exec_hi, 0x00010001")
        A(f"buffer_store_dword v{t0}, v{vA2}, s[52:55], 0 offen")
        A("s_mov_b64 exec, -1")
        self.stamp(5, t1, t2, 1)
        A("s_cmp_lg_u32 s33, 0")
        A("s_cbranch_scc1 L_end")
        C("epoch update")
        A("s_waitcnt lgkmcnt(0)")
        A("s_add_u32 s29, s29, 1")
        A(f"v_mov_b32 v{t0}, s29")
        A(f"v_mov_b32 v{t1}, {WS_EPOCH}")
        A("s_mov_b64 exec, 1")
        A(f"buffer_store_dword v{t0}, v{t1}, s[44:47], 0 offen")
        A("s_branch L_end")

    def helper(self):
        A, C = self.A, self.C
        self.label("L_helper")
        W = 64
        XP = 8
        XF = 16
        acc = 32
        t0, t1, t2, t3 = 2, 3, 4, 5
        u0, u1 = 6, 7
        G = 40
        self.srd(56, 4, None, 1024)
        A(f"v_lshrrev_b32 v{t0}, 1, v1")
        A(f"v_lshlrev_b32 v{t1}, 5, v{t0}")
        A(f"buffer_load_dwordx4 v[{XP}:{XP+3}], v{t1}, s[56:59], 0 offen")
        A(f"buffer_load_dwordx4 v[{XP+4}:{XP+7}], v{t1}, s[56:59], 0 offen offset:16")
        A("s_and_b32 s33, s2, 7")
        A("s_lshl_b32 s33, s33, 5")
        A("s_lshr_b32 s34, s2, 3")
        A("s_add_u32 s33, s33, s34")
        A("s_lshl_b32 s34, s33, 5")
        self.srd(52, 10, 34, 4194304 - 8192 + 32)
        A(f"v_lshlrev_b32 v{t0}, 17, v{t0}")
        A(f"v_and_b32 v{t1}, 1, v1")
        A(f"v_lshl_add_u32 v{t0}, v{t1}, 4, v{t0}")
        for j in range(16):
            A(f"s_mov_b32 s35, {j*8192}")
            A(f"buffer_load_dwordx4 v[{W+4*j}:{W+4*j+3}], v{t0}, s[52:55], s35 offen nt")
        A("s_waitcnt vmcnt(16)")
        for i in range(8):
            self.unpack(XF + 2 * i, XF + 2 * i + 1, XP + i)
        self.layernorm(XF, 16, t0, hex(f32bits(1.0 / 1024)))
        for j in range(16):
            A(f"s_waitcnt vmcnt({15-j})")
            for i in range(4):
                self.unpack(u0, u1, W + 4 * j + i)
                if j == 0:
                    A(f"v_mul_f32 v{acc+2*i}, v{XF+j}, v{u0}")
                    A(f"v_mul_f32 v{acc+2*i+1}, v{XF+j}, v{u1}")
                else:
                    A(f"v_fmac_f32 v{acc+2*i}, v{XF+j}, v{u0}")
                    A(f"v_fmac_f32 v{acc+2*i+1}, v{XF+j}, v{u1}")
        A("s_nop 1")
        for i in range(4):
            A(f"v_permlane32_swap_b32 v{acc+i}, v{acc+i+4}")
        A("s_nop 0")
        for i in range(4):
            A(f"v_add_f32 v{acc+i}, v{acc+i}, v{acc+i+4}")
        A("s_nop 1")
        for i in range(2):
            A(f"v_permlane16_swap_b32 v{acc+i}, v{acc+i+2}")
        A("s_nop 0")
        for i in range(2):
            A(f"v_add_f32 v{acc+i}, v{acc+i}, v{acc+i+2}")
        for ctrl in ("quad_perm:[2,3,0,1]", "row_ror:4", "row_ror:8"):
            A("s_nop 1")
            self.dpp("v_add_f32", acc, acc, acc, ctrl)
            self.dpp("v_add_f32", acc + 1, acc + 1, acc + 1, ctrl)
        A("s_waitcnt lgkmcnt(0)")
        A("s_mul_i32 s30, s29, 0x9e3779b1")
        A("s_add_u32 s30, s30, 0x7f4a7c15")
        A(f"v_cvt_pk_bf16_f32 v{acc}, v{acc}, v{acc+1}")
        A(f"v_mov_b32 v{acc+1}, s30")
        A("s_lshl_b32 s34, s33, 6")
        A(f"s_add_u32 s34, s34, {WS_Q}")
        A(f"v_and_b32 v{t0}, 1, v1")
        A(f"v_lshlrev_b32 v{t0}, 5, v{t0}")
        A(f"v_lshrrev_b32 v{t1}, 4, v1")
        A(f"v_lshl_add_u32 v{t0}, v{t1}, 3, v{t0}")
        A("s_mov_b32 exec_lo, 0x00030003")
        A("s_mov_b32 exec_hi, 0x00030003")
        A(f"buffer_store_dwordx2 v[{acc}:{acc+1}], v{t0}, s[44:47], s34 offen sc1")
        A("s_mov_b64 exec, -1")
        self.stamp(1, t1, t2, 1)
        C("sentinel init of this WG's output slots")
        for i in range(4):
            A(f"v_mov_b32 v{G+i}, -1")
        A("s_lshl_b32 s33, s31, 5")
        A("s_add_u32 s33, s33, s32")
        A("s_lshl_b32 s34, s33, 11")
        A(f"s_add_u32 s34, s34, {WS_PO}")
        A(f"v_lshlrev_b32 v{t0}, 4, v1")
        A(f"buffer_store_dwordx4 v[{G}:{G+3}], v{t0}, s[44:47], s34 offen sc1")
        A(f"buffer_store_dwordx4 v[{G}:{G+3}], v{t0}, s[44:47], s34 offen offset:1024 sc1")
        A("s_lshl_b32 s34, s33, 5")
        A(f"s_add_u32 s34, s34, {WS_PML}")
        A("s_mov_b64 exec, 3")
        A(f"buffer_store_dwordx4 v[{G}:{G+3}], v{t0}, s[44:47], s34 offen sc1")
        A("s_mov_b64 exec, -1")
        nB = self.newlabel("hi_notB")
        dn = self.newlabel("hi_done")
        A(f"s_cmp_ge_u32 s2, {E0}")
        A(f"s_cbranch_scc1 {dn}")
        A(f"s_cmp_ge_u32 s2, {C0}")
        A(f"s_cbranch_scc1 {nB}")
        A("s_and_b32 s33, s2, 7")
        A("s_lshl_b32 s34, s33, 11")
        A("s_lshr_b32 s35, s2, 3")
        A("s_lshl_b32 s35, s35, 8")
        A("s_add_u32 s34, s34, s35")
        A(f"s_add_u32 s34, s34, {WS_HP}")
        A("s_mov_b64 exec, 0xffff")
        A(f"buffer_store_dwordx4 v[{G}:{G+3}], v{t0}, s[44:47], s34 offen sc1")
        A("s_mov_b64 exec, -1")
        A(f"s_branch {dn}")
        self.label(nB)
        A(f"s_sub_u32 s33, s2, {C0}")
        A("s_lshl_b32 s34, s33, 11")
        A(f"s_add_u32 s34, s34, {WS_OP}")
        A(f"buffer_store_dwordx4 v[{G}:{G+3}], v{t0}, s[44:47], s34 offen sc1")
        A(f"buffer_store_dwordx4 v[{G}:{G+3}], v{t0}, s[44:47], s34 offen offset:1024 sc1")
        self.label(dn)
        C("poll q granules for group ga")
        A("s_lshl_b32 s34, s31, 11")
        A(f"s_add_u32 s34, s34, {WS_Q}")
        A(f"v_lshlrev_b32 v{t1}, 5, v1")
        lp = self.newlabel("q_poll")
        ok = self.newlabel("q_ok")
        A(f"s_mov_b32 s68, {POLL_MAX}")
        A("s_nop 0")
        self.label(lp)
        A(f"buffer_load_dwordx4 v[{G}:{G+3}], v{t1}, s[44:47], s34 offen sc1")
        A(f"buffer_load_dwordx4 v[{G+4}:{G+7}], v{t1}, s[44:47], s34 offen offset:16 sc1")
        A("s_waitcnt vmcnt(0)")
        A(f"v_xor_b32 v{t2}, s30, v{G+1}")
        A(f"v_xor_b32 v{t3}, s30, v{G+3}")
        A(f"v_or_b32 v{t2}, v{t2}, v{t3}")
        A(f"v_xor_b32 v{t3}, s30, v{G+5}")
        A(f"v_or_b32 v{t2}, v{t2}, v{t3}")
        A(f"v_xor_b32 v{t3}, s30, v{G+7}")
        A(f"v_or_b32 v{t2}, v{t2}, v{t3}")
        A(f"v_cmp_ne_u32 vcc, 0, v{t2}")
        A("s_sub_u32 s68, s68, 1")
        A("s_cmp_eq_u32 s68, 0")
        A(f"s_cbranch_scc1 {ok}")
        A(f"s_cbranch_vccnz {lp}")
        self.label(ok)
        A(f"v_mov_b32 v{G+1}, v{G+2}")
        A(f"v_mov_b32 v{G+2}, v{G+4}")
        A(f"v_mov_b32 v{G+3}, v{G+6}")
        A(f"ds_write_b128 v{t0}, v[{G}:{G+3}] offset:{L_Q}")
        C("INIT counter (all sentinel stores are complete: vmcnt(0) above)")
        A(f"v_mov_b32 v{t2}, 1")
        A(f"v_mov_b32 v{t3}, 0")
        A("s_mov_b64 exec, 1")
        A(f"buffer_atomic_add v{t2}, v{t3}, s[48:51], 0 offen sc1")
        A("s_mov_b64 exec, -1")
        A("s_waitcnt lgkmcnt(0)")
        A("s_barrier")
        self.stamp(2, t1, t2, 1)
        A("s_branch L_end")


if __name__ == "__main__":
    import argparse
    ap = argparse.ArgumentParser()
    ap.add_argument("-o", default="cdna_kernels/" + KN + ".s")
    ap.add_argument("--nst", type=int, default=4)
    ap.add_argument("--throttle", type=int, default=2)
    ap.add_argument("--stamps", action="store_true")
    ap.add_argument("--noxcdmap", action="store_true")
    a = ap.parse_args()
    g = Gen(nst=a.nst, stamps=a.stamps, throttle=a.throttle, xcdmap=not a.noxcdmap)
    open(a.o, "w").write(g.gen())
    print("wrote", a.o)
```

```python
import sys, struct

KN = "sequential_preLN__gqa_block_cached__glu_gated_glu__decode"

def f32bits(x):
    return struct.unpack("<I", struct.pack("<f", x))[0]

WS_EPOCH = 0
WS_Q     = 4096
WS_PML   = 32768
WS_HP    = 49152
WS_PO    = 65536
WS_OP    = WS_PO + 524288
WS_STAMP = 1 << 20
WS_SIZE  = 2 << 20

L_Q  = 0
L_O  = 1024
L_M  = 9216
L_L  = 10240
L_W  = 11264
L_R  = 13312
L_G  = 17408
L_QP = 21504
L_FLAG = 21760
LDS_BYTES = 21824

NB, NC, NE_WG = 64, 56, 16
B0, C0, E0 = 0, 64, 120
POLL_MAX = 200000


class Gen:
    def __init__(self, nst=4, stamps=False, throttle=2, xcdmap=True, wearly=0, dry=True, npoll=3, pollgap=4, sent_early=False, bar0=True, initsleep=32, noq=0):
        self.L = []
        self.nst = nst
        self.stamps = stamps
        self.throttle = throttle
        self.xcdmap = xcdmap
        self.wearly = wearly
        self.dry = dry
        self.npoll = npoll
        self.pollgap = pollgap
        self.sent_early = sent_early
        self.bar0 = bar0
        self.initsleep = initsleep
        self.noq = noq
        self.lbl = 0

    def A(self, s):
        self.L.append("  " + s)

    def C(self, s):
        self.L.append("  ; " + s)

    def label(self, name):
        self.L.append(name + ":")

    def newlabel(self, p="L"):
        self.lbl += 1
        return f"{p}_{self.lbl}"

    def srd(self, d, base_lo, off_sgpr, size, off_imm=0):
        A = self.A
        if off_sgpr is not None:
            A(f"s_add_u32 s{d}, s{base_lo}, s{off_sgpr}")
            A(f"s_addc_u32 s{d+1}, s{base_lo+1}, 0")
            if off_imm:
                A(f"s_add_u32 s{d}, s{d}, {off_imm}")
                A(f"s_addc_u32 s{d+1}, s{d+1}, 0")
        elif off_imm:
            A(f"s_add_u32 s{d}, s{base_lo}, {off_imm}")
            A(f"s_addc_u32 s{d+1}, s{base_lo+1}, 0")
        else:
            A(f"s_mov_b32 s{d}, s{base_lo}")
            A(f"s_mov_b32 s{d+1}, s{base_lo+1}")
        if isinstance(size, str):
            A(f"s_mov_b32 s{d+2}, {size}")
        else:
            A(f"s_mov_b32 s{d+2}, {size}")
        A(f"s_mov_b32 s{d+3}, 0x00020000")

    def exec_all(self):
        self.A("s_mov_b64 exec, s[70:71]")

    def exec_mask(self, m):
        lo, hi = m & 0xffffffff, m >> 32
        self.A(f"s_and_b32 exec_lo, {hex(lo)}, s70")
        self.A(f"s_and_b32 exec_hi, {hex(hi)}, s71")

    def barrier(self):
        sk = self.newlabel("nobar")
        self.A("s_cmp_lg_u32 s72, 0")
        self.A(f"s_cbranch_scc1 {sk}")
        self.A("s_barrier")
        self.label(sk)

    def dpp(self, op, d, s0, s1, ctrl):
        self.A(f"{op}_dpp v{d}, v{s0}, v{s1} {ctrl} row_mask:0xf bank_mask:0xf")

    def row_allreduce(self, op, regs):
        for ctrl in ("quad_perm:[1,0,3,2]", "quad_perm:[2,3,0,1]", "row_half_mirror", "row_mirror"):
            if len(regs) < 3:
                self.A("s_nop 1")
            for r in regs:
                self.dpp(op, r, r, r, ctrl)

    def cross_rows_allreduce(self, op, r, t, do16=True, do32=True):
        A = self.A
        for sw, en in (("v_permlane32_swap_b32", do32), ("v_permlane16_swap_b32", do16)):
            if not en:
                continue
            A(f"v_mov_b32 v{t}, v{r}")
            A("s_nop 1")
            A(f"{sw} v{r}, v{t}")
            A("s_nop 0")
            A(f"{op} v{r}, v{r}, v{t}")

    def wave_allreduce(self, op, r, t):
        self.row_allreduce(op, [r])
        self.cross_rows_allreduce(op, r, t)

    def bf16_round1(self, d, s):
        self.A(f"v_cvt_pk_bf16_f32 v{d}, v{s}, v{s}")
        self.A(f"v_and_b32 v{d}, s60, v{d}")

    def unpack(self, lo, hi, p):
        self.A(f"v_lshlrev_b32 v{lo}, 16, v{p}")
        self.A(f"v_and_b32 v{hi}, s60, v{p}")

    def stamp(self, idx, vt0, vt1, lanereg):
        if not self.stamps:
            return
        A = self.A
        A("s_memrealtime s[98:99]")
        A("s_waitcnt lgkmcnt(0)")
        A(f"s_mul_i32 s100, s2, {5*64}")
        A("s_lshl_b32 s101, s28, 6")
        A("s_add_u32 s100, s100, s101")
        A(f"s_add_u32 s100, s100, {WS_STAMP + idx*4}")
        A(f"v_mov_b32 v{vt0}, s98")
        A(f"v_mov_b32 v{vt1}, s100")
        A(f"s_mov_b64 s[98:99], exec")
        A("s_and_b64 exec, s[70:71], 1")
        A(f"buffer_store_dword v{vt0}, v{vt1}, s[44:47], 0 offen")
        A("s_mov_b64 exec, s[98:99]")

    def layernorm(self, X, n, T, cnt_inv, Y=None, ny=None):
        A = self.A
        t0, t1, t2, t3 = T, T + 1, T + 2, T + 3
        A(f"v_add_f32 v{t0}, v{X}, v{X+1}")
        for i in range(2, n):
            A(f"v_add_f32 v{t0}, v{t0}, v{X+i}")
        self.wave_allreduce("v_add_f32", t0, t1)
        A(f"v_mul_f32 v{t0}, {cnt_inv}, v{t0}")
        A(f"v_sub_f32 v{t1}, v{X}, v{t0}")
        A(f"v_mul_f32 v{t2}, v{t1}, v{t1}")
        for i in range(1, n):
            A(f"v_sub_f32 v{t1}, v{X+i}, v{t0}")
            A(f"v_fmac_f32 v{t2}, v{t1}, v{t1}")
        self.wave_allreduce("v_add_f32", t2, t1)
        A(f"v_mul_f32 v{t2}, {cnt_inv}, v{t2}")
        self.bf16_round1(t0, t0)
        self.bf16_round1(t2, t2)
        A(f"v_add_f32 v{t2}, {hex(f32bits(1e-5))}, v{t2}")
        self.bf16_round1(t2, t2)
        A(f"v_sqrt_f32 v{t2}, v{t2}")
        A("s_nop 0")
        self.bf16_round1(t2, t2)
        A(f"v_rcp_f32 v{t3}, v{t2}")
        if Y is not None:
            X, n = Y, ny
        for i in range(n):
            A(f"v_sub_f32 v{X+i}, v{X+i}, v{t0}")
        for i in range(0, n, 2):
            A(f"v_cvt_pk_bf16_f32 v{t1}, v{X+i}, v{X+i+1}")
            self.unpack(X + i, X + i + 1, t1)
        for i in range(n):
            A(f"v_mul_f32 v{t1}, v{X+i}, v{t3}")
            A(f"v_fma_f32 v{X+i}, -v{t1}, v{t2}, v{X+i}")
            A(f"v_fma_f32 v{X+i}, v{X+i}, v{t3}, v{t1}")
        for i in range(0, n, 2):
            A(f"v_cvt_pk_bf16_f32 v{t1}, v{X+i}, v{X+i+1}")
            self.unpack(X + i, X + i + 1, t1)

    def gather_loop(self, loads, regs, vt, active_mask=None, name="G"):
        A = self.A
        lp = self.newlabel(name + "_poll")
        dn = self.newlabel(name + "_done")
        if active_mask is None:
            A("s_mov_b64 s[66:67], s[70:71]")
        else:
            A(f"s_and_b32 s66, {hex(active_mask & 0xffffffff)}, s70")
            A(f"s_and_b32 s67, {hex(active_mask >> 32)}, s71")
        A(f"s_mov_b32 s68, {POLL_MAX}")
        self.label(lp)
        A("s_mov_b64 exec, s[66:67]")
        loads()
        A("s_waitcnt vmcnt(0)")
        rs = list(regs)
        if len(rs) == 1:
            A(f"v_mov_b32 v{vt}, v{rs[0]}")
        elif len(rs) == 2:
            A(f"v_max_u32 v{vt}, v{rs[0]}, v{rs[1]}")
        else:
            A(f"v_max3_u32 v{vt}, v{rs[0]}, v{rs[1]}, v{rs[2]}")
            i = 3
            while i < len(rs):
                if i + 1 < len(rs):
                    A(f"v_max3_u32 v{vt}, v{vt}, v{rs[i]}, v{rs[i+1]}")
                    i += 2
                else:
                    A(f"v_max_u32 v{vt}, v{vt}, v{rs[i]}")
                    i += 1
        A(f"v_cmp_eq_u32 vcc, -1, v{vt}")
        A("s_sub_u32 s68, s68, 1")
        A("s_cmp_eq_u32 s68, 0")
        A(f"s_cbranch_scc1 {dn}")
        A("s_mov_b64 s[66:67], vcc")
        A(f"s_cbranch_vccz {dn}")
        A("s_sleep 1")
        A(f"s_branch {lp}")
        self.label(dn)
        self.exec_all()

    def gen(self):
        A, C = self.A, self.C
        NST = self.nst
        T = 32
        assert T % NST == 0
        self.L.append(f"; @launch grid=(256,1,1) block=(320,1,1) lds={LDS_BYTES}")
        self.L.append('.amdgcn_target "amdgcn-amd-amdhsa--gfx950"')
        self.L.append(".text")
        self.L.append(f".globl {KN}_kernel")
        self.L.append(".p2align 8")
        self.L.append(f".type {KN}_kernel,@function")
        self.label(f"{KN}_kernel")
        A("s_cmp_ge_u32 s2, 256")
        A("s_cbranch_scc1 L_end")
        A("s_load_dwordx16 s[4:19], s[0:1], 0")
        A("s_load_dwordx8 s[20:27], s[0:1], 64")
        A("v_lshrrev_b32 v2, 6, v0")
        A("v_and_b32 v1, 63, v0")
        A("s_mov_b32 s60, 0xffff0000")
        A("s_mov_b64 s[70:71], -1")
        A("s_mov_b32 s72, 0")
        A("v_readfirstlane_b32 s28, v2")
        A(f"s_mov_b32 s61, {hex(f32bits(128 ** -0.5))}")
        A(f"s_mov_b32 s62, {hex(f32bits(1.4426950408889634))}")
        A(f"s_mov_b32 s63, {hex(f32bits(-1.4426950408889634))}")
        if self.xcdmap:
            A("s_lshr_b32 s33, s2, 3")
            A("s_lshr_b32 s31, s33, 2")
            A("s_and_b32 s33, s33, 3")
            A("s_and_b32 s32, s2, 7")
            A("s_lshl_b32 s32, s32, 2")
            A("s_add_u32 s32, s32, s33")
        else:
            A("s_and_b32 s31, s2, 7")
            A("s_lshr_b32 s32, s2, 3")
        A("s_waitcnt lgkmcnt(0)")
        A("s_load_dword s29, s[26:27], 0")
        self.srd(44, 26, None, WS_SIZE)
        self.srd(48, 24, None, 256)
        self.stamp(0, 2, 3, 1)
        A("s_cmp_eq_u32 s28, 4")
        A("s_cbranch_scc1 L_end" if self.noq else "s_cbranch_scc1 L_helper")

        vKo, vVo = 2, 3
        vQ = 4
        vS = 20
        vO = 24
        vM, vL = 32, 33
        vMk0, vMk1 = 34, 35
        vT0, vT1 = 36, 37
        vX = 38
        vF, vNM = 42, 43
        RB = 44
        self.RB = RB
        def kreg(st, m): return RB + st * 32 + m * 4
        def vreg(st, m): return RB + st * 32 + 16 + m * 4
        C("K/V SRDs: base + ga*16MiB + sa*512KiB + wave*4KiB")
        A("s_lshl_b32 s33, s31, 24")
        A("s_lshl_b32 s34, s32, 19")
        A("s_add_u32 s33, s33, s34")
        A("s_lshl_b32 s34, s28, 12")
        A("s_add_u32 s33, s33, s34")
        rng = 524288 - 3 * 4096
        self.srd(36, 6, 33, rng)
        self.srd(40, 8, 33, rng)
        A(f"v_lshlrev_b32 v{vVo}, 4, v1")
        A(f"v_and_b32 v{vT0}, 3, v1")
        A(f"v_lshlrev_b32 v{vT0}, 2, v{vT0}")
        A(f"v_bfe_u32 v{vT1}, v1, 2, 2")
        A(f"v_add_u32 v{vT0}, v{vT0}, v{vT1}")
        A(f"v_lshlrev_b32 v{vT0}, 8, v{vT0}")
        A(f"v_lshrrev_b32 v{vT1}, 4, v1")
        A(f"v_lshl_add_u32 v{vKo}, v{vT1}, 4, v{vT0}")
        def loadK(st):
            for m in range(4):
                r = kreg(st, m)
                A(f"buffer_load_dwordx4 v[{r}:{r+3}], v{vKo}, s[36:39], s64 offen offset:{m*64} nt")
        def loadV(st):
            for m in range(4):
                r = vreg(st, m)
                A(f"buffer_load_dwordx4 v[{r}:{r+3}], v{vVo}, s[40:43], s64 offen offset:{m*1024} nt")
        A("s_mov_b32 s64, 0")
        if self.noq != 1 and self.noq != 3:
            self.qphase_issue(RB + 96)
        if self.bar0 and not self.noq:
            A("s_barrier")
        TH = self.throttle
        halves = []
        for st in range(NST):
            halves.append(("K", st)); halves.append(("V", st))
        def issue_half(hv):
            if hv[0] == "K":
                loadK(hv[1])
            else:
                loadV(hv[1])
                A("s_add_u32 s64, s64, 16384")
        assert TH <= 2 * (NST - 1)
        for hv in halves[:TH]:
            issue_half(hv)
        if self.noq != 1 and self.noq != 3:
            self.qphase_compute(RB + 96, 4 * TH)
        for hv in halves[TH:]:
            A(f"s_waitcnt vmcnt({4*(TH-1)})")
            issue_half(hv)
        C("masks: e''=l&3 ; X0: e''==0 -> lo, ==1 -> hi ; X1: ==2 -> lo, ==3 -> hi")
        A(f"v_and_b32 v{vT0}, 3, v1")
        A(f"v_mov_b32 v{vMk0}, 0")
        A(f"v_mov_b32 v{vMk1}, 0")
        A(f"v_mov_b32 v{vT1}, 0xffff")
        A(f"v_mov_b32 v{vF}, s60")
        A(f"v_cmp_eq_u32 vcc, 0, v{vT0}")
        A("s_nop 1")
        A(f"v_cndmask_b32 v{vMk0}, v{vMk0}, v{vT1}, vcc")
        A(f"v_cmp_eq_u32 vcc, 1, v{vT0}")
        A("s_nop 1")
        A(f"v_cndmask_b32 v{vMk0}, v{vMk0}, v{vF}, vcc")
        A(f"v_cmp_eq_u32 vcc, 2, v{vT0}")
        A("s_nop 1")
        A(f"v_cndmask_b32 v{vMk1}, v{vMk1}, v{vT1}, vcc")
        A(f"v_cmp_eq_u32 vcc, 3, v{vT0}")
        A("s_nop 1")
        A(f"v_cndmask_b32 v{vMk1}, v{vMk1}, v{vF}, vcc")
        for i in range(8):
            A(f"v_mov_b32 v{vO+i}, 0")
        A(f"v_mov_b32 v{vM}, 0xff800000")
        A(f"v_mov_b32 v{vL}, 0")
        C("Q operand address: h*256 + g*16 (+m*64)")
        A(f"v_bfe_u32 v{vT0}, v1, 2, 2")
        A(f"v_lshlrev_b32 v{vT0}, 8, v{vT0}")
        A(f"v_lshrrev_b32 v{vT1}, 4, v1")
        A(f"v_lshl_add_u32 v{vT0}, v{vT1}, 4, v{vT0}")
        self.stamp(13, vT1, vF, 1)
        if not self.noq:
            A("s_barrier")
        for m in range(4):
            A(f"ds_read_b128 v[{vQ+4*m}:{vQ+4*m+3}], v{vT0} offset:{L_Q + m*64}")
        A(f"s_mov_b32 s65, {T//NST}")
        self.stamp(1, vT1, vF, 1)
        A("s_waitcnt lgkmcnt(0)")
        self.label("L_loop")
        W = 8 * NST - 4
        for st in range(NST):
            C(f"---- tile stage {st}")
            if self.noq == 3:
                A(f"s_waitcnt vmcnt({W})")
                loadK(st)
                A(f"s_waitcnt vmcnt({W})")
                loadV(st)
                A("s_add_u32 s64, s64, 16384")
                continue
            A(f"s_waitcnt vmcnt({W})")
            for m in range(4):
                k = kreg(st, m)
                c = "0" if m == 0 else f"v[{vS}:{vS+3}]"
                A(f"v_mfma_f32_16x16x32_bf16 v[{vS}:{vS+3}], v[{k}:{k+3}], v[{vQ+4*m}:{vQ+4*m+3}], {c}")
            loadK(st)
            A("s_nop 4")
            A(f"v_cvt_pk_bf16_f32 v{vT0}, v{vS}, v{vS+1}")
            A(f"v_cvt_pk_bf16_f32 v{vT1}, v{vS+2}, v{vS+3}")
            self.unpack(vS, vS + 1, vT0)
            self.unpack(vS + 2, vS + 3, vT1)
            for r in range(4):
                A(f"v_mul_f32 v{vS+r}, s61, v{vS+r}")
            A(f"v_cvt_pk_bf16_f32 v{vT0}, v{vS}, v{vS+1}")
            A(f"v_cvt_pk_bf16_f32 v{vT1}, v{vS+2}, v{vS+3}")
            self.unpack(vS, vS + 1, vT0)
            self.unpack(vS + 2, vS + 3, vT1)
            A(f"v_max3_f32 v{vT0}, v{vS}, v{vS+1}, v{vS+2}")
            A(f"v_max3_f32 v{vT0}, v{vT0}, v{vS+3}, v{vM}")
            self.cross_rows_allreduce("v_max_f32", vT0, vT1)
            A(f"v_sub_f32 v{vF}, v{vM}, v{vT0}")
            A(f"v_mul_f32 v{vNM}, s63, v{vT0}")
            A(f"v_mul_f32 v{vF}, s62, v{vF}")
            A(f"v_mov_b32 v{vM}, v{vT0}")
            A(f"v_exp_f32 v{vF}, v{vF}")
            for r in range(4):
                A(f"v_fma_f32 v{vS+r}, v{vS+r}, s62, v{vNM}")
            for r in range(4):
                A(f"v_exp_f32 v{vS+r}, v{vS+r}")
            for i in range(8):
                A(f"v_mul_f32 v{vO+i}, v{vF}, v{vO+i}")
            A(f"v_add_f32 v{vT0}, v{vS}, v{vS+1}")
            A(f"v_add_f32 v{vT1}, v{vS+2}, v{vS+3}")
            A(f"v_add_f32 v{vT0}, v{vT0}, v{vT1}")
            A(f"v_fma_f32 v{vL}, v{vL}, v{vF}, v{vT0}")
            for r in range(4):
                A(f"v_cvt_pk_bf16_f32 v{vS+r}, v{vS+r}, v{vS+r}")
            A(f"v_and_b32 v{vX}, v{vMk0}, v{vS}")
            A(f"v_and_b32 v{vX+1}, v{vMk1}, v{vS}")
            A(f"s_waitcnt vmcnt({W})")
            for r in range(4):
                x = vX + 2 * (r & 1)
                if r < 3:
                    xn = vX + 2 * ((r + 1) & 1)
                    A(f"v_and_b32 v{xn}, v{vMk0}, v{vS+r+1}")
                    A(f"v_and_b32 v{xn+1}, v{vMk1}, v{vS+r+1}")
                v = vreg(st, r)
                A(f"v_mfma_f32_16x16x16_bf16 v[{vO}:{vO+3}], v[{v}:{v+1}], v[{x}:{x+1}], v[{vO}:{vO+3}]")
                A(f"v_mfma_f32_16x16x16_bf16 v[{vO+4}:{vO+7}], v[{v+2}:{v+3}], v[{x}:{x+1}], v[{vO+4}:{vO+7}]")
            loadV(st)
            A("s_add_u32 s64, s64, 16384")
        A("s_sub_u32 s65, s65, 1")
        A("s_cmp_lg_u32 s65, 0")
        A("s_cbranch_scc1 L_loop")
        self.stamp(2, vT1, vF, 1)
        A("s_waitcnt vmcnt(0)")
        if self.noq:
            A("s_branch L_end")

        self.label("L_tail")
        vI = vNM
        C("---- WG combine")
        self.cross_rows_allreduce("v_add_f32", vL, vT1)
        A("s_lshl_b32 s33, s28, 11")
        A(f"v_lshl_add_u32 v{vT0}, v1, 4, s33")
        A(f"ds_write_b128 v{vT0}, v[{vO}:{vO+3}] offset:{L_O}")
        A(f"ds_write_b128 v{vT0}, v[{vO+4}:{vO+7}] offset:{L_O+1024}")
        A("s_lshl_b32 s33, s28, 8")
        A(f"v_lshl_add_u32 v{vT0}, v1, 2, s33")
        A(f"ds_write_b32 v{vT0}, v{vM} offset:{L_M}")
        A(f"ds_write_b32 v{vT0}, v{vL} offset:{L_L}")
        A("s_waitcnt lgkmcnt(0)")
        self.barrier()
        self.stamp(11, vT1, vF, 1)
        A("s_cmp_ge_u32 s28, 2")
        A("s_cbranch_scc1 L_after_publish")
        m_, l_ = vQ, vQ + 4
        Ob = [vQ + 8, vQ + 12, vS, vO]
        A(f"v_lshlrev_b32 v{vT0}, 2, v1")
        for w in range(4):
            A(f"ds_read_b32 v{m_+w}, v{vT0} offset:{L_M + w*256}")
            A(f"ds_read_b32 v{l_+w}, v{vT0} offset:{L_L + w*256}")
        A("s_lshl_b32 s33, s28, 10")
        A(f"v_lshl_add_u32 v{vT0}, v1, 4, s33")
        for w in range(4):
            A(f"ds_read_b128 v[{Ob[w]}:{Ob[w]+3}], v{vT0} offset:{L_O + w*2048}")
        A("s_waitcnt lgkmcnt(4)")
        A(f"v_max3_f32 v{vM}, v{m_}, v{m_+1}, v{m_+2}")
        A(f"v_max_f32 v{vM}, v{vM}, v{m_+3}")
        for w in range(4):
            A(f"v_sub_f32 v{m_+w}, v{m_+w}, v{vM}")
        for w in range(4):
            A(f"v_mul_f32 v{m_+w}, s62, v{m_+w}")
        for w in range(4):
            A(f"v_exp_f32 v{m_+w}, v{m_+w}")
        A("s_nop 0")
        A(f"v_mul_f32 v{vL}, v{m_}, v{l_}")
        for w in range(1, 4):
            A(f"v_fmac_f32 v{vL}, v{m_+w}, v{l_+w}")
        A("s_waitcnt lgkmcnt(0)")
        acc = vO + 4
        for r in range(4):
            A(f"v_mul_f32 v{acc+r}, v{m_}, v{Ob[0]+r}")
        for w in range(1, 4):
            for r in range(4):
                A(f"v_fmac_f32 v{acc+r}, v{m_+w}, v{Ob[w]+r}")
        C("store O: PO + rec*2048 + h*512 + hf*256 + g'*64 + e''*16 ; rec = ga*32+sa")
        A("s_lshl_b32 s33, s31, 5")
        A("s_add_u32 s33, s33, s32")
        A("s_lshl_b32 s34, s33, 11")
        A("s_lshl_b32 s35, s28, 8")
        A("s_add_u32 s34, s34, s35")
        A(f"s_add_u32 s34, s34, {WS_PO}")
        A(f"v_bfe_u32 v{vT0}, v1, 2, 2")
        A(f"v_lshlrev_b32 v{vT0}, 9, v{vT0}")
        A(f"v_lshrrev_b32 v{vT1}, 4, v1")
        A(f"v_lshl_add_u32 v{vT0}, v{vT1}, 6, v{vT0}")
        A(f"v_and_b32 v{vT1}, 3, v1")
        A(f"v_lshl_add_u32 v{vT0}, v{vT1}, 4, v{vT0}")
        A(f"buffer_store_dwordx4 v[{acc}:{acc+3}], v{vT0}, s[44:47], s34 offen sc1")
        A("s_cmp_lg_u32 s28, 0")
        A("s_cbranch_scc1 L_after_publish")
        C("ML: lanes 0,4,8,12 -> PML + rec*32 + h*8")
        A("s_lshl_b32 s34, s33, 5")
        A(f"s_add_u32 s34, s34, {WS_PML}")
        A(f"v_lshlrev_b32 v{vT0}, 1, v1")
        self.exec_mask(0x1111)
        A(f"buffer_store_dwordx2 v[{vM}:{vL}], v{vT0}, s[44:47], s34 offen sc1")
        self.exec_all()
        self.label("L_after_publish")
        self.stamp(3, vT1, vF, 1)
        A(f"s_cmp_ge_u32 s2, {E0 + NE_WG}")
        A("s_cbranch_scc1 L_end")
        self.role_prefetch(RB)
        self.stamp(10, vT1, vF, 1)
        self.init_check(vI, vT0)
        self.stamp(12, vT1, vF, 1)
        A(f"s_cmp_lt_u32 s2, {C0}")
        A("s_cbranch_scc1 L_roleB")
        A(f"s_cmp_lt_u32 s2, {E0}")
        A("s_cbranch_scc1 L_roleC")
        A("s_branch L_roleE")

        self.roleB(RB)
        self.roleC(RB)
        self.roleE(RB)
        self.helper()

        self.label("L_end")
        A("s_endpgm")
        nv = RB + NST * 32
        nv = max(nv, 176)
        self.L.append('.section .rodata,"a"')
        self.L.append(".p2align 6")
        self.L.append(f".amdhsa_kernel {KN}_kernel")
        self.L.append(f"  .amdhsa_next_free_vgpr {nv}")
        self.L.append("  .amdhsa_next_free_sgpr 102")
        self.L.append(f"  .amdhsa_accum_offset {(nv+3)//4*4}")
        self.L.append("  .amdhsa_group_segment_fixed_size 0")
        self.L.append("  .amdhsa_kernarg_size 96")
        self.L.append("  .amdhsa_user_sgpr_count 2")
        self.L.append("  .amdhsa_user_sgpr_kernarg_segment_ptr 1")
        self.L.append("  .amdhsa_system_sgpr_workgroup_id_x 1")
        self.L.append("  .amdhsa_float_denorm_mode_32 3")
        self.L.append(".end_amdhsa_kernel")
        return "\n".join(self.L) + "\n"

    def init_check(self, vI, vt):
        A = self.A
        lp = self.newlabel("init_poll")
        ok = self.newlabel("init_ok")
        A("s_cmp_lg_u32 s72, 0")
        A(f"s_cbranch_scc1 {ok}")
        A(f"s_mov_b32 s68, {POLL_MAX * 8}")
        A(f"v_mov_b32 v{vt}, 0")
        self.label(lp)
        A(f"ds_read_b32 v{vI}, v{vt} offset:{L_FLAG}")
        A("s_waitcnt lgkmcnt(0)")
        A(f"v_readfirstlane_b32 s33, v{vI}")
        A("s_cmp_eq_u32 s33, 1")
        A(f"s_cbranch_scc1 {ok}")
        A("s_sub_u32 s68, s68, 1")
        A("s_cmp_eq_u32 s68, 0")
        A(f"s_cbranch_scc1 {ok}")
        A("s_sleep 2")
        A(f"s_branch {lp}")
        self.label(ok)

    def role_prefetch(self, RB):
        A, C = self.A, self.C
        t0, t1 = 36, 37
        done = self.newlabel("pf_done")
        notB = self.newlabel("pf_notB")
        A(f"s_cmp_ge_u32 s2, {E0}")
        A(f"s_cbranch_scc1 {done}")
        A(f"s_cmp_ge_u32 s2, {C0}")
        A(f"s_cbranch_scc1 {notB}")
        C("role B weights: wo rows (kg*4+w)*128 + d, cols cb*64")
        A("s_and_b32 s33, s2, 7")
        A("s_lshl_b32 s33, s33, 2")
        A("s_add_u32 s33, s33, s28")
        A("s_lshl_b32 s33, s33, 17")
        A("s_lshr_b32 s34, s2, 3")
        A("s_lshl_b32 s34, s34, 7")
        A("s_add_u32 s33, s33, s34")
        self.srd(52, 12, 33, 131072 - 896)
        A(f"v_bfe_u32 v{t0}, v1, 3, 2")
        A(f"v_lshlrev_b32 v{t0}, 15, v{t0}")
        A(f"v_lshrrev_b32 v{t1}, 5, v1")
        A(f"v_lshl_add_u32 v{t0}, v{t1}, 12, v{t0}")
        A(f"v_and_b32 v{t1}, 7, v1")
        A(f"v_lshl_add_u32 v{t0}, v{t1}, 4, v{t0}")
        for j in range(16):
            off = (8 * (j & 3) + (j >> 2)) * 1024
            r = RB + 4 * j
            so, io = off & ~4095, off & 4095
            A(f"s_mov_b32 s34, {so}")
            A(f"buffer_load_dwordx4 v[{r}:{r+3}], v{t0}, s[52:55], s34 offen offset:{io} nt")
        A(f"s_branch {done}")
        self.label(notB)
        C("role C weights")
        A(f"s_sub_u32 s33, s2, {C0}")
        A("s_lshl_b32 s34, s33, 6")
        A(f"s_mul_i32 s35, s28, {128*3584}")
        A("s_add_u32 s34, s34, s35")
        self.srd(52, 16, 34, 128 * 3584 - 3584 + 64)
        self.srd(56, 18, 34, 128 * 3584 - 3584 + 64)
        A(f"v_lshrrev_b32 v{t0}, 2, v1")
        A(f"v_mul_u32_u24 v{t0}, {8*3584}, v{t0}")
        A(f"v_and_b32 v{t1}, 3, v1")
        A(f"v_lshl_add_u32 v{t0}, v{t1}, 4, v{t0}")
        for j in range(8):
            A(f"s_mov_b32 s35, {j*3584}")
            r = RB + 4 * j
            A(f"buffer_load_dwordx4 v[{r}:{r+3}], v{t0}, s[52:55], s35 offen nt")
            r = RB + 32 + 4 * j
            A(f"buffer_load_dwordx4 v[{r}:{r+3}], v{t0}, s[56:59], s35 offen nt")
        C("down weights: rows f0+8g+j, cols w*128 + c16*8")
        A("s_lshl_b32 s34, s33, 15")
        A("s_lshl_b32 s35, s28, 8")
        A("s_add_u32 s34, s34, s35")
        self.srd(52, 20, 34, 32768 - 768)
        A(f"v_lshrrev_b32 v{t0}, 4, v1")
        A(f"v_lshlrev_b32 v{t0}, 13, v{t0}")
        A(f"v_and_b32 v{t1}, 15, v1")
        A(f"v_lshl_add_u32 v{t0}, v{t1}, 4, v{t0}")
        for j in range(8):
            off = j * 1024
            so, io = off & ~4095, off & 4095
            r = RB + 64 + 4 * j
            A(f"s_mov_b32 s35, {so}")
            A(f"buffer_load_dwordx4 v[{r}:{r+3}], v{t0}, s[52:55], s35 offen offset:{io} nt")
        C("x")
        self.srd(56, 4, None, 1024)
        A(f"v_lshlrev_b32 v{t0}, 4, v1")
        r = RB + 96
        A(f"buffer_load_dwordx4 v[{r}:{r+3}], v{t0}, s[56:59], 0 offen")
        self.label(done)

    def emasks(self, mk, t0, t1, t2):
        A = self.A
        A(f"v_and_b32 v{t0}, 1, v1")
        A(f"v_mov_b32 v{t1}, 0xffff")
        A(f"v_mov_b32 v{t2}, s60")
        A(f"v_cmp_eq_u32 vcc, 1, v{t0}")
        A("s_nop 1")
        A(f"v_cndmask_b32 v{t1}, v{t1}, v{t2}, vcc")
        A(f"v_bfe_u32 v{t0}, v1, 1, 2")
        for r in range(4):
            A(f"v_cmp_eq_u32 vcc, {r}, v{t0}")
            A("s_nop 1")
            A(f"v_cndmask_b32 v{mk+r}, 0, v{t1}, vcc")

    def roleB(self, RB):
        A, C = self.A, self.C
        self.label("L_roleB")
        Wt = RB
        G = RB + 64
        vML = 2
        vA0, vA1 = 4, 5
        t0, t1, t2 = 6, 7, 8
        mk = 12
        acc = 16
        X = 20
        D = 28
        wj = 32
        self.emasks(mk, t0, t1, t2)
        A("s_and_b32 s33, s2, 7")
        A("s_lshl_b32 s34, s33, 16")
        A("s_lshl_b32 s35, s28, 9")
        A("s_add_u32 s34, s34, s35")
        A(f"s_add_u32 s34, s34, {WS_PO}")
        A(f"v_lshrrev_b32 v{t0}, 5, v1")
        A(f"v_lshlrev_b32 v{t0}, 11, v{t0}")
        A(f"v_and_b32 v{t1}, 31, v1")
        A(f"v_lshl_add_u32 v{vA0}, v{t1}, 4, v{t0}")
        A(f"v_add_u32 v{vA0}, s34, v{vA0}")
        A("s_lshl_b32 s34, s33, 10")
        A("s_lshl_b32 s35, s28, 3")
        A("s_add_u32 s34, s34, s35")
        A(f"s_add_u32 s34, s34, {WS_PML}")
        A(f"v_and_b32 v{t0}, 15, v1")
        A(f"v_lshlrev_b32 v{t0}, 6, v{t0}")
        A(f"v_lshrrev_b32 v{t1}, 5, v1")
        A(f"v_lshl_add_u32 v{vA1}, v{t1}, 5, v{t0}")
        A(f"v_add_u32 v{vA1}, s34, v{vA1}")
        def loads():
            A(f"buffer_load_dwordx2 v[{vML}:{vML+1}], v{vA1}, s[44:47], 0 offen sc1")
            for j in range(16):
                A(f"s_mov_b32 s35, {j*4096}")
                A(f"buffer_load_dwordx4 v[{G+4*j}:{G+4*j+3}], v{vA0}, s[44:47], s35 offen sc1")
        self.gather_loop(loads, [vML, vML + 1] + list(range(G, G + 64)), t0, name="B")
        self.stamp(4, t0, t1, 1)
        A(f"v_mov_b32 v{t0}, v{vML}")
        self.row_allreduce("v_max_f32", [t0])
        self.cross_rows_allreduce("v_max_f32", t0, t1, do16=False)
        A(f"v_sub_f32 v{t0}, v{vML}, v{t0}")
        A(f"v_mul_f32 v{t0}, s62, v{t0}")
        A(f"v_exp_f32 v{t0}, v{t0}")
        A("s_nop 0")
        A(f"v_mul_f32 v{t2}, v{t0}, v{vML+1}")
        self.row_allreduce("v_add_f32", [t2])
        self.cross_rows_allreduce("v_add_f32", t2, t1, do16=False)
        A(f"v_rcp_f32 v{t2}, v{t2}")
        A("s_nop 0")
        A(f"v_mul_f32 v{t0}, v{t0}, v{t2}")
        for half in range(2):
            for jj in range(8):
                j = half * 8 + jj
                A(f"ds_swizzle_b32 v{wj+jj}, v{t0} offset:{j << 5}")
            for jj in range(8):
                j = half * 8 + jj
                A(f"s_waitcnt lgkmcnt({7-jj})")
                for r in range(4):
                    if j == 0:
                        A(f"v_mul_f32 v{acc+r}, v{wj+jj}, v{G+4*j+r}")
                    else:
                        A(f"v_fmac_f32 v{acc+r}, v{wj+jj}, v{G+4*j+r}")
        A("s_nop 1")
        A(f"v_permlane32_swap_b32 v{acc}, v{acc+1}")
        A(f"v_permlane32_swap_b32 v{acc+2}, v{acc+3}")
        A("s_nop 0")
        A(f"v_add_f32 v{acc}, v{acc}, v{acc+1}")
        A(f"v_add_f32 v{acc+2}, v{acc+2}, v{acc+3}")
        A(f"v_cvt_pk_bf16_f32 v{acc}, v{acc}, v{acc}")
        A(f"v_cvt_pk_bf16_f32 v{acc+2}, v{acc+2}, v{acc+2}")
        A("s_lshl_b32 s34, s28, 9")
        A(f"v_and_b32 v{t0}, 31, v1")
        A(f"v_lshlrev_b32 v{t0}, 4, v{t0}")
        A(f"v_lshrrev_b32 v{t1}, 5, v1")
        A(f"v_lshl_add_u32 v{t0}, v{t1}, 2, v{t0}")
        A(f"v_add_u32 v{t0}, s34, v{t0}")
        A(f"ds_write_b32 v{t0}, v{acc} offset:{L_W}")
        A(f"ds_write_b32 v{t0}, v{acc+2} offset:{L_W+8}")
        A(f"v_lshrrev_b32 v{t0}, 3, v1")
        A(f"v_lshlrev_b32 v{t0}, 6, v{t0}")
        A(f"v_add_u32 v{t0}, s34, v{t0}")
        A("s_waitcnt lgkmcnt(0)")
        for i in range(4):
            A(f"ds_read_b128 v[{G+4*i}:{G+4*i+3}], v{t0} offset:{L_W + 16*i}")
        A("s_waitcnt lgkmcnt(0)")
        for r in range(4):
            A(f"v_and_b32 v{X+r}, v{mk+r}, v{G}")
        for j in range(16):
            x = X + 4 * (j & 1)
            if j < 15:
                xn = X + 4 * ((j + 1) & 1)
                for r in range(4):
                    A(f"v_and_b32 v{xn+r}, v{mk+r}, v{G+j+1}")
            else:
                A("s_nop 1")
            c = "0" if j == 0 else f"v[{D}:{D+3}]"
            A(f"v_mfma_f32_16x16x32_bf16 v[{D}:{D+3}], v[{Wt+4*j}:{Wt+4*j+3}], v[{x}:{x+3}], {c}")
        A("s_lshl_b32 s34, s28, 9")
        A(f"v_lshrrev_b32 v{t0}, 5, v1")
        A(f"v_lshlrev_b32 v{t0}, 8, v{t0}")
        A(f"v_bfe_u32 v{t1}, v1, 4, 1")
        A(f"v_lshl_add_u32 v{t0}, v{t1}, 7, v{t0}")
        A(f"v_and_b32 v{t1}, 7, v1")
        A(f"v_lshl_add_u32 v{t0}, v{t1}, 2, v{t0}")
        A(f"v_add_u32 v{t0}, s34, v{t0}")
        self.exec_mask((0xff00ff00 << 32) | 0x00ff00ff)
        A("s_nop 1")
        for r in range(4):
            A(f"ds_write_b32 v{t0}, v{D+r} offset:{L_R + 32*r}")
        self.exec_all()
        A("s_waitcnt lgkmcnt(0)")
        self.barrier()
        A("s_cmp_lg_u32 s28, 0")
        A("s_cbranch_scc1 L_end")
        A(f"v_lshlrev_b32 v{t0}, 2, v1")
        for i in range(8):
            A(f"ds_read_b32 v{wj+i}, v{t0} offset:{L_R + 256*i}")
        A("s_lshl_b32 s34, s33, 11")
        A("s_lshr_b32 s35, s2, 3")
        A("s_lshl_b32 s35, s35, 8")
        A("s_add_u32 s34, s34, s35")
        A(f"s_add_u32 s34, s34, {WS_HP}")
        A("s_waitcnt lgkmcnt(0)")
        for i in range(4):
            A(f"v_add_f32 v{wj+2*i}, v{wj+2*i}, v{wj+2*i+1}")
        A(f"v_add_f32 v{wj}, v{wj}, v{wj+2}")
        A(f"v_add_f32 v{wj+4}, v{wj+4}, v{wj+6}")
        A(f"v_add_f32 v{wj}, v{wj}, v{wj+4}")
        A(f"buffer_store_dword v{wj}, v{t0}, s[44:47], s34 offen sc1")
        self.stamp(5, t1, t2, 1)
        A("s_branch L_end")

    def roleC(self, RB):
        A, C = self.A, self.C
        self.label("L_roleC")
        Wg, Wu, Wd, Xr = RB, RB + 32, RB + 64, RB + 96
        G = RB + 100
        H = RB + 116
        vA0 = 2
        t0, t1, t2, t3 = 4, 5, 6, 7
        sel = 8
        mk = 12
        P = 16
        X = 20
        D = 28
        self.emasks(mk, t0, t1, t2)
        A(f"v_and_b32 v{t0}, 3, v1")
        vals = {0: (0x0c0c0100, 0x0c0c0302), 1: (0x01000c0c, 0x03020c0c)}
        for i in range(4):
            A(f"v_mov_b32 v{sel+i}, 0x0c0c0c0c")
        for e in range(4):
            A(f"v_cmp_eq_u32 vcc, {e}, v{t0}")
            base = sel + (0 if e < 2 else 2)
            A(f"v_mov_b32 v{t1}, {hex(vals[e & 1][0])}")
            A(f"v_mov_b32 v{t2}, {hex(vals[e & 1][1])}")
            A(f"v_cndmask_b32 v{base}, v{base}, v{t1}, vcc")
            A(f"v_cndmask_b32 v{base+1}, v{base+1}, v{t2}, vcc")
        A("s_and_b32 s33, s28, 1")
        A("s_lshl_b32 s33, s33, 10")
        A("s_lshr_b32 s34, s28, 1")
        A("s_lshl_b32 s35, s34, 13")
        A("s_add_u32 s35, s35, s33")
        A(f"s_add_u32 s35, s35, {WS_HP}")
        A(f"v_lshl_add_u32 v{vA0}, v1, 4, s35")
        def loads():
            for k in range(4):
                A(f"s_mov_b32 s35, {k*2048}")
                A(f"buffer_load_dwordx4 v[{G+4*k}:{G+4*k+3}], v{vA0}, s[44:47], s35 offen sc1")
        self.gather_loop(loads, list(range(G, G + 16)), t0, name="C")
        self.stamp(4, t0, t1, 1)
        for r in range(4):
            A(f"v_add_f32 v{G+r}, v{G+r}, v{G+4+r}")
            A(f"v_add_f32 v{G+8+r}, v{G+8+r}, v{G+12+r}")
        for r in range(4):
            A(f"v_add_f32 v{G+r}, v{G+r}, v{G+8+r}")
        A("s_lshl_b32 s34, s34, 11")
        A("s_add_u32 s34, s34, s33")
        A(f"v_lshl_add_u32 v{t0}, v1, 4, s34")
        A(f"ds_write_b128 v{t0}, v[{G}:{G+3}] offset:{L_R}")
        A("s_waitcnt lgkmcnt(0)")
        self.barrier()
        self.stamp(6, t0, t1, 1)
        A(f"v_lshlrev_b32 v{t0}, 5, v1")
        A(f"ds_read_b128 v[{G}:{G+3}], v{t0} offset:{L_R}")
        A(f"ds_read_b128 v[{G+4}:{G+7}], v{t0} offset:{L_R+16}")
        A(f"ds_read_b128 v[{G+8}:{G+11}], v{t0} offset:{L_R+2048}")
        A(f"ds_read_b128 v[{G+12}:{G+15}], v{t0} offset:{L_R+2048+16}")
        for i in range(4):
            self.unpack(H + 2 * i, H + 2 * i + 1, Xr + i)
        A("s_waitcnt lgkmcnt(0)")
        for i in range(8):
            A(f"v_add_f32 v{G+i}, v{G+i}, v{G+8+i}")
        for i in range(0, 8, 2):
            A(f"v_cvt_pk_bf16_f32 v{t0}, v{G+i}, v{G+i+1}")
            self.unpack(G + i, G + i + 1, t0)
        for i in range(8):
            A(f"v_add_f32 v{H+i}, v{H+i}, v{G+i}")
        for i in range(0, 8, 2):
            A(f"v_cvt_pk_bf16_f32 v{t0}, v{H+i}, v{H+i+1}")
            self.unpack(H + i, H + i + 1, t0)
        self.layernorm(H, 8, t0, hex(f32bits(1.0 / 512)))
        self.stamp(7, t0, t1, 1)
        for i in range(4):
            A(f"v_cvt_pk_bf16_f32 v{G+i}, v{H+2*i}, v{H+2*i+1}")
        A("s_lshl_b32 s34, s28, 6")
        A(f"v_lshrrev_b32 v{t0}, 2, v1")
        A(f"v_lshl_add_u32 v{t0}, v{t0}, 2, s34")
        for i in range(4):
            A(f"ds_bpermute_b32 v{P+i}, v{t0}, v{G+i}")
        A("s_waitcnt lgkmcnt(0)")
        def mkx(j):
            x = X + 2 * (j & 1)
            A(f"v_perm_b32 v{x}, v{P+(j>>1)}, v{P+(j>>1)}, v{sel+(j&1)}")
            A(f"v_perm_b32 v{x+1}, v{P+(j>>1)}, v{P+(j>>1)}, v{sel+2+(j&1)}")
        mkx(0)
        for j in range(8):
            x = X + 2 * (j & 1)
            if j < 7:
                mkx(j + 1)
            else:
                A("s_nop 1")
            for mat, Wb in ((0, Wg), (1, Wu)):
                for hf in range(2):
                    d = D + (mat * 2 + hf) * 4
                    c = "0" if j == 0 else f"v[{d}:{d+3}]"
                    a = Wb + 4 * j + 2 * hf
                    A(f"v_mfma_f32_16x16x16_bf16 v[{d}:{d+3}], v[{a}:{a+1}], v[{x}:{x+1}], {c}")
        A("s_lshl_b32 s34, s28, 4")
        A(f"v_and_b32 v{t0}, 3, v1")
        A(f"v_lshlrev_b32 v{t0}, 6, v{t0}")
        A(f"v_lshrrev_b32 v{t1}, 4, v1")
        A(f"v_lshl_add_u32 v{t0}, v{t1}, 2, v{t0}")
        A(f"v_add_u32 v{t0}, s34, v{t0}")
        self.exec_mask((0xf0000f00 << 32) | 0x00f0000f)
        A("s_nop 3")
        for mat in range(2):
            for hf in range(2):
                for r in range(4):
                    off = L_G + (mat * 32 + 8 * r + 4 * hf) * 64
                    A(f"ds_write_b32 v{t0}, v{D+(mat*2+hf)*4+r} offset:{off}")
        self.exec_all()
        A("s_waitcnt lgkmcnt(0)")
        self.barrier()
        self.stamp(8, t0, t1, 1)
        A(f"v_lshlrev_b32 v{t0}, 6, v1")
        for i in range(4):
            A(f"ds_read_b128 v[{G+4*i}:{G+4*i+3}], v{t0} offset:{L_G + 16*i}")
        A("s_waitcnt lgkmcnt(0)")
        n = 16
        while n > 1:
            n //= 2
            for i in range(n):
                A(f"v_add_f32 v{G+i}, v{G+i}, v{G+n+i}")
        self.bf16_round1(G, G)
        A(f"v_mov_b32 v{t1}, v{G}")
        A("s_nop 1")
        A(f"v_permlane32_swap_b32 v{G}, v{t1}")
        A("s_nop 0")
        A(f"v_mul_f32 v{t0}, s63, v{G}")
        A(f"v_exp_f32 v{t0}, v{t0}")
        A("s_nop 0")
        A(f"v_add_f32 v{t0}, 1.0, v{t0}")
        A(f"v_rcp_f32 v{t2}, v{t0}")
        A("s_nop 0")
        self.bf16_round1(t2, t2)
        A(f"v_mul_f32 v{t2}, v{t2}, v{t1}")
        A(f"v_cvt_pk_bf16_f32 v{t2}, v{t2}, v{t2}")
        A(f"v_lshrrev_b32 v{t0}, 4, v1")
        A(f"v_lshlrev_b32 v{t0}, 5, v{t0}")
        for j in range(8):
            A(f"ds_bpermute_b32 v{G+j}, v{t0}, v{t2} offset:{4*j}")
        A("s_waitcnt lgkmcnt(0)")
        for r in range(4):
            A(f"v_and_b32 v{X+r}, v{mk+r}, v{G}")
        for j in range(8):
            x = X + 4 * (j & 1)
            if j < 7:
                xn = X + 4 * ((j + 1) & 1)
                for r in range(4):
                    A(f"v_and_b32 v{xn+r}, v{mk+r}, v{G+j+1}")
            else:
                A("s_nop 1")
            c = "0" if j == 0 else f"v[{D}:{D+3}]"
            A(f"v_mfma_f32_16x16x32_bf16 v[{D}:{D+3}], v[{Wd+4*j}:{Wd+4*j+3}], v[{x}:{x+3}], {c}")
        A(f"s_sub_u32 s33, s2, {C0}")
        A("s_lshl_b32 s33, s33, 11")
        A("s_lshl_b32 s34, s28, 9")
        A("s_add_u32 s33, s33, s34")
        A(f"s_add_u32 s33, s33, {WS_OP}")
        A(f"v_lshrrev_b32 v{t0}, 4, v1")
        A(f"v_lshlrev_b32 v{t0}, 7, v{t0}")
        A(f"v_and_b32 v{t1}, 7, v1")
        A(f"v_lshl_add_u32 v{t0}, v{t1}, 4, v{t0}")
        self.exec_mask((0x00ff00ff << 32) | 0x00ff00ff)
        A("s_nop 1")
        A(f"buffer_store_dwordx4 v[{D}:{D+3}], v{t0}, s[44:47], s33 offen sc1")
        self.exec_all()
        self.stamp(5, t1, t2, 1)
        A("s_branch L_end")

    def roleE(self, RB):
        A, C = self.A, self.C
        self.label("L_roleE")
        a = RB
        hp = RB + 8
        xr = RB + 10
        vA0, vA1, vA2 = 2, 3, 4
        t0, t1, t2 = 6, 7, 8
        A(f"s_sub_u32 s33, s2, {E0}")
        A("s_lshl_b32 s33, s33, 2")
        A("s_add_u32 s33, s33, s28")
        A("s_lshr_b32 s34, s33, 2")
        A("s_lshl_b32 s34, s34, 5")
        A("s_and_b32 s35, s33, 3")
        A("s_lshl_b32 s35, s35, 1")
        A("s_add_u32 s34, s34, s35")
        A(f"v_lshrrev_b32 v{t0}, 4, v1")
        A(f"v_lshlrev_b32 v{t0}, 3, v{t0}")
        A(f"v_add_u32 v{t0}, s34, v{t0}")
        A(f"v_lshlrev_b32 v{vA2}, 1, v{t0}")
        self.srd(56, 4, None, 1024)
        A(f"buffer_load_dword v{xr}, v{vA2}, s[56:59], 0 offen")
        A(f"v_and_b32 v{t1}, 7, v1")
        A(f"v_lshlrev_b32 v{t1}, 11, v{t1}")
        A(f"v_lshl_add_u32 v{vA1}, v{t0}, 2, v{t1}")
        A(f"v_add_u32 v{vA1}, {WS_HP}, v{vA1}")
        def loads_hp():
            A(f"buffer_load_dwordx2 v[{hp}:{hp+1}], v{vA1}, s[44:47], 0 offen sc1")
        self.gather_loop(loads_hp, [hp, hp + 1], t0, name="EH")
        for ctrl in ("quad_perm:[1,0,3,2]", "quad_perm:[2,3,0,1]", "row_half_mirror"):
            A("s_nop 1")
            self.dpp("v_add_f32", hp, hp, hp, ctrl)
            self.dpp("v_add_f32", hp + 1, hp + 1, hp + 1, ctrl)
        A(f"v_cvt_pk_bf16_f32 v{t0}, v{hp}, v{hp+1}")
        self.unpack(hp, hp + 1, t0)
        self.unpack(t0, t1, xr)
        A(f"v_add_f32 v{hp}, v{hp}, v{t0}")
        A(f"v_add_f32 v{hp+1}, v{hp+1}, v{t1}")
        A(f"v_cvt_pk_bf16_f32 v{t0}, v{hp}, v{hp+1}")
        self.unpack(hp, hp + 1, t0)
        A("s_lshl_b32 s35, s33, 5")
        A(f"s_add_u32 s35, s35, {WS_OP}")
        A(f"v_lshlrev_b32 v{vA0}, 11, v1")
        A(f"v_add_u32 v{vA0}, s35, v{vA0}")
        for i in range(8):
            A(f"v_mov_b32 v{a+i}, 0")
        def loads_op():
            A(f"buffer_load_dwordx4 v[{a}:{a+3}], v{vA0}, s[44:47], 0 offen sc1")
            A(f"buffer_load_dwordx4 v[{a+4}:{a+7}], v{vA0}, s[44:47], 0 offen offset:16 sc1")
        self.gather_loop(loads_op, list(range(a, a + 8)), t0, active_mask=(1 << NC) - 1, name="EO")
        self.stamp(4, t0, t1, 1)
        A("s_nop 1")
        for e in range(2):
            for r in range(2):
                A(f"v_permlane32_swap_b32 v{a+4*e+r}, v{a+4*e+r+2}")
        A("s_nop 0")
        for e in range(2):
            for r in range(2):
                A(f"v_add_f32 v{a+4*e+r}, v{a+4*e+r}, v{a+4*e+r+2}")
        A("s_nop 1")
        for e in range(2):
            A(f"v_permlane16_swap_b32 v{a+4*e}, v{a+4*e+1}")
        A("s_nop 0")
        for e in range(2):
            A(f"v_add_f32 v{a+4*e}, v{a+4*e}, v{a+4*e+1}")
        self.row_allreduce("v_add_f32", [a, a + 4])
        A(f"v_cvt_pk_bf16_f32 v{t0}, v{a}, v{a+4}")
        self.unpack(a, a + 4, t0)
        A(f"v_add_f32 v{a}, v{a}, v{hp}")
        A(f"v_add_f32 v{a+4}, v{a+4}, v{hp+1}")
        A(f"v_cvt_pk_bf16_f32 v{t0}, v{a}, v{a+4}")
        self.srd(52, 22, None, 1024)
        self.exec_mask((0x00010001 << 32) | 0x00010001)
        A(f"buffer_store_dword v{t0}, v{vA2}, s[52:55], 0 offen")
        self.exec_all()
        self.stamp(5, t1, t2, 1)
        A("s_cmp_lg_u32 s33, 0")
        A("s_cbranch_scc1 L_end")
        C("epoch update")
        A("s_waitcnt lgkmcnt(0)")
        A("s_add_u32 s29, s29, 1")
        A(f"v_mov_b32 v{t0}, s29")
        A(f"v_mov_b32 v{t1}, {WS_EPOCH}")
        self.exec_mask(1)
        A(f"buffer_store_dword v{t0}, v{t1}, s[44:47], 0 offen")
        A("s_branch L_end")

    def qphase_issue(self, R):
        A = self.A
        t0, t1 = 36, 37
        W, XS, XO = R, R + 16, R + 20
        self.srd(56, 4, None, 1024)
        A(f"v_lshlrev_b32 v{t0}, 4, v1")
        A(f"buffer_load_dwordx4 v[{XS}:{XS+3}], v{t0}, s[56:59], 0 offen")
        A(f"v_lshrrev_b32 v{t0}, 1, v1")
        A("s_lshl_b32 s35, s28, 3")
        A(f"v_lshl_add_u32 v{t1}, v{t0}, 5, s35")
        A(f"buffer_load_dwordx2 v[{XO}:{XO+1}], v{t1}, s[56:59], 0 offen")
        A("s_and_b32 s33, s2, 7")
        A("s_lshl_b32 s33, s33, 5")
        A("s_lshr_b32 s34, s2, 3")
        A("s_add_u32 s33, s33, s34")
        A("s_lshl_b32 s34, s33, 5")
        A("s_lshl_b32 s35, s28, 15")
        A("s_add_u32 s34, s34, s35")
        self.srd(52, 10, 34, 4194304 - 13 * 8192 + 32)
        A(f"v_lshlrev_b32 v{t0}, 17, v{t0}")
        A(f"v_and_b32 v{t1}, 1, v1")
        A(f"v_lshl_add_u32 v{t0}, v{t1}, 4, v{t0}")
        for j in range(4):
            A(f"s_mov_b32 s35, {j*8192}")
            A(f"buffer_load_dwordx4 v[{W+4*j}:{W+4*j+3}], v{t0}, s[52:55], s35 offen nt")

    def qphase_compute(self, R, younger):
        A = self.A
        W, XS, XO = R, R + 16, R + 20
        XF = 4
        XN = 12
        acc = 16
        t0, t1, t2, t3 = 24, 25, 26, 27
        u0, u1 = 28, 29
        A(f"s_waitcnt vmcnt({younger + 4})")
        self.stamp(7, 30, 31, 1)
        for i in range(4):
            self.unpack(XF + 2 * i, XF + 2 * i + 1, XS + i)
        for i in range(2):
            self.unpack(XN + 2 * i, XN + 2 * i + 1, XO + i)
        self.layernorm(XF, 8, t0, hex(f32bits(1.0 / 512)), Y=XN, ny=4)
        self.stamp(8, 30, 31, 1)
        for j in range(4):
            A(f"s_waitcnt vmcnt({younger + 3 - j})")
            for i in range(4):
                self.unpack(u0, u1, W + 4 * j + i)
                if j == 0:
                    A(f"v_mul_f32 v{acc+2*i}, v{XN+j}, v{u0}")
                    A(f"v_mul_f32 v{acc+2*i+1}, v{XN+j}, v{u1}")
                else:
                    A(f"v_fmac_f32 v{acc+2*i}, v{XN+j}, v{u0}")
                    A(f"v_fmac_f32 v{acc+2*i+1}, v{XN+j}, v{u1}")
        A("s_nop 1")
        for i in range(4):
            A(f"v_permlane32_swap_b32 v{acc+i}, v{acc+i+4}")
        A("s_nop 0")
        for i in range(4):
            A(f"v_add_f32 v{acc+i}, v{acc+i}, v{acc+i+4}")
        A("s_nop 1")
        for i in range(2):
            A(f"v_permlane16_swap_b32 v{acc+i}, v{acc+i+2}")
        A("s_nop 0")
        for i in range(2):
            A(f"v_add_f32 v{acc+i}, v{acc+i}, v{acc+i+2}")
        for ctrl in ("quad_perm:[2,3,0,1]", "row_ror:4", "row_ror:8"):
            A("s_nop 1")
            self.dpp("v_add_f32", acc, acc, acc, ctrl)
            self.dpp("v_add_f32", acc + 1, acc + 1, acc + 1, ctrl)
        A("s_lshl_b32 s35, s28, 6")
        A(f"v_and_b32 v{t0}, 1, v1")
        A(f"v_lshlrev_b32 v{t0}, 5, v{t0}")
        A(f"v_lshrrev_b32 v{t1}, 4, v1")
        A(f"v_lshl_add_u32 v{t0}, v{t1}, 3, v{t0}")
        A(f"v_add_u32 v{t0}, s35, v{t0}")
        A("s_mov_b32 exec_lo, 0x00030003")
        A("s_mov_b32 exec_hi, 0x00030003")
        A(f"ds_write_b64 v{t0}, v[{acc}:{acc+1}] offset:{L_QP}")
        A("s_mov_b64 exec, -1")
        A("s_waitcnt lgkmcnt(0)")
        A("s_barrier")
        self.stamp(9, 30, 31, 1)

    def sentinel_init(self, G, t0):
        A, C = self.A, self.C
        C("sentinel init of this WG's output slots")
        for i in range(4):
            A(f"v_mov_b32 v{G+i}, -1")
        A("s_lshl_b32 s33, s31, 5")
        A("s_add_u32 s33, s33, s32")
        A("s_lshl_b32 s34, s33, 11")
        A(f"s_add_u32 s34, s34, {WS_PO}")
        A(f"buffer_store_dwordx4 v[{G}:{G+3}], v{t0}, s[44:47], s34 offen sc1")
        A(f"buffer_store_dwordx4 v[{G}:{G+3}], v{t0}, s[44:47], s34 offen offset:1024 sc1")
        A("s_lshl_b32 s34, s33, 5")
        A(f"s_add_u32 s34, s34, {WS_PML}")
        A("s_mov_b64 exec, 3")
        A(f"buffer_store_dwordx4 v[{G}:{G+3}], v{t0}, s[44:47], s34 offen sc1")
        A("s_mov_b64 exec, -1")
        nB = self.newlabel("hi_notB")
        dn = self.newlabel("hi_done")
        A(f"s_cmp_ge_u32 s2, {E0}")
        A(f"s_cbranch_scc1 {dn}")
        A(f"s_cmp_ge_u32 s2, {C0}")
        A(f"s_cbranch_scc1 {nB}")
        A("s_and_b32 s33, s2, 7")
        A("s_lshl_b32 s34, s33, 11")
        A("s_lshr_b32 s35, s2, 3")
        A("s_lshl_b32 s35, s35, 8")
        A("s_add_u32 s34, s34, s35")
        A(f"s_add_u32 s34, s34, {WS_HP}")
        A("s_mov_b64 exec, 0xffff")
        A(f"buffer_store_dwordx4 v[{G}:{G+3}], v{t0}, s[44:47], s34 offen sc1")
        A("s_mov_b64 exec, -1")
        A(f"s_branch {dn}")
        self.label(nB)
        A(f"s_sub_u32 s33, s2, {C0}")
        A("s_lshl_b32 s34, s33, 11")
        A(f"s_add_u32 s34, s34, {WS_OP}")
        A(f"buffer_store_dwordx4 v[{G}:{G+3}], v{t0}, s[44:47], s34 offen sc1")
        A(f"buffer_store_dwordx4 v[{G}:{G+3}], v{t0}, s[44:47], s34 offen offset:1024 sc1")
        self.label(dn)

    def helper(self):
        A, C = self.A, self.C
        self.label("L_helper")
        A("s_setprio 3")
        t0, t1, t2, t3 = 2, 3, 4, 5
        P = 8
        NP = self.npoll
        G = 16
        A("s_and_b32 s33, s2, 7")
        A("s_lshl_b32 s33, s33, 5")
        A("s_lshr_b32 s34, s2, 3")
        A("s_add_u32 s33, s33, s34")
        A("s_lshl_b32 s33, s33, 6")
        A(f"s_add_u32 s33, s33, {WS_Q}")
        A("s_lshl_b32 s73, s31, 11")
        A(f"s_add_u32 s73, s73, {WS_Q}")
        A(f"v_lshlrev_b32 v{t0}, 4, v1")
        A(f"v_lshlrev_b32 v{t1}, 5, v1")
        A(f"v_lshlrev_b32 v{t2}, 3, v1")
        A(f"v_mov_b32 v{t3}, 0")
        A(f"ds_write_b32 v{t3}, v{t3} offset:{L_FLAG}")
        if self.bar0:
            A("s_barrier")
        def do_init():
            A("s_mov_b32 s74, s33")
            self.sentinel_init(P + 4, t0)
            A("s_mov_b32 s33, s74")
            A(f"v_mov_b32 v{t3}, 0")
            A(f"v_mov_b32 v{P+3}, 1")
            A("s_waitcnt vmcnt(0)")
            A("s_mov_b64 exec, 1")
            A(f"buffer_atomic_add v{P+3}, v{t3}, s[48:51], 0 offen sc1")
            A("s_mov_b64 exec, -1")
        if self.sent_early:
            do_init()
        A("s_waitcnt lgkmcnt(0)")
        A("s_mul_i32 s30, s29, 0x9e3779b1")
        A("s_add_u32 s30, s30, 0x7f4a7c15")
        A("s_mov_b64 exec, 0xff")
        A("s_barrier")
        for w in range(4):
            A(f"ds_read_b64 v[{P+2*w}:{P+2*w+1}], v{t2} offset:{L_QP + 64*w}")
        A("s_waitcnt lgkmcnt(0)")
        for i in range(2):
            A(f"v_add_f32 v{P+i}, v{P+i}, v{P+2+i}")
            A(f"v_add_f32 v{P+4+i}, v{P+4+i}, v{P+6+i}")
        for i in range(2):
            A(f"v_add_f32 v{P+i}, v{P+i}, v{P+4+i}")
        A(f"v_cvt_pk_bf16_f32 v{P}, v{P}, v{P+1}")
        A(f"v_mov_b32 v{P+1}, s30")
        A(f"buffer_store_dwordx2 v[{P}:{P+1}], v{t2}, s[44:47], s33 offen sc1")
        A("s_mov_b64 exec, -1")
        self.stamp(1, 60, 61, 1)
        C("poll q granules for group ga")
        lp = self.newlabel("q_poll")
        oks = [self.newlabel(f"q_ok{k}") for k in range(NP)]
        fin = self.newlabel("q_fin")
        def poll(k):
            g = G + 8 * k
            A(f"buffer_load_dwordx4 v[{g}:{g+3}], v{t1}, s[44:47], s73 offen sc1")
            A(f"buffer_load_dwordx4 v[{g+4}:{g+7}], v{t1}, s[44:47], s73 offen offset:16 sc1")
        A(f"s_mov_b32 s68, {POLL_MAX}")
        for k in range(NP):
            poll(k)
            if k < NP - 1:
                A(f"s_sleep {self.pollgap}")
        self.label(lp)
        for k in range(NP):
            g = G + 8 * k
            A(f"s_waitcnt vmcnt({2*(NP-1)})")
            A(f"v_xor_b32 v{t2}, s30, v{g+1}")
            A(f"v_xor_b32 v{t3}, s30, v{g+3}")
            A(f"v_or_b32 v{t2}, v{t2}, v{t3}")
            A(f"v_xor_b32 v{t3}, s30, v{g+5}")
            A(f"v_or_b32 v{t2}, v{t2}, v{t3}")
            A(f"v_xor_b32 v{t3}, s30, v{g+7}")
            A(f"v_or_b32 v{t2}, v{t2}, v{t3}")
            A(f"v_cmp_ne_u32 vcc, 0, v{t2}")
            A("s_nop 0")
            A(f"s_cbranch_vccz {oks[k]}")
            poll(k)
        A("s_sub_u32 s68, s68, 1")
        A("s_cmp_lg_u32 s68, 0")
        A(f"s_cbranch_scc1 {lp}")
        for k in range(NP):
            g = G + 8 * k
            self.label(oks[k])
            A(f"v_mov_b32 v{P}, v{g}")
            A(f"v_mov_b32 v{P+1}, v{g+2}")
            A(f"v_mov_b32 v{P+2}, v{g+4}")
            A(f"v_mov_b32 v{P+3}, v{g+6}")
            if k < NP - 1:
                A(f"s_branch {fin}")
        self.label(fin)
        A(f"ds_write_b128 v{t0}, v[{P}:{P+3}] offset:{L_Q}")
        A("s_waitcnt lgkmcnt(0)")
        self.stamp(13, 60, 61, 1)
        A("s_barrier")
        self.stamp(2, 60, 61, 1)
        if not self.sent_early:
            do_init()
        A(f"v_mov_b32 v{t3}, 0")
        C("wait until every WG finished its sentinel init, then raise the LDS flag")
        lp = self.newlabel("hinit_poll")
        ok = self.newlabel("hinit_ok")
        A(f"s_mov_b32 s68, {POLL_MAX}")
        self.label(lp)
        A(f"s_sleep {self.initsleep}")
        A(f"buffer_load_dword v{t2}, v{t3}, s[48:51], 0 offen sc1")
        A("s_waitcnt vmcnt(0)")
        A(f"v_readfirstlane_b32 s33, v{t2}")
        A("s_cmp_ge_u32 s33, 256")
        A(f"s_cbranch_scc1 {ok}")
        A("s_sub_u32 s68, s68, 1")
        A("s_cmp_lg_u32 s68, 0")
        A(f"s_cbranch_scc1 {lp}")
        self.label(ok)
        A(f"v_mov_b32 v{t2}, 1")
        A(f"ds_write_b32 v{t3}, v{t2} offset:{L_FLAG}")
        A("s_waitcnt lgkmcnt(0)")
        self.stamp(3, 60, 61, 1)
        A("s_branch L_end")


if __name__ == "__main__":
    import argparse
    ap = argparse.ArgumentParser()
    ap.add_argument("-o", default="cdna_kernels/" + KN + ".s")
    ap.add_argument("--nst", type=int, default=4)
    ap.add_argument("--throttle", type=int, default=2)
    ap.add_argument("--stamps", action="store_true")
    ap.add_argument("--noxcdmap", action="store_true")
    ap.add_argument("--nodry", action="store_true")
    ap.add_argument("--npoll", type=int, default=3)
    ap.add_argument("--pollgap", type=int, default=4)
    ap.add_argument("--sent_early", action="store_true")
    ap.add_argument("--nobar0", action="store_true")
    ap.add_argument("--initsleep", type=int, default=32)
    ap.add_argument("--noq", type=int, default=0)
    a = ap.parse_args()
    g = Gen(nst=a.nst, stamps=a.stamps, throttle=a.throttle, xcdmap=not a.noxcdmap, dry=not a.nodry, npoll=a.npoll, pollgap=a.pollgap, sent_early=a.sent_early, bar0=not a.nobar0, initsleep=a.initsleep, noq=a.noq)
    open(a.o, "w").write(g.gen())
    print("wrote", a.o)
```

```python
import sys, struct

KN = "sequential_preLN__gqa_block_cached__glu_gated_glu__decode"

def f32bits(x):
    return struct.unpack("<I", struct.pack("<f", x))[0]

WS_EPOCH = 0
WS_T     = 4096
WS_PML   = 8192
WS_HP    = 16384
WS_Q     = 32768
WS_PO    = 131072
WS_OP    = WS_PO + 524288
WS_Q1    = 786432
WS_STAMP = 1 << 20
WS_SIZE  = 2 << 20
QR = 4
INV = 0x40000000
WS_CTR2 = 1 << 20 | 1 << 19

L_Q  = 0
L_O  = 1024
L_M  = 9216
L_L  = 10240
L_W  = 11264
L_R  = 13312
L_G  = 17408
L_QP = 21504
L_CTR = 22528
L_EXT = 22536
L_QF = 22544
LDS_BYTES = 22592

NB, NC, NE_WG = 64, 56, 16
B0, C0, E0 = 0, 64, 120
POLL_MAX = 200000

vKo, vVo = 2, 3
vQ, vS, vO = 4, 20, 24
vM, vL = 32, 33
vMk0, vMk1 = 34, 35
vT0, vT1 = 36, 37
vX = 38
vF, vNM = 42, 43
vTk = 44
vIC = 48
vZ = 50
vSt = 51
RB = 56


class Gen:
    def __init__(self, nr=3, ns=5, th=3, stamps=False, ps=10, noq=0, notail=False,
                 sizes=(122, 130, 130, 130), early="B", chunks=(2, 2, 1), th0=None, pp=3, pgap=6, cthr=4, gpol=' nt', qpol=' nt', n0=112, p1=76, p2=96, biasc=6.0, gain=1.0, bal=True, qrot=0, hrot=0, amode=0, arot=0):
        self.L = []
        self.nr, self.ns, self.th, self.ps = nr, ns, th, ps
        self.stamps = stamps
        self.noq = noq
        self.notail = notail
        self.sizes = sizes
        self.early = early
        self.chunks = chunks
        self.qrot = qrot
        self.amode, self.arot = amode, arot
        self.hrot = hrot
        self.n0, self.p1, self.p2, self.biasc, self.gain, self.bal = n0, p1, p2, biasc, gain, bal
        self.gpol, self.qpol = gpol, qpol
        self.pp, self.pgap, self.cthr = pp, pgap, cthr
        self.th0 = th0 if th0 else th
        assert sum(sizes) == 512 and sum(chunks) == ns
        self.lbl = 0
        self.QS = RB + nr * 32
        self.NV = self.QS + 24

    def A(self, s): self.L.append("  " + s)
    def C(self, s): self.L.append("  ; " + s)
    def label(self, name): self.L.append(name + ":")
    def newlabel(self, p="L"):
        self.lbl += 1
        return f"{p}_{self.lbl}"

    def srd(self, d, base_lo, off_sgpr, size):
        A = self.A
        if off_sgpr is not None:
            A(f"s_add_u32 s{d}, s{base_lo}, s{off_sgpr}")
            A(f"s_addc_u32 s{d+1}, s{base_lo+1}, 0")
        else:
            A(f"s_mov_b32 s{d}, s{base_lo}")
            A(f"s_mov_b32 s{d+1}, s{base_lo+1}")
        A(f"s_mov_b32 s{d+2}, {size}")
        A(f"s_mov_b32 s{d+3}, 0x00020000")

    def exec_all(self): self.A("s_mov_b64 exec, -1")
    def exec_mask(self, m):
        lo, hi = m & 0xffffffff, m >> 32
        self.A(f"s_mov_b32 exec_lo, {hex(lo)}")
        self.A(f"s_mov_b32 exec_hi, {hex(hi)}")

    def dpp(self, op, d, s0, s1, ctrl):
        self.A(f"{op}_dpp v{d}, v{s0}, v{s1} {ctrl} row_mask:0xf bank_mask:0xf")

    def row_allreduce(self, op, regs):
        for ctrl in ("quad_perm:[1,0,3,2]", "quad_perm:[2,3,0,1]", "row_half_mirror", "row_mirror"):
            if len(regs) < 3:
                self.A("s_nop 1")
            for r in regs:
                self.dpp(op, r, r, r, ctrl)

    def cross_rows_allreduce(self, op, r, t, do16=True, do32=True):
        A = self.A
        for sw, en in (("v_permlane32_swap_b32", do32), ("v_permlane16_swap_b32", do16)):
            if not en:
                continue
            A(f"v_mov_b32 v{t}, v{r}")
            A("s_nop 1")
            A(f"{sw} v{r}, v{t}")
            A("s_nop 0")
            A(f"{op} v{r}, v{r}, v{t}")

    def wave_allreduce(self, op, r, t):
        self.row_allreduce(op, [r])
        self.cross_rows_allreduce(op, r, t)

    def bf16_round1(self, d, s):
        self.A(f"v_cvt_pk_bf16_f32 v{d}, v{s}, v{s}")
        self.A(f"v_and_b32 v{d}, s60, v{d}")

    def unpack(self, lo, hi, p):
        self.A(f"v_lshlrev_b32 v{lo}, 16, v{p}")
        self.A(f"v_and_b32 v{hi}, s60, v{p}")

    def stamp(self, idx):
        if not self.stamps:
            return
        A = self.A
        A("s_memrealtime s[98:99]")
        A("s_waitcnt lgkmcnt(0)")
        A(f"s_mul_i32 s100, s2, {5*64}")
        A("s_lshl_b32 s101, s28, 6")
        A("s_add_u32 s100, s100, s101")
        A(f"s_add_u32 s100, s100, {WS_STAMP + idx*4}")
        A(f"v_mov_b32 v{vSt}, s98")
        A(f"v_mov_b32 v{vSt+1}, s100")
        A("s_mov_b64 s[98:99], exec")
        A("s_mov_b64 exec, 1")
        A(f"buffer_store_dword v{vSt}, v{vSt+1}, s[44:47], 0 offen")
        A("s_mov_b64 exec, s[98:99]")

    def layernorm(self, X, n, T, cnt_inv, Y=None, ny=None):
        A = self.A
        t0, t1, t2, t3 = T, T + 1, T + 2, T + 3
        A(f"v_add_f32 v{t0}, v{X}, v{X+1}")
        for i in range(2, n):
            A(f"v_add_f32 v{t0}, v{t0}, v{X+i}")
        self.wave_allreduce("v_add_f32", t0, t1)
        A(f"v_mul_f32 v{t0}, {cnt_inv}, v{t0}")
        A(f"v_sub_f32 v{t1}, v{X}, v{t0}")
        A(f"v_mul_f32 v{t2}, v{t1}, v{t1}")
        for i in range(1, n):
            A(f"v_sub_f32 v{t1}, v{X+i}, v{t0}")
            A(f"v_fmac_f32 v{t2}, v{t1}, v{t1}")
        self.wave_allreduce("v_add_f32", t2, t1)
        A(f"v_mul_f32 v{t2}, {cnt_inv}, v{t2}")
        self.bf16_round1(t0, t0)
        self.bf16_round1(t2, t2)
        A(f"v_add_f32 v{t2}, {hex(f32bits(1e-5))}, v{t2}")
        self.bf16_round1(t2, t2)
        A(f"v_sqrt_f32 v{t2}, v{t2}")
        A("s_nop 0")
        self.bf16_round1(t2, t2)
        A(f"v_rcp_f32 v{t3}, v{t2}")
        if Y is not None:
            X, n = Y, ny
        for i in range(n):
            A(f"v_sub_f32 v{X+i}, v{X+i}, v{t0}")
        for i in range(0, n, 2):
            A(f"v_cvt_pk_bf16_f32 v{t1}, v{X+i}, v{X+i+1}")
            self.unpack(X + i, X + i + 1, t1)
        for i in range(n):
            A(f"v_mul_f32 v{t1}, v{X+i}, v{t3}")
            A(f"v_fma_f32 v{X+i}, -v{t1}, v{t2}, v{X+i}")
            A(f"v_fma_f32 v{X+i}, v{X+i}, v{t3}, v{t1}")
        for i in range(0, n, 2):
            A(f"v_cvt_pk_bf16_f32 v{t1}, v{X+i}, v{X+i+1}")
            self.unpack(X + i, X + i + 1, t1)

    def gather_loop(self, loads, regs, vt, active_mask=None, name="G"):
        A = self.A
        lp = self.newlabel(name + "_poll")
        dn = self.newlabel(name + "_done")
        if active_mask is None:
            A("s_mov_b64 s[66:67], -1")
        else:
            A(f"s_mov_b32 s66, {hex(active_mask & 0xffffffff)}")
            A(f"s_mov_b32 s67, {hex(active_mask >> 32)}")
        A(f"s_mov_b32 s68, {POLL_MAX}")
        self.label(lp)
        A("s_mov_b64 exec, s[66:67]")
        loads()
        A("s_waitcnt vmcnt(0)")
        rs = list(regs)
        if len(rs) == 2:
            A(f"v_max_u32 v{vt}, v{rs[0]}, v{rs[1]}")
        else:
            A(f"v_max3_u32 v{vt}, v{rs[0]}, v{rs[1]}, v{rs[2]}")
            i = 3
            while i < len(rs):
                if i + 1 < len(rs):
                    A(f"v_max3_u32 v{vt}, v{vt}, v{rs[i]}, v{rs[i+1]}")
                    i += 2
                else:
                    A(f"v_max_u32 v{vt}, v{vt}, v{rs[i]}")
                    i += 1
        A(f"v_cmp_eq_u32 vcc, -1, v{vt}")
        A("s_sub_u32 s68, s68, 1")
        A("s_cmp_eq_u32 s68, 0")
        A(f"s_cbranch_scc1 {dn}")
        A("s_mov_b64 s[66:67], vcc")
        A(f"s_cbranch_vccz {dn}")
        A("s_sleep 1")
        A(f"s_branch {lp}")
        self.label(dn)
        self.exec_all()

    def maxreduce(self, vt, rs):
        A = self.A
        rs = list(rs)
        if len(rs) == 1:
            A(f"v_mov_b32 v{vt}, v{rs[0]}")
        elif len(rs) == 2:
            A(f"v_max_u32 v{vt}, v{rs[0]}, v{rs[1]}")
        else:
            A(f"v_max3_u32 v{vt}, v{rs[0]}, v{rs[1]}, v{rs[2]}")
            i = 3
            while i < len(rs):
                if i + 1 < len(rs):
                    A(f"v_max3_u32 v{vt}, v{vt}, v{rs[i]}, v{rs[i+1]}")
                    i += 2
                else:
                    A(f"v_max_u32 v{vt}, v{vt}, v{rs[i]}")
                    i += 1

    def gather_pipe(self, loads, nload, regs, vt, P, gap, active_mask=None, name="GP", preinit=True):
        A = self.A
        lp = self.newlabel(name + "_poll")
        dn = self.newlabel(name + "_done")
        if active_mask is None:
            A("s_mov_b64 s[66:67], -1")
        else:
            A(f"s_mov_b32 s66, {hex(active_mask & 0xffffffff)}")
            A(f"s_mov_b32 s67, {hex(active_mask >> 32)}")
        A("s_mov_b64 exec, s[66:67]")
        if preinit:
            for r in regs:
                A(f"v_mov_b32 v{r}, -1")
        A(f"s_mov_b32 s68, {POLL_MAX * P}")
        A("s_waitcnt vmcnt(0)")
        for k in range(P - 1):
            loads()
            A(f"s_sleep {gap}")
        self.label(lp)
        loads()
        A(f"s_waitcnt vmcnt({nload * (P - 1)})")
        self.maxreduce(vt, regs)
        A(f"v_cmp_eq_u32 vcc, -1, v{vt}")
        A("s_sub_u32 s68, s68, 1")
        A("s_cmp_eq_u32 s68, 0")
        A(f"s_cbranch_scc1 {dn}")
        A("s_mov_b64 exec, vcc")
        A(f"s_cbranch_vccnz {lp}")
        self.label(dn)
        self.exec_all()

    def tile_body(self, pre, kb, vb, wait_k, wait_v, after_qk, after_pv):
        A = self.A
        if wait_k is not None:
            A(f"s_waitcnt vmcnt({wait_k})")
        for m in range(4):
            k = kb + 4 * m
            c = "0" if m == 0 else f"v[{vS}:{vS+3}]"
            A(f"v_mfma_f32_16x16x32_bf16 v[{vS}:{vS+3}], {pre}[{k}:{k+3}], v[{vQ+4*m}:{vQ+4*m+3}], {c}")
        n = after_qk()
        if n < 8:
            A(f"s_nop {7 - n}")
        A(f"v_cvt_pk_bf16_f32 v{vT0}, v{vS}, v{vS+1}")
        A(f"v_cvt_pk_bf16_f32 v{vT1}, v{vS+2}, v{vS+3}")
        self.unpack(vS, vS + 1, vT0)
        self.unpack(vS + 2, vS + 3, vT1)
        for r in range(4):
            A(f"v_mul_f32 v{vS+r}, s61, v{vS+r}")
        A(f"v_cvt_pk_bf16_f32 v{vT0}, v{vS}, v{vS+1}")
        A(f"v_cvt_pk_bf16_f32 v{vT1}, v{vS+2}, v{vS+3}")
        self.unpack(vS, vS + 1, vT0)
        self.unpack(vS + 2, vS + 3, vT1)
        A(f"v_max3_f32 v{vT0}, v{vS}, v{vS+1}, v{vS+2}")
        A(f"v_max3_f32 v{vT0}, v{vT0}, v{vS+3}, v{vM}")
        self.cross_rows_allreduce("v_max_f32", vT0, vT1)
        A(f"v_sub_f32 v{vF}, v{vM}, v{vT0}")
        A(f"v_mul_f32 v{vNM}, s63, v{vT0}")
        A(f"v_mul_f32 v{vF}, s62, v{vF}")
        A(f"v_mov_b32 v{vM}, v{vT0}")
        A(f"v_exp_f32 v{vF}, v{vF}")
        for r in range(4):
            A(f"v_fma_f32 v{vS+r}, v{vS+r}, s62, v{vNM}")
        for r in range(4):
            A(f"v_exp_f32 v{vS+r}, v{vS+r}")
        for i in range(8):
            A(f"v_mul_f32 v{vO+i}, v{vF}, v{vO+i}")
        A(f"v_add_f32 v{vT0}, v{vS}, v{vS+1}")
        A(f"v_add_f32 v{vT1}, v{vS+2}, v{vS+3}")
        A(f"v_add_f32 v{vT0}, v{vT0}, v{vT1}")
        A(f"v_fma_f32 v{vL}, v{vL}, v{vF}, v{vT0}")
        for r in range(4):
            A(f"v_cvt_pk_bf16_f32 v{vS+r}, v{vS+r}, v{vS+r}")
        A(f"v_and_b32 v{vX}, v{vMk0}, v{vS}")
        A(f"v_and_b32 v{vX+1}, v{vMk1}, v{vS}")
        if wait_v is not None:
            A(f"s_waitcnt vmcnt({wait_v})")
        for r in range(4):
            x = vX + 2 * (r & 1)
            if r < 3:
                xn = vX + 2 * ((r + 1) & 1)
                A(f"v_and_b32 v{xn}, v{vMk0}, v{vS+r+1}")
                A(f"v_and_b32 v{xn+1}, v{vMk1}, v{vS+r+1}")
            v = vb + 4 * r
            A(f"v_mfma_f32_16x16x16_bf16 v[{vO}:{vO+3}], {pre}[{v}:{v+1}], v[{x}:{x+1}], v[{vO}:{vO+3}]")
            A(f"v_mfma_f32_16x16x16_bf16 v[{vO+4}:{vO+7}], {pre}[{v+2}:{v+3}], v[{x}:{x+1}], v[{vO+4}:{vO+7}]")
        after_pv()

    def tk2off(self):
        A = self.A
        if self.amode == 0:
            A("s_lshl_b32 s34, s33, 12")
            A("s_add_u32 s34, s34, s81")
        elif self.amode == 1:
            A("s_lshr_b32 s34, s33, 2")
            A("s_lshl_b32 s34, s34, 16")
            A("s_and_b32 s35, s33, 3")
            A("s_lshl_b32 s35, s35, 12")
            A("s_add_u32 s34, s34, s35")
            A("s_add_u32 s34, s34, s81")
        elif self.amode in (4, 5):
            lg = (self.arot % 100).bit_length() - 1
            if self.amode == 5:
                A("s_add_u32 s34, s33, s95")
                A("s_and_b32 s34, s34, 127")
                A("s_lshr_b32 s34, s34, 2")
            else:
                A("s_lshr_b32 s34, s33, 2")
            A(f"s_lshl_b32 s34, s34, {14 + lg}")
            A("s_and_b32 s35, s33, 3")
            A(f"s_lshl_b32 s35, s35, {12 + (lg if self.arot >= 100 else 0)}")
            A("s_add_u32 s34, s34, s35")
            A("s_add_u32 s34, s34, s81")
        elif self.amode == 2:
            A("s_add_u32 s34, s33, s95")
            A("s_and_b32 s34, s34, 127")
            A("s_lshl_b32 s34, s34, 12")
            A("s_add_u32 s34, s34, s81")
        elif self.amode == 3:
            A("s_xor_b32 s34, s33, s95")
            A("s_and_b32 s34, s34, 127")
            A("s_lshl_b32 s34, s34, 12")
            A("s_add_u32 s34, s34, s81")

    def loadK(self, pre, kb, soff):
        for m in range(4):
            r = kb + 4 * m
            self.A(f"buffer_load_dwordx4 {pre}[{r}:{r+3}], v{vKo}, s[36:39], s{soff} offen offset:{m*64} nt")

    def loadV(self, pre, vb, soff):
        for m in range(4):
            r = vb + 4 * m
            self.A(f"buffer_load_dwordx4 {pre}[{r}:{r+3}], v{vVo}, s[40:43], s{soff} offen offset:{m*1024} nt")

    def gen(self):
        A, C = self.A, self.C
        NR, NS, TH = self.nr, self.ns, self.th
        self.L.append(f"; @launch grid=(256,1,1) block=(256,1,1) lds={LDS_BYTES}")
        self.L.append('.amdgcn_target "amdgcn-amd-amdhsa--gfx950"')
        self.L.append(".text")
        self.L.append(f".globl {KN}_kernel")
        self.L.append(".p2align 8")
        self.L.append(f".type {KN}_kernel,@function")
        self.label(f"{KN}_kernel")
        A("s_cmp_ge_u32 s2, 256")
        A("s_cbranch_scc1 L_end")
        A("s_load_dwordx16 s[4:19], s[0:1], 0")
        A("s_load_dwordx8 s[20:27], s[0:1], 64")
        if self.bal:
            A("s_memrealtime s[96:97]")
        A("v_lshrrev_b32 v2, 6, v0")
        A("v_and_b32 v1, 63, v0")
        A("s_mov_b32 s60, 0xffff0000")
        A("v_readfirstlane_b32 s28, v2")
        A(f"s_mov_b32 s61, {hex(f32bits(128 ** -0.5))}")
        A(f"s_mov_b32 s62, {hex(f32bits(1.4426950408889634))}")
        A(f"s_mov_b32 s63, {hex(f32bits(-1.4426950408889634))}")
        A("s_lshr_b32 s33, s2, 3")
        A("s_lshr_b32 s31, s33, 2")
        if self.hrot:
            A(f"s_add_u32 s31, s31, {self.hrot}")
            A("s_and_b32 s31, s31, 7")
        A("s_and_b32 s33, s33, 3")
        A("s_and_b32 s32, s2, 7")
        A("s_lshl_b32 s32, s32, 2")
        A("s_add_u32 s32, s32, s33")
        A("s_lshl_b32 s3, s33, 6")
        A("s_and_b32 s34, s2, 7")
        A("s_lshl_b32 s34, s34, 3")
        A("s_add_u32 s3, s3, s34")
        A("s_add_u32 s3, s3, s31")
        A(f"v_lshlrev_b32 v{vVo}, 4, v1")
        A(f"v_and_b32 v{vT0}, 3, v1")
        A(f"v_lshlrev_b32 v{vT0}, 2, v{vT0}")
        A(f"v_bfe_u32 v{vT1}, v1, 2, 2")
        A(f"v_add_u32 v{vT0}, v{vT0}, v{vT1}")
        A(f"v_lshlrev_b32 v{vT0}, 8, v{vT0}")
        A(f"v_lshrrev_b32 v{vT1}, 4, v1")
        A(f"v_lshl_add_u32 v{vKo}, v{vT1}, 4, v{vT0}")
        A(f"v_mov_b32 v{vZ}, 0")
        A(f"v_lshlrev_b32 v{vNM}, 5, v1")
        A(f"v_lshrrev_b32 v{vIC}, 4, v1")
        A(f"v_lshlrev_b32 v{vIC}, 9, v{vIC}")
        A(f"v_and_b32 v{vIC+1}, 15, v1")
        A(f"v_lshl_add_u32 v{vIC}, v{vIC+1}, 3, v{vIC}")
        A("s_mov_b32 s72, 0")
        A(f"v_mov_b32 v{self.QS+4}, 0")
        A(f"v_mov_b32 v{self.QS+5}, 0")
        A("s_mov_b32 s73, 0")
        A("s_waitcnt lgkmcnt(0)")
        A("s_load_dword s29, s[26:27], 0")
        self.srd(44, 26, None, WS_SIZE)
        self.stamp(0)
        if not self.noq:
            self.qphase_issue()
            self.sentinel_init()
        if self.amode in (4, 5):
            G = self.arot % 100
            lg = G.bit_length() - 1
            A("s_lshr_b32 s33, s2, 3")
            A(f"s_lshr_b32 s34, s33, {lg}")
            A("s_and_b32 s35, s2, 7")
            A(f"s_lshl_b32 s35, s35, {5 - lg}")
            A("s_add_u32 s34, s34, s35")
            A("s_and_b32 s31, s34, 7")
            A("s_lshr_b32 s34, s34, 3")
            A(f"s_lshl_b32 s93, s34, {19 + lg}")
            A(f"s_and_b32 s33, s33, {G-1}")
            A(f"s_lshl_b32 s33, s33, {12 if self.arot >= 100 else 14}")
            A("s_add_u32 s93, s93, s33")
            A("s_lshl_b32 s95, s31, 4")
        C("K/V SRDs: base + ga*16MiB")
        A("s_lshl_b32 s33, s31, 24")
        self.srd(36, 6, 33, 1 << 24)
        self.srd(40, 8, 33, 1 << 24)
        if self.bal:
            A(f"s_mul_i32 s81, s32, {self.n0 * 4096}")
            A("s_mov_b32 s89, s96")
            A("s_mov_b32 s87, 0")
            A("s_mov_b32 s88, 0")
            A(f"v_mov_b32 v{vT1}, -1")
            A(f"ds_write_b32 v{vZ}, v{vT1} offset:{L_EXT+4}")
        else:
            C("WG tile range: start = xcd*512 + prefix[sub], n = sizes[sub]")
            sz = self.sizes
            A("s_and_b32 s33, s32, 3")
            A(f"s_mov_b32 s65, {sz[0]}")
            A("s_mov_b32 s81, 0")
            pre = 0
            for k in range(1, 4):
                pre += sz[k - 1]
                A(f"s_cmp_eq_u32 s33, {k}")
                A(f"s_cselect_b32 s65, {sz[k]}, s65")
                A(f"s_cselect_b32 s81, {pre}, s81")
            A("s_lshr_b32 s33, s32, 2")
            A("s_lshl_b32 s33, s33, 9")
            A("s_add_u32 s81, s81, s33")
            A("s_lshl_b32 s81, s81, 12")
        if self.amode == 1:
            A("s_lshr_b32 s81, s32, 2")
            A("s_lshl_b32 s81, s81, 21")
            A("s_and_b32 s34, s32, 3")
            A("s_lshl_b32 s34, s34, 14")
            A("s_add_u32 s81, s81, s34")
        if self.amode in (4, 5):
            A("s_mov_b32 s81, s93")
        if self.amode == 2:
            if self.arot >= 100:
                A(f"s_mul_i32 s95, s2, {self.arot - 100}")
                A("s_lshl_b32 s95, s95, 2")
            else:
                A(f"s_mul_i32 s95, s31, {self.arot}")
        if self.amode == 3:
            A(f"s_bfe_i32 s95, s{31 if self.arot else 32}, {0 | (1 << 16)}")
            A("s_and_b32 s95, s95, 124")
        A("s_mov_b32 s94, s28")
        A("s_mov_b32 s33, s94")
        self.tk2off()
        A("s_mov_b32 s64, s34")
        A(f"v_mov_b32 v{vTk+1}, 1")
        A(f"v_mov_b32 v{vT0}, {4*(NR+NS)}")
        A(f"ds_write_b32 v{vZ}, v{vT0} offset:{L_CTR}")
        A(f"ds_write_b32 v{vZ}, v{vZ} offset:{L_QF}")
        halves = []
        for s in range(NR):
            halves += [("K", "v", RB + 32 * s), ("V", "v", RB + 32 * s + 16)]
        for s in range(NS):
            halves += [("K", "a", 32 * s), ("V", "a", 32 * s + 16)]
        def issue_half(hv):
            if hv[0] == "K":
                self.loadK(hv[1], hv[2], 64)
            else:
                self.loadV(hv[1], hv[2], 64)
                A("s_add_u32 s94, s94, 4")
                A("s_mov_b32 s33, s94")
                self.tk2off()
                A("s_mov_b32 s64, s34")
        A("s_waitcnt lgkmcnt(0)")
        A("s_barrier")
        TH0 = self.th0
        for hv in halves[:TH0]:
            issue_half(hv)
        if not self.noq:
            self.qphase_compute(2 + 4 * TH0, 4 * TH0)
            self.q_publish()
        A("s_mov_b32 s82, 0")
        pending = None
        for k, hv in enumerate(halves):
            if k < TH0:
                continue
            A(f"s_waitcnt vmcnt({4*(TH-1)})")
            issue_half(hv)
            if not self.noq and k >= self.ps and (k - self.ps) % TH == 0:
                self.q_poll_step(first=(k == self.ps))
        A(f"v_and_b32 v{vT0}, 3, v1")
        A(f"v_mov_b32 v{vMk0}, 0")
        A(f"v_mov_b32 v{vMk1}, 0")
        A(f"v_mov_b32 v{vT1}, 0xffff")
        A(f"v_mov_b32 v{vF}, s60")
        for e, (mk, val) in enumerate(((vMk0, vT1), (vMk0, vF), (vMk1, vT1), (vMk1, vF))):
            A(f"v_cmp_eq_u32 vcc, {e}, v{vT0}")
            A("s_nop 1")
            A(f"v_cndmask_b32 v{mk}, v{mk}, v{val}, vcc")
        for i in range(8):
            A(f"v_mov_b32 v{vO+i}, 0")
        A(f"v_mov_b32 v{vM}, 0xff800000")
        A(f"v_mov_b32 v{vL}, 0")
        for s in range(NR):
            A(f"s_mov_b32 s{77+s}, 1")
        A(f"s_mov_b32 s83, {len(self.chunks)}")
        self.stamp(13)
        if not self.noq:
            self.q_poll_final()
            lp = self.newlabel("qflag")
            ok = self.newlabel("qflag_ok")
            A(f"s_mov_b32 s68, {POLL_MAX * 16}")
            self.label(lp)
            A(f"ds_read_b32 v{vT0}, v{vZ} offset:{L_QF}")
            A("s_waitcnt lgkmcnt(0)")
            A(f"v_readfirstlane_b32 s33, v{vT0}")
            A("s_cmp_lg_u32 s33, 0")
            A(f"s_cbranch_scc1 {ok}")
            A("s_sleep 1")
            A("s_sub_u32 s68, s68, 1")
            A("s_cmp_lg_u32 s68, 0")
            A(f"s_cbranch_scc1 {lp}")
            self.label(ok)
        A(f"v_bfe_u32 v{vT0}, v1, 2, 2")
        A(f"v_lshlrev_b32 v{vT0}, 8, v{vT0}")
        A(f"v_lshrrev_b32 v{vT1}, 4, v1")
        A(f"v_lshl_add_u32 v{vT0}, v{vT1}, 4, v{vT0}")
        for m in range(4):
            A(f"ds_read_b128 v[{vQ+4*m}:{vQ+4*m+3}], v{vT0} offset:{L_Q + m*64}")
        self.stamp(1)
        A("s_waitcnt lgkmcnt(0)")
        W = 8 * NR - 4
        self.label("L_loop")
        for s in range(NR):
            C(f"---- ring slot {s}")
            kb, vb = RB + 32 * s, RB + 32 * s + 16
            so, sv = 74 + s, 77 + s
            A(f"s_cmp_eq_u32 s{sv}, 0")
            A("s_cbranch_scc1 L_loop_done")
            A("s_mov_b64 exec, 1")
            A(f"ds_add_rtn_u32 v{vTk}, v{vZ}, v{vTk+1} offset:{L_CTR}")
            A("s_mov_b64 exec, -1")
            def after_qk(s=s, kb=kb, so=so, sv=sv):
                A("s_waitcnt lgkmcnt(0)")
                A(f"v_readfirstlane_b32 s33, v{vTk}")
                if self.bal:
                    A(f"s_cmp_lt_u32 s33, {self.p1}")
                    A(f"s_cbranch_scc1 L_fast{s}")
                    A(f"s_mov_b32 s92, {s}")
                    A("s_branch L_slow")
                    self.label(f"L_ret{s}")
                    A(f"s_mov_b32 s{so}, s34")
                    A(f"s_mov_b32 s{sv}, s35")
                    A(f"s_branch L_ld{s}")
                    self.label(f"L_fast{s}")
                    A("s_lshl_b32 s34, s33, 12")
                    A(f"s_add_u32 s{so}, s34, s81")
                    self.label(f"L_ld{s}")
                else:
                    self.tk2off()
                    A("s_cmp_lt_u32 s33, s65")
                    A(f"s_cselect_b32 s{so}, s34, {hex(INV)}")
                    A(f"s_cselect_b32 s{sv}, 1, 0")
                self.loadK("v", kb, so)
                return 8
            def after_pv(vb=vb, so=so):
                self.loadV("v", vb, so)
            self.tile_body("v", kb, vb, W, W, after_qk, after_pv)
        A("s_cmp_eq_u32 s83, 0")
        A("s_cbranch_scc1 L_loop")
        C("---- backlog: startup tiles held in AGPRs")
        nch = len(self.chunks)
        labs = [self.newlabel("bk") for _ in range(nch)]
        for c in range(1, nch):
            A(f"s_cmp_eq_u32 s83, {nch - c}")
            A(f"s_cbranch_scc1 {labs[c]}")
        t = 0
        for c in range(nch):
            self.label(labs[c])
            A("s_sub_u32 s83, s83, 1")
            if c == 0:
                A(f"s_waitcnt vmcnt({8*NR})")
            for _ in range(self.chunks[c]):
                self.tile_body("a", 32 * t, 32 * t + 16, None, None, lambda: 0, lambda: None)
                t += 1
            if c == nch - 1:
                self.stamp(6)
                if not self.notail:
                    self.role_prefetch(True)
            A("s_branch L_loop")
        if self.bal:
            self.slow_path()
        self.label("L_loop_done")
        self.stamp(2)
        if self.notail:
            A("s_branch L_end")
        A("s_waitcnt vmcnt(0)")

        C("---- WG combine")
        self.cross_rows_allreduce("v_add_f32", vL, vT1)
        A("s_lshl_b32 s33, s28, 11")
        A(f"v_lshl_add_u32 v{vT0}, v1, 4, s33")
        A(f"ds_write_b128 v{vT0}, v[{vO}:{vO+3}] offset:{L_O}")
        A(f"ds_write_b128 v{vT0}, v[{vO+4}:{vO+7}] offset:{L_O+1024}")
        A("s_lshl_b32 s33, s28, 8")
        A(f"v_lshl_add_u32 v{vT0}, v1, 2, s33")
        A(f"ds_write_b32 v{vT0}, v{vM} offset:{L_M}")
        A(f"ds_write_b32 v{vT0}, v{vL} offset:{L_L}")
        A("s_waitcnt lgkmcnt(0)")
        A("s_barrier")
        self.stamp(11)
        A("s_cmp_ge_u32 s28, 2")
        A("s_cbranch_scc1 L_after_publish")
        m_, l_ = vQ, vQ + 4
        Ob = [vQ + 8, vQ + 12, vS, vO]
        A(f"v_lshlrev_b32 v{vT0}, 2, v1")
        for w in range(4):
            A(f"ds_read_b32 v{m_+w}, v{vT0} offset:{L_M + w*256}")
            A(f"ds_read_b32 v{l_+w}, v{vT0} offset:{L_L + w*256}")
        A("s_lshl_b32 s33, s28, 10")
        A(f"v_lshl_add_u32 v{vT0}, v1, 4, s33")
        for w in range(4):
            A(f"ds_read_b128 v[{Ob[w]}:{Ob[w]+3}], v{vT0} offset:{L_O + w*2048}")
        A("s_lshl_b32 s33, s31, 5")
        A("s_add_u32 s33, s33, s32")
        A("s_lshl_b32 s34, s33, 11")
        A("s_lshl_b32 s35, s28, 8")
        A("s_add_u32 s34, s34, s35")
        A(f"s_add_u32 s34, s34, {WS_PO}")
        A(f"v_bfe_u32 v{vT0}, v1, 2, 2")
        A(f"v_lshlrev_b32 v{vT0}, 9, v{vT0}")
        A(f"v_lshrrev_b32 v{vT1}, 4, v1")
        A(f"v_lshl_add_u32 v{vT0}, v{vT1}, 6, v{vT0}")
        A(f"v_and_b32 v{vT1}, 3, v1")
        A(f"v_lshl_add_u32 v{vT0}, v{vT1}, 4, v{vT0}")
        A("s_waitcnt lgkmcnt(4)")
        A(f"v_max3_f32 v{vM}, v{m_}, v{m_+1}, v{m_+2}")
        A(f"v_max_f32 v{vM}, v{vM}, v{m_+3}")
        for w in range(4):
            A(f"v_sub_f32 v{m_+w}, v{m_+w}, v{vM}")
        for w in range(4):
            A(f"v_mul_f32 v{m_+w}, s62, v{m_+w}")
        for w in range(4):
            A(f"v_exp_f32 v{m_+w}, v{m_+w}")
        A("s_waitcnt lgkmcnt(0)")
        acc = vO + 4
        for r in range(4):
            A(f"v_mul_f32 v{acc+r}, v{m_}, v{Ob[0]+r}")
        for w in range(1, 4):
            for r in range(4):
                A(f"v_fmac_f32 v{acc+r}, v{m_+w}, v{Ob[w]+r}")
        A(f"buffer_store_dwordx4 v[{acc}:{acc+3}], v{vT0}, s[44:47], s34 offen sc1")
        A("s_cmp_lg_u32 s28, 0")
        A("s_cbranch_scc1 L_after_publish")
        A(f"v_mul_f32 v{vL}, v{m_}, v{l_}")
        for w in range(1, 4):
            A(f"v_fmac_f32 v{vL}, v{m_+w}, v{l_+w}")
        A("s_lshl_b32 s34, s33, 5")
        A(f"s_add_u32 s34, s34, {WS_PML}")
        A(f"v_lshlrev_b32 v{vT0}, 1, v1")
        A("s_mov_b64 exec, 0x1111")
        A(f"buffer_store_dwordx2 v[{vM}:{vL}], v{vT0}, s[44:47], s34 offen sc1")
        self.exec_all()
        self.label("L_after_publish")
        self.stamp(3)
        A(f"s_cmp_ge_u32 s3, {E0 + NE_WG}")
        A("s_cbranch_scc1 L_end")
        self.role_prefetch(False)
        self.init_check()
        A(f"s_cmp_lt_u32 s3, {C0}")
        A("s_cbranch_scc1 L_roleB")
        A(f"s_cmp_lt_u32 s3, {E0}")
        A("s_cbranch_scc1 L_roleC")
        A("s_branch L_roleE")
        self.roleB()
        self.roleC()
        self.roleE()
        self.label("L_end")
        A("s_endpgm")
        acc_off = (self.NV + 3) // 4 * 4
        na = max(32 * NS, 96)
        self.L.append('.section .rodata,"a"')
        self.L.append(".p2align 6")
        self.L.append(f".amdhsa_kernel {KN}_kernel")
        self.L.append(f"  .amdhsa_next_free_vgpr {acc_off + na}")
        self.L.append("  .amdhsa_next_free_sgpr 102")
        self.L.append(f"  .amdhsa_accum_offset {acc_off}")
        self.L.append("  .amdhsa_group_segment_fixed_size 0")
        self.L.append("  .amdhsa_kernarg_size 96")
        self.L.append("  .amdhsa_user_sgpr_count 2")
        self.L.append("  .amdhsa_user_sgpr_kernarg_segment_ptr 1")
        self.L.append("  .amdhsa_system_sgpr_workgroup_id_x 1")
        self.L.append("  .amdhsa_float_denorm_mode_32 3")
        self.L.append(".end_amdhsa_kernel")
        return "\n".join(self.L) + "\n"

    def slow_path(self):
        A, C = self.A, self.C
        NR, n0, P1, P2 = self.nr, self.n0, self.p1, self.p2
        POOL = 4096 - 32 * n0
        E = POOL / 32.0
        vG = vTk + 2
        t0, t1, t2, t3, t4, t5 = vT0, vT1, vX, vX + 1, vX + 2, vX + 3
        def gather_issue():
            A(f"v_and_b32 v{t0}, 31, v1")
            A(f"v_lshlrev_b32 v{t0}, 3, v{t0}")
            A("s_lshl_b32 s35, s31, 8")
            A(f"s_add_u32 s35, s35, {WS_T}")
            A(f"buffer_load_dwordx2 v[{vG}:{vG+1}], v{t0}, s[44:47], s35 offen sc1")
        self.label("L_slow")
        A(f"s_cmp_lg_u32 s33, {P1}")
        A("s_cbranch_scc1 L_sl1")
        C("publish progress time")
        A("s_memrealtime s[90:91]")
        A("s_lshl_b32 s35, s31, 8")
        A("s_lshl_b32 s93, s32, 3")
        A("s_add_u32 s35, s35, s93")
        A(f"s_add_u32 s35, s35, {WS_T}")
        A("s_waitcnt lgkmcnt(0)")
        A("s_sub_u32 s34, s90, s89")
        A("s_min_u32 s34, s34, 4095")
        A("s_lshl_b32 s34, s34, 20")
        A("s_and_b32 s90, s90, 0xfffff")
        A("s_or_b32 s34, s34, s90")
        A(f"v_mov_b32 v{t2}, s34")
        A(f"v_mov_b32 v{t3}, s30")
        A("s_mov_b64 exec, 1")
        A(f"buffer_store_dwordx2 v[{t2}:{t3}], v{vZ}, s[44:47], s35 offen sc1")
        A("s_mov_b64 exec, -1")
        self.label("L_sl1")
        A(f"s_cmp_lg_u32 s33, {P2}")
        A("s_cbranch_scc1 L_sl2")
        gather_issue()
        A(f"s_mov_b32 s88, {NR}")
        A("s_branch L_sl3")
        self.label("L_sl2")
        A("s_cmp_eq_u32 s88, 0")
        A("s_cbranch_scc1 L_sl3")
        A("s_sub_u32 s88, s88, 1")
        A("s_cmp_lg_u32 s88, 0")
        A("s_cbranch_scc1 L_sl3")
        A("s_mov_b32 s93, 0")
        self.label("L_alloc")
        A(f"v_cmp_ne_u32 vcc, s30, v{vG+1}")
        A("s_nop 0")
        A("s_cbranch_vccz L_alloc_ok")
        gather_issue()
        A(f"s_mov_b32 s88, {NR}")
        A("s_cmp_eq_u32 s93, 0")
        A("s_cbranch_scc1 L_sl3")
        A("s_mov_b32 s88, 0")
        A("s_waitcnt vmcnt(0)")
        A("s_add_u32 s93, s93, 1")
        A(f"s_cmp_lt_u32 s93, {POLL_MAX}")
        A("s_cbranch_scc1 L_alloc")
        self.label("L_alloc_ok")
        A(f"v_readfirstlane_b32 s34, v{vG}")
        A(f"v_lshrrev_b32 v{t1}, 20, v{vG}")
        A(f"v_cvt_f32_u32 v{t1}, v{t1}")
        A("s_nop 0")
        A(f"v_subrev_u32 v{t0}, s34, v{vG}")
        A(f"v_bfe_i32 v{t0}, v{t0}, 0, 20")
        A(f"v_cvt_f32_i32 v{t0}, v{t0}")
        A(f"v_mov_b32 v{t2}, v{t0}")
        self.row_allreduce("v_add_f32", [t1, t2])
        self.cross_rows_allreduce("v_add_f32", t1, t3, do32=False)
        self.cross_rows_allreduce("v_add_f32", t2, t3, do32=False)
        A(f"v_rcp_f32 v{t1}, v{t1}")
        A(f"v_mul_f32 v{t2}, {hex(f32bits(1.0/32))}, v{t2}")
        A(f"v_sub_f32 v{t0}, v{t0}, v{t2}")
        A(f"v_mul_f32 v{t1}, {hex(f32bits(-32.0 * P1 * self.gain))}, v{t1}")
        A(f"v_mov_b32 v{t2}, {hex(f32bits(E))}")
        A(f"v_fmac_f32 v{t2}, v{t0}, v{t1}")
        A(f"v_and_b32 v{t3}, 3, v1")
        A(f"v_and_b32 v{t4}, 31, v1")
        A(f"v_cmp_eq_u32 vcc, 1, v{t3}")
        A(f"v_cmp_gt_u32 s[90:91], 28, v{t4}")
        A(f"v_mov_b32 v{t3}, {hex(f32bits(self.biasc))}")
        A("s_and_b64 vcc, vcc, s[90:91]")
        A("s_nop 0")
        A(f"v_cndmask_b32 v{t3}, 0, v{t3}, vcc")
        A(f"v_sub_f32 v{t2}, v{t2}, v{t3}")
        A(f"v_max_f32 v{t2}, 0, v{t2}")
        for sh in (1, 2, 4, 8):
            A("s_nop 1")
            A(f"v_add_f32_dpp v{t2}, v{t2}, v{t2} row_shr:{sh} row_mask:0xf bank_mask:0xf bound_ctrl:0")
        A("s_nop 1")
        A(f"v_add_f32_dpp v{t2}, v{t2}, v{t2} row_bcast:15 row_mask:0xa bank_mask:0xf")
        A("s_nop 0")
        A(f"v_readlane_b32 s34, v{t2}, 31")
        A("s_nop 1")
        A(f"v_rcp_f32 v{t3}, s34")
        A("s_max_u32 s35, s32, 1")
        A("s_sub_u32 s35, s35, 1")
        A(f"v_mul_f32 v{t3}, {hex(f32bits(float(POOL)))}, v{t3}")
        A(f"v_mul_f32 v{t2}, v{t2}, v{t3}")
        A(f"v_rndne_f32 v{t2}, v{t2}")
        A(f"v_cvt_u32_f32 v{t2}, v{t2}")
        A(f"v_min_u32 v{t2}, {POOL}, v{t2}")
        A("s_nop 0")
        A(f"v_readlane_b32 s86, v{t2}, s32")
        A(f"v_readlane_b32 s85, v{t2}, s35")
        A("s_cmp_eq_u32 s32, 31")
        A(f"s_cselect_b32 s86, {POOL}, s86")
        A("s_cmp_eq_u32 s32, 0")
        A("s_cselect_b32 s85, 0, s85")
        A("s_sub_u32 s86, s86, s85")
        A("s_lshl_b32 s85, s85, 12")
        A(f"s_add_u32 s85, s85, {32 * n0 * 4096}")
        A(f"v_mov_b32 v{t2}, s85")
        A(f"v_mov_b32 v{t3}, s86")
        A(f"ds_write_b64 v{vZ}, v[{t2}:{t3}] offset:{L_EXT}")
        A("s_mov_b32 s87, 1")
        if self.stamps:
            A(f"v_mov_b32 v{vSt}, s86")
            A(f"s_mul_i32 s100, s2, {5*64}")
            A(f"s_add_u32 s100, s100, {WS_STAMP + 4*64}")
            A(f"v_mov_b32 v{vSt+1}, s100")
            A("s_mov_b64 exec, 1")
            A(f"buffer_store_dword v{vSt}, v{vSt+1}, s[44:47], 0 offen")
            A("s_mov_b64 exec, -1")
        self.label("L_sl3")
        A(f"s_cmp_ge_u32 s33, {n0}")
        A("s_cbranch_scc1 L_ext")
        A("s_lshl_b32 s34, s33, 12")
        A("s_add_u32 s34, s34, s81")
        A("s_mov_b32 s35, 1")
        A("s_branch L_slret")
        self.label("L_ext")
        A("s_cmp_lg_u32 s87, 0")
        A("s_cbranch_scc1 L_ext_ok")
        A("s_cmp_eq_u32 s88, 0")
        A("s_cbranch_scc1 L_ext_wait")
        A("s_mov_b32 s88, 0")
        A("s_mov_b32 s93, 1")
        A("s_waitcnt vmcnt(0)")
        A("s_branch L_alloc")
        self.label("L_ext_wait")
        A(f"s_mov_b32 s93, {POLL_MAX * 8}")
        self.label("L_ext_spin")
        A(f"ds_read_b64 v[{t2}:{t3}], v{vZ} offset:{L_EXT}")
        A("s_waitcnt lgkmcnt(0)")
        A(f"v_readfirstlane_b32 s85, v{t2}")
        A(f"v_readfirstlane_b32 s86, v{t3}")
        A("s_cmp_lg_u32 s86, -1")
        A("s_cbranch_scc1 L_ext_got")
        A("s_sleep 1")
        A("s_sub_u32 s93, s93, 1")
        A("s_cmp_lg_u32 s93, 0")
        A("s_cbranch_scc1 L_ext_spin")
        A("s_mov_b32 s86, 0")
        self.label("L_ext_got")
        A("s_mov_b32 s87, 1")
        self.label("L_ext_ok")
        A(f"s_sub_u32 s35, s33, {n0}")
        A("s_lshl_b32 s34, s35, 12")
        A("s_add_u32 s34, s34, s85")
        A("s_cmp_lt_u32 s35, s86")
        A(f"s_cselect_b32 s34, s34, {hex(INV)}")
        A("s_cselect_b32 s35, 1, 0")
        self.label("L_slret")
        for k in range(NR - 1):
            A(f"s_cmp_eq_u32 s92, {k}")
            A(f"s_cbranch_scc1 L_ret{k}")
        A(f"s_branch L_ret{NR-1}")

    def qphase_issue(self):
        A = self.A
        t0, t1 = vT0, vT1
        R = self.QS
        W, XS, XO = R, R + 16, R + 20
        self.srd(56, 4, None, 1024)
        A(f"buffer_load_dwordx4 v[{XS}:{XS+3}], v{vVo}, s[56:59], 0 offen")
        A("s_and_b32 s33, s2, 7")
        A("s_lshl_b32 s33, s33, 5")
        A("s_lshr_b32 s34, s2, 3")
        A("s_add_u32 s84, s33, s34")
        A("s_and_b32 s33, s34, 3")
        A("s_lshl_b32 s33, s33, 2")
        A("s_add_u32 s33, s33, s28")
        A("s_lshl_b32 s35, s33, 6")
        A(f"v_lshrrev_b32 v{t0}, 3, v1")
        A(f"v_lshl_add_u32 v{t1}, v{t0}, 3, s35")
        A(f"buffer_load_dwordx2 v[{XO}:{XO+1}], v{t1}, s[56:59], 0 offen")
        A("s_lshl_b32 s33, s33, 18")
        A("s_lshr_b32 s34, s84, 2")
        A("s_lshl_b32 s34, s34, 7")
        A("s_add_u32 s34, s34, s33")
        self.srd(52, 10, 34, 31 * 8192 + 128)
        A(f"v_lshlrev_b32 v{t0}, 15, v{t0}")
        A(f"v_and_b32 v{t1}, 7, v1")
        A(f"v_lshl_add_u32 v{t0}, v{t1}, 4, v{t0}")
        for j in range(4):
            A(f"s_mov_b32 s35, {j*8192}")
            A(f"buffer_load_dwordx4 v[{W+4*j}:{W+4*j+3}], v{t0}, s[52:55], s35 offen{self.qpol}")

    def sentinel_init(self):
        A, C = self.A, self.C
        C("sentinel init")
        G = vO
        hi = self.newlabel("si_hi"); dn = self.newlabel("si_dn"); nb = self.newlabel("si_nb")
        for i in range(4):
            A(f"v_mov_b32 v{G+i}, -1")
        A("s_lshl_b32 s33, s31, 5")
        A("s_add_u32 s33, s33, s32")
        A("s_and_b32 s35, s28, 1")
        A("s_lshl_b32 s35, s35, 10")
        A("s_mov_b64 s[86:87], -1")
        A(f"s_mov_b32 s85, {hex(INV)}")
        A(f"s_mov_b32 s88, {hex(INV)}")
        A("s_mov_b32 s89, 3")
        A("s_mov_b32 s90, -1")
        A(f"v_mov_b32 v{vT0}, v{vVo}")
        A("s_cmp_ge_u32 s28, 2")
        A(f"s_cbranch_scc1 {hi}")
        A("s_lshl_b32 s85, s33, 11")
        A("s_add_u32 s85, s85, s35")
        A(f"s_add_u32 s85, s85, {WS_PO}")
        A("s_lshl_b32 s88, s33, 5")
        A(f"s_add_u32 s88, s88, {WS_PML}")
        A("s_cmp_eq_u32 s28, 0")
        A(f"s_cbranch_scc1 {dn}")
        A(f"s_mov_b32 s88, {hex(INV)}")
        A(f"s_branch {dn}")
        self.label(hi)
        A(f"s_cmp_ge_u32 s3, {E0}")
        A(f"s_cbranch_scc1 {dn}")
        A(f"s_cmp_ge_u32 s3, {C0}")
        A(f"s_cbranch_scc1 {nb}")
        A("s_cmp_eq_u32 s28, 3")
        A(f"s_cbranch_scc1 {dn}")
        A("s_and_b32 s33, s3, 7")
        A("s_lshl_b32 s85, s33, 11")
        A("s_lshr_b32 s34, s3, 3")
        A("s_lshl_b32 s34, s34, 8")
        A("s_add_u32 s85, s85, s34")
        A(f"s_add_u32 s85, s85, {WS_HP}")
        A("s_mov_b64 s[86:87], 0xffff")
        A(f"s_branch {dn}")
        self.label(nb)
        A(f"s_sub_u32 s33, s3, {C0}")
        A("s_lshl_b32 s85, s33, 11")
        A("s_add_u32 s85, s85, s35")
        A(f"s_add_u32 s85, s85, {WS_OP}")
        self.label(dn)
        for i in range(4):
            A(f"v_mov_b32 v{G+4+i}, s90")
        A("s_mov_b64 exec, s[86:87]")
        A(f"buffer_store_dwordx4 v[{G}:{G+3}], v{vVo}, s[44:47], s85 offen sc1")
        A("s_mov_b32 exec_lo, s89")
        A("s_mov_b32 exec_hi, 0")
        A(f"buffer_store_dwordx4 v[{G+4}:{G+7}], v{vT0}, s[44:47], s88 offen sc1")
        self.exec_all()

    def qphase_compute(self, younger, after_stores):
        A = self.A
        R = self.QS
        W, XS, XO = R, R + 16, R + 20
        XF, XN, acc = 4, 12, 16
        t0, t1 = 32, 33
        u0, u1 = 38, 39
        A(f"s_waitcnt vmcnt({younger + 4})")
        self.stamp(7)
        self.stamp(14)
        for i in range(4):
            self.unpack(XF + 2 * i, XF + 2 * i + 1, XS + i)
        for i in range(2):
            self.unpack(XN + 2 * i, XN + 2 * i + 1, XO + i)
        self.layernorm(XF, 8, t0, hex(f32bits(1.0 / 512)), Y=XN, ny=4)
        self.stamp(8)
        for j in range(4):
            A(f"s_waitcnt vmcnt({younger + 3 - j})")
            for i in range(4):
                self.unpack(u0, u1, W + 4 * j + i)
                if j == 0:
                    A(f"v_mul_f32 v{acc+2*i}, v{XN+j}, v{u0}")
                    A(f"v_mul_f32 v{acc+2*i+1}, v{XN+j}, v{u1}")
                else:
                    A(f"v_fmac_f32 v{acc+2*i}, v{XN+j}, v{u0}")
                    A(f"v_fmac_f32 v{acc+2*i+1}, v{XN+j}, v{u1}")
        self.stamp(15)
        A("s_nop 1")
        for i in range(4):
            A(f"v_permlane32_swap_b32 v{acc+i}, v{acc+i+4}")
        A("s_nop 0")
        for i in range(4):
            A(f"v_add_f32 v{acc+i}, v{acc+i}, v{acc+i+4}")
        A("s_nop 1")
        for i in range(2):
            A(f"v_permlane16_swap_b32 v{acc+i}, v{acc+i+2}")
        A("s_nop 0")
        for i in range(2):
            A(f"v_add_f32 v{acc+i}, v{acc+i}, v{acc+i+2}")
        A("s_lshl_b32 s35, s28, 8")
        A(f"v_and_b32 v{t0}, 7, v1")
        self.dpp("v_add_f32", acc, acc, acc, "row_ror:8")
        self.dpp("v_add_f32", acc + 1, acc + 1, acc + 1, "row_ror:8")
        A(f"v_lshlrev_b32 v{t0}, 5, v{t0}")
        A(f"v_lshrrev_b32 v{t1}, 4, v1")
        A(f"v_lshl_add_u32 v{t0}, v{t1}, 3, v{t0}")
        A(f"v_add_u32 v{t0}, s35, v{t0}")
        self.exec_mask(0x00ff00ff00ff00ff)
        A(f"ds_write_b64 v{t0}, v[{acc}:{acc+1}] offset:{L_QP}")
        self.exec_all()
        A(f"s_waitcnt vmcnt({after_stores}) lgkmcnt(0)")
        A("s_mul_i32 s30, s29, 0x9e3779b1")
        A("s_add_u32 s30, s30, 0x7f4a7c15")
        A("s_barrier")
        self.stamp(9)

    def q_publish(self):
        A = self.A
        sk = self.newlabel("nopub")
        P = 4
        A("s_cmp_lg_u32 s28, 0")
        A(f"s_cbranch_scc1 {sk}")
        A(f"v_lshlrev_b32 v{vT0}, 2, v1")
        for w in range(4):
            A(f"ds_read_b32 v{P+2*w}, v{vT0} offset:{L_QP + 256*w}")
        A(f"v_lshlrev_b32 v{vT0}, 3, v1")
        A("s_lshl_b32 s33, s84, 9")
        A(f"s_add_u32 s33, s33, {WS_Q1}")
        A(f"v_mov_b32 v{P+1}, s30")
        A("s_waitcnt lgkmcnt(0)")
        A(f"v_add_f32 v{P}, v{P}, v{P+2}")
        A(f"v_add_f32 v{P+4}, v{P+4}, v{P+6}")
        A(f"v_add_f32 v{P}, v{P}, v{P+4}")
        A(f"buffer_store_dwordx2 v[{P}:{P+1}], v{vT0}, s[44:47], s33 offen sc1")
        A(f"s_and_b32 s73, s32, {QR-1}")
        A("s_lshl_b32 s73, s73, 14")
        A("s_lshl_b32 s33, s31, 11")
        A("s_add_u32 s73, s73, s33")
        A(f"s_add_u32 s73, s73, {WS_Q}")
        A("s_and_b32 s72, s84, -4")
        A("s_lshl_b32 s72, s72, 9")
        A("s_and_b32 s33, s84, 3")
        A("s_lshl_b32 s33, s33, 7")
        A("s_add_u32 s72, s72, s33")
        A(f"s_add_u32 s72, s72, {WS_Q1}")
        self.label(sk)

    def s2_issue(self):
        self.A(f"buffer_load_dwordx2 v[8:9], v{vIC}, s[44:47], s72 offen sc1")

    def s2_check(self, fail):
        A = self.A
        A(f"v_cmp_ne_u32 vcc, s30, v9")
        A("s_nop 0")
        A(f"s_cbranch_vccnz {fail}")
        self.cross_rows_allreduce("v_add_f32", 8, vT1)
        A(f"v_and_b32 v{vT0}, 15, v1")
        A(f"v_lshlrev_b32 v{vT0}, 2, v{vT0}")
        A(f"v_mov_b32_dpp v{vT1}, v8 quad_perm:[1,0,3,2] row_mask:0xf bank_mask:0xf")
        A(f"v_lshrrev_b32 v10, 4, v1")
        A(f"v_lshl_add_u32 v{vT0}, v10, 14, v{vT0}")
        A(f"v_cvt_pk_bf16_f32 v8, v8, v{vT1}")
        A("s_lshl_b32 s33, s84, 6")
        A(f"s_add_u32 s33, s33, {WS_Q}")
        self.exec_mask(0x5555555555555555)
        A(f"buffer_store_dwordx2 v[8:9], v{vT0}, s[44:47], s33 offen sc1")
        self.exec_all()
        A("s_mov_b32 s82, 1")
        self.stamp(10)

    def q_poll_issue(self):
        g = 12
        self.A(f"buffer_load_dwordx4 v[{g}:{g+3}], v{vNM}, s[44:47], s73 offen sc1")
        self.A(f"buffer_load_dwordx4 v[{g+4}:{g+7}], v{vNM}, s[44:47], s73 offen offset:16 sc1")

    def q_check(self, fail):
        A = self.A
        g = 12
        A(f"v_xor_b32 v{vT0}, s30, v{g+1}")
        A(f"v_xor_b32 v{vT1}, s30, v{g+3}")
        A(f"v_or_b32 v{vT0}, v{vT0}, v{vT1}")
        A(f"v_xor_b32 v{vT1}, s30, v{g+5}")
        A(f"v_or_b32 v{vT0}, v{vT0}, v{vT1}")
        A(f"v_xor_b32 v{vT1}, s30, v{g+7}")
        A(f"v_or_b32 v{vT0}, v{vT0}, v{vT1}")
        A(f"v_cmp_ne_u32 vcc, 0, v{vT0}")
        A("s_nop 0")
        A(f"s_cbranch_vccnz {fail}")
        A(f"v_mov_b32 v{g+1}, v{g+2}")
        A(f"v_mov_b32 v{g+2}, v{g+4}")
        A(f"v_mov_b32 v{g+3}, v{g+6}")
        A(f"ds_write_b128 v{vVo}, v[{g}:{g+3}] offset:{L_Q}")
        A(f"ds_write_b32 v{vZ}, v{vTk+1} offset:{L_QF}")
        A("s_mov_b32 s82, 2")
        self.stamp(12)

    def q_poll_step(self, first):
        A = self.A
        sk = self.newlabel("qp_skip")
        st1 = self.newlabel("qp_st1")
        a0 = self.newlabel("qp_a0")
        a1 = self.newlabel("qp_a1")
        A("s_cmp_lg_u32 s28, 0")
        A(f"s_cbranch_scc1 {sk}")
        if first:
            self.s2_issue()
        else:
            A("s_cmp_eq_u32 s82, 2")
            A(f"s_cbranch_scc1 {sk}")
            A("s_cmp_eq_u32 s82, 1")
            A(f"s_cbranch_scc1 {st1}")
            self.s2_check(a0)
            A(f"s_branch {a1}")
            self.label(a0)
            self.s2_issue()
            A(f"s_branch {sk}")
            self.label(st1)
            self.q_check(a1)
            A(f"s_branch {sk}")
            self.label(a1)
            self.q_poll_issue()
        self.label(sk)

    def q_poll_final(self):
        A = self.A
        sk = self.newlabel("qf_skip")
        lp = self.newlabel("qf_loop")
        st1 = self.newlabel("qf_st1")
        a0 = self.newlabel("qf_a0")
        a1 = self.newlabel("qf_a1")
        nx = self.newlabel("qf_nx")
        A("s_cmp_lg_u32 s28, 0")
        A(f"s_cbranch_scc1 {sk}")
        A(f"s_mov_b32 s68, {POLL_MAX}")
        self.label(lp)
        A("s_cmp_eq_u32 s82, 2")
        A(f"s_cbranch_scc1 {sk}")
        A("s_waitcnt vmcnt(0)")
        A("s_cmp_eq_u32 s82, 1")
        A(f"s_cbranch_scc1 {st1}")
        self.s2_check(a0)
        A(f"s_branch {a1}")
        self.label(a0)
        self.s2_issue()
        A(f"s_branch {nx}")
        self.label(st1)
        self.q_check(a1)
        A(f"s_branch {sk}")
        self.label(a1)
        self.q_poll_issue()
        self.label(nx)
        A("s_sub_u32 s68, s68, 1")
        A("s_cmp_lg_u32 s68, 0")
        A(f"s_cbranch_scc1 {lp}")
        self.label(sk)
        A("s_waitcnt lgkmcnt(0)")

    def ic_addr(self, vd, vsa, vga, t):
        A = self.A
        A(f"v_lshrrev_b32 v{t}, 2, v{vsa}")
        A(f"v_lshlrev_b32 v{t}, 11, v{t}")
        A(f"v_and_b32 v{vd}, 3, v{vsa}")
        A(f"v_lshl_add_u32 v{vd}, v{vga}, 2, v{vd}")
        A(f"v_lshl_add_u32 v{vd}, v{vd}, 6, v{t}")
        A(f"v_add_u32 v{vd}, s91, v{vd}")

    def ic_issue(self):
        A = self.A
        a0, a1 = self.QS + 4, self.QS + 5
        vsa, vga, t = self.QS + 6, self.QS + 7, self.QS + 8
        nb = self.newlabel("ic_nb"); jn = self.newlabel("ic_jn")
        A(f"s_and_b32 s91, s2, {QR-1}")
        A("s_lshl_b32 s91, s91, 14")
        A(f"s_add_u32 s91, s91, {WS_Q + 4}")
        A(f"s_cmp_ge_u32 s3, {C0}")
        A(f"s_cbranch_scc1 {nb}")
        A("s_and_b32 s33, s3, 7")
        A(f"v_and_b32 v{vsa}, 31, v1")
        A(f"v_mov_b32 v{vga}, s33")
        self.ic_addr(a0, vsa, vga, t)
        A(f"v_mov_b32 v{a1}, v{a0}")
        A(f"s_branch {jn}")
        self.label(nb)
        A(f"v_lshrrev_b32 v{vsa}, 3, v1")
        A(f"v_lshlrev_b32 v{vsa}, 2, v{vsa}")
        A(f"v_and_b32 v{vga}, 7, v1")
        self.ic_addr(a0, vsa, vga, t)
        A(f"v_min_u32 v{a1}, {NC-1}, v1")
        A(f"v_lshrrev_b32 v{vsa}, 3, v{a1}")
        A(f"v_lshlrev_b32 v{vsa}, 2, v{vsa}")
        A(f"v_add_u32 v{vsa}, 1, v{vsa}")
        A(f"v_and_b32 v{vga}, 7, v{a1}")
        self.ic_addr(a1, vsa, vga, t)
        self.label(jn)
        A(f"buffer_load_dword v{vIC}, v{a0}, s[44:47], 0 offen sc1")
        A(f"buffer_load_dword v{vIC+1}, v{a1}, s[44:47], 0 offen sc1")

    def init_check(self):
        A = self.A
        a0, a1 = self.QS + 4, self.QS + 5
        lp = self.newlabel("ic_loop")
        ok = self.newlabel("ic_ok")
        A(f"s_mov_b32 s68, {POLL_MAX}")
        self.label(lp)
        A(f"v_xor_b32 v{vT0}, s30, v{vIC}")
        A(f"v_xor_b32 v{vT1}, s30, v{vIC+1}")
        A(f"v_or_b32 v{vT0}, v{vT0}, v{vT1}")
        A(f"v_cmp_ne_u32 vcc, 0, v{vT0}")
        A("s_nop 0")
        A(f"s_cbranch_vccz {ok}")
        A(f"buffer_load_dword v{vIC}, v{a0}, s[44:47], 0 offen sc1")
        A(f"buffer_load_dword v{vIC+1}, v{a1}, s[44:47], 0 offen sc1")
        A("s_waitcnt vmcnt(0)")
        A("s_sub_u32 s68, s68, 1")
        A("s_cmp_lg_u32 s68, 0")
        A(f"s_cbranch_scc1 {lp}")
        self.label(ok)

    def role_prefetch(self, early):
        A, C = self.A, self.C
        t0, t1 = vT0, vT1
        doB = ("B" in self.early) == early
        doG = ("C" in self.early or "G" in self.early) == early
        doD = ("C" in self.early or "D" in self.early) == early
        done = self.newlabel("pf_done")
        notB = self.newlabel("pf_notB")
        wdone = self.newlabel("pf_wdone")
        A(f"s_cmp_ge_u32 s3, {E0}")
        A(f"s_cbranch_scc1 {wdone}")
        A(f"s_cmp_ge_u32 s3, {C0}")
        A(f"s_cbranch_scc1 {notB}")
        if early:
            self.ic_issue()
        if doB:
            C("role B weights")
            A("s_and_b32 s33, s3, 7")
            A("s_lshl_b32 s33, s33, 2")
            A("s_add_u32 s33, s33, s28")
            A("s_lshl_b32 s33, s33, 17")
            A("s_lshr_b32 s34, s3, 3")
            A("s_lshl_b32 s34, s34, 7")
            A("s_add_u32 s33, s33, s34")
            self.srd(52, 12, 33, 131072 - 896)
            A(f"v_bfe_u32 v{t0}, v1, 3, 2")
            A(f"v_lshlrev_b32 v{t0}, 15, v{t0}")
            A(f"v_lshrrev_b32 v{t1}, 5, v1")
            A(f"v_lshl_add_u32 v{t0}, v{t1}, 12, v{t0}")
            A(f"v_and_b32 v{t1}, 7, v1")
            A(f"v_lshl_add_u32 v{t0}, v{t1}, 4, v{t0}")
            for j in range(16):
                off = (8 * (j & 3) + (j >> 2)) * 1024
                so, io = off & ~4095, off & 4095
                A(f"s_mov_b32 s34, {so}")
                A(f"buffer_load_dwordx4 a[{4*j}:{4*j+3}], v{t0}, s[52:55], s34 offen offset:{io} nt")
        A(f"s_branch {done}")
        self.label(notB)
        A(f"s_sub_u32 s33, s3, {C0}")
        if doG:
            C("role C gate/up weights")
            A("s_lshl_b32 s34, s33, 6")
            A(f"s_mul_i32 s35, s28, {128*3584}")
            A("s_add_u32 s34, s34, s35")
            self.srd(52, 16, 34, 128 * 3584 - 3584 + 64)
            self.srd(56, 18, 34, 128 * 3584 - 3584 + 64)
            A(f"v_lshrrev_b32 v{t0}, 2, v1")
            A(f"v_mul_u32_u24 v{t0}, {8*3584}, v{t0}")
            A(f"v_and_b32 v{t1}, 3, v1")
            A(f"v_lshl_add_u32 v{t0}, v{t1}, 4, v{t0}")
            for j in range(8):
                A(f"s_mov_b32 s35, {j*3584}")
                A(f"buffer_load_dwordx4 a[{4*j}:{4*j+3}], v{t0}, s[52:55], s35 offen{self.gpol}")
                A(f"buffer_load_dwordx4 a[{32+4*j}:{32+4*j+3}], v{t0}, s[56:59], s35 offen{self.gpol}")
        if doD:
            C("role C down weights")
            A("s_lshl_b32 s34, s33, 15")
            A("s_lshl_b32 s35, s28, 8")
            A("s_add_u32 s34, s34, s35")
            self.srd(52, 20, 34, 32768 - 768)
            A(f"v_lshrrev_b32 v{t0}, 4, v1")
            A(f"v_lshlrev_b32 v{t0}, 13, v{t0}")
            A(f"v_and_b32 v{t1}, 15, v1")
            A(f"v_lshl_add_u32 v{t0}, v{t1}, 4, v{t0}")
            for j in range(8):
                off = j * 1024
                so, io = off & ~4095, off & 4095
                A(f"s_mov_b32 s35, {so}")
                A(f"buffer_load_dwordx4 a[{64+4*j}:{64+4*j+3}], v{t0}, s[52:55], s35 offen offset:{io} nt")
        self.label(wdone)
        if not early:
            self.ic_issue()
            A("s_waitcnt vmcnt(0)")
        self.label(done)

    def emasks(self, mk, t0, t1, t2):
        A = self.A
        A(f"v_and_b32 v{t0}, 1, v1")
        A(f"v_mov_b32 v{t1}, 0xffff")
        A(f"v_mov_b32 v{t2}, s60")
        A(f"v_cmp_eq_u32 vcc, 1, v{t0}")
        A("s_nop 1")
        A(f"v_cndmask_b32 v{t1}, v{t1}, v{t2}, vcc")
        A(f"v_bfe_u32 v{t0}, v1, 1, 2")
        for r in range(4):
            A(f"v_cmp_eq_u32 vcc, {r}, v{t0}")
            A("s_nop 1")
            A(f"v_cndmask_b32 v{mk+r}, 0, v{t1}, vcc")

    def roleB(self):
        A, C = self.A, self.C
        self.label("L_roleB")
        G = RB
        vML = 2
        vA0, vA1 = 4, 5
        t0, t1, t2, t3 = 6, 7, 8, 9
        aW, aR, aD = 10, 11, 53
        mk, acc, X, D, wj = 12, 16, 20, 28, 32
        A("s_and_b32 s33, s3, 7")
        A("s_lshl_b32 s34, s33, 16")
        A("s_lshl_b32 s35, s28, 9")
        A("s_add_u32 s34, s34, s35")
        A(f"s_add_u32 s34, s34, {WS_PO}")
        A(f"v_lshrrev_b32 v{t0}, 5, v1")
        A(f"v_lshlrev_b32 v{t0}, 11, v{t0}")
        A(f"v_and_b32 v{t1}, 31, v1")
        A(f"v_lshl_add_u32 v{vA0}, v{t1}, 4, v{t0}")
        A(f"v_add_u32 v{vA0}, s34, v{vA0}")
        A("s_lshl_b32 s34, s33, 10")
        A("s_lshl_b32 s35, s28, 3")
        A("s_add_u32 s34, s34, s35")
        A(f"s_add_u32 s34, s34, {WS_PML}")
        A(f"v_and_b32 v{t0}, 15, v1")
        A(f"v_lshlrev_b32 v{t0}, 6, v{t0}")
        A(f"v_lshrrev_b32 v{t1}, 5, v1")
        A(f"v_lshl_add_u32 v{vA1}, v{t1}, 5, v{t0}")
        A(f"v_add_u32 v{vA1}, s34, v{vA1}")
        lp = self.newlabel("B_round")
        dn = self.newlabel("B_done")
        first = self.newlabel("B_first")
        A("s_mov_b32 s69, -1")
        A("s_mov_b64 s[66:67], -1")
        A(f"s_mov_b32 s68, {POLL_MAX}")
        A("s_mov_b32 s93, 1")
        self.label(lp)
        noml = self.newlabel("B_noml")
        A("s_mov_b64 exec, s[66:67]")
        A(f"s_cbranch_execz {noml}")
        A(f"buffer_load_dwordx2 v[{vML}:{vML+1}], v{vA1}, s[44:47], 0 offen sc1")
        self.label(noml)
        for grp in range(4):
            gs = self.newlabel("B_gs")
            A(f"s_bfe_u32 s34, s69, {(8*grp) | (8 << 16)}")
            A(f"s_cbranch_scc0 {gs}")
            for j in range(4 * grp, 4 * grp + 4):
                sk = self.newlabel("B_sk")
                A(f"s_bfe_u32 s34, s69, {(2*j) | (2 << 16)}")
                A(f"s_cbranch_scc0 {sk}")
                A(f"s_bfe_i32 exec_lo, s69, {(2*j) | (1 << 16)}")
                A(f"s_bfe_i32 exec_hi, s69, {(2*j+1) | (1 << 16)}")
                A(f"s_mov_b32 s35, {j*4096}")
                A(f"buffer_load_dwordx4 v[{G+4*j}:{G+4*j+3}], v{vA0}, s[44:47], s35 offen sc1")
                self.label(sk)
            self.label(gs)
        self.exec_all()
        A("s_cmp_eq_u32 s93, 0")
        A(f"s_cbranch_scc1 {first}")
        A("s_mov_b32 s93, 0")
        self.emasks(mk, t0, t1, t2)
        A("s_lshl_b32 s34, s28, 9")
        A(f"v_and_b32 v{t0}, 31, v1")
        A(f"v_lshlrev_b32 v{t0}, 4, v{t0}")
        A(f"v_lshrrev_b32 v{t1}, 5, v1")
        A(f"v_lshl_add_u32 v{t0}, v{t1}, 2, v{t0}")
        A(f"v_add_u32 v{aW}, s34, v{t0}")
        A(f"v_lshrrev_b32 v{t0}, 3, v1")
        A(f"v_lshlrev_b32 v{t0}, 6, v{t0}")
        A(f"v_add_u32 v{aR}, s34, v{t0}")
        A(f"v_lshrrev_b32 v{t0}, 5, v1")
        A(f"v_lshlrev_b32 v{t0}, 8, v{t0}")
        A(f"v_bfe_u32 v{t1}, v1, 4, 1")
        A(f"v_lshl_add_u32 v{t0}, v{t1}, 7, v{t0}")
        A(f"v_and_b32 v{t1}, 7, v1")
        A(f"v_lshl_add_u32 v{t0}, v{t1}, 2, v{t0}")
        A(f"v_add_u32 v{aD}, s34, v{t0}")
        A("s_lshl_b32 s94, s33, 11")
        A("s_lshr_b32 s35, s3, 3")
        A("s_lshl_b32 s35, s35, 8")
        A("s_add_u32 s94, s94, s35")
        A(f"s_add_u32 s94, s94, {WS_HP}")
        self.label(first)
        A("s_waitcnt vmcnt(0)")
        A(f"v_max_u32 v{t0}, v{vML}, v{vML+1}")
        A(f"v_cmp_eq_u32 s[66:67], -1, v{t0}")
        A("s_mov_b32 s95, 0")
        for grp in range(4):
            gs = self.newlabel("B_gc")
            A(f"s_bfe_u32 s34, s69, {(8*grp) | (8 << 16)}")
            A(f"s_cbranch_scc0 {gs}")
            for j in range(4 * grp, 4 * grp + 4):
                sk = self.newlabel("B_ck")
                A(f"s_bfe_u32 s34, s69, {(2*j) | (2 << 16)}")
                A(f"s_cbranch_scc0 {sk}")
                A(f"v_max3_u32 v{t0}, v{G+4*j}, v{G+4*j+1}, v{G+4*j+2}")
                A(f"v_max_u32 v{t0}, v{t0}, v{G+4*j+3}")
                A(f"v_cmp_eq_u32 vcc, -1, v{t0}")
                A("s_cmp_lg_u32 vcc_lo, 0")
                A(f"s_cselect_b32 s34, {hex(1 << (2*j))}, 0")
                A("s_or_b32 s95, s95, s34")
                A("s_cmp_lg_u32 vcc_hi, 0")
                A(f"s_cselect_b32 s34, {hex(2 << (2*j))}, 0")
                A("s_or_b32 s95, s95, s34")
                self.label(sk)
            self.label(gs)
        A("s_mov_b32 s69, s95")
        A("s_or_b32 s34, s66, s67")
        A("s_or_b32 s34, s34, s69")
        A(f"s_cbranch_scc0 {dn}")
        A("s_sub_u32 s68, s68, 1")
        A("s_cmp_lg_u32 s68, 0")
        A(f"s_cbranch_scc1 {lp}")
        self.label(dn)
        self.stamp(4)
        A(f"v_mov_b32 v{t0}, v{vML}")
        self.row_allreduce("v_max_f32", [t0])
        self.cross_rows_allreduce("v_max_f32", t0, t1, do16=False)
        A(f"v_sub_f32 v{t0}, v{vML}, v{t0}")
        A(f"v_mul_f32 v{t0}, s62, v{t0}")
        A(f"v_exp_f32 v{t0}, v{t0}")
        A("s_nop 0")
        for j in range(16):
            A(f"ds_swizzle_b32 v{wj+j}, v{t0} offset:{j << 5}")
        A(f"v_mul_f32 v{t2}, v{t0}, v{vML+1}")
        self.row_allreduce("v_add_f32", [t2])
        self.cross_rows_allreduce("v_add_f32", t2, t1, do16=False)
        A(f"v_rcp_f32 v{t2}, v{t2}")
        for j in range(16):
            if j % 4 == 0:
                A(f"s_waitcnt lgkmcnt({12 - j})")
            sel = j & 1
            w2 = wj + (j & ~1)
            for h in range(2):
                g = G + 4 * j + 2 * h
                d = acc + 2 * h
                if j == 0:
                    A(f"v_pk_mul_f32 v[{d}:{d+1}], v[{w2}:{w2+1}], v[{g}:{g+1}] op_sel:[{sel},0] op_sel_hi:[{sel},1]")
                else:
                    A(f"v_pk_fma_f32 v[{d}:{d+1}], v[{w2}:{w2+1}], v[{g}:{g+1}], v[{d}:{d+1}] op_sel:[{sel},0,0] op_sel_hi:[{sel},1,1]")
        A("s_nop 1")
        A(f"v_permlane32_swap_b32 v{acc}, v{acc+1}")
        A(f"v_permlane32_swap_b32 v{acc+2}, v{acc+3}")
        A("s_nop 0")
        A(f"v_add_f32 v{acc}, v{acc}, v{acc+1}")
        A(f"v_add_f32 v{acc+2}, v{acc+2}, v{acc+3}")
        A(f"v_mul_f32 v{acc}, v{acc}, v{t2}")
        A(f"v_mul_f32 v{acc+2}, v{acc+2}, v{t2}")
        A(f"v_cvt_pk_bf16_f32 v{acc}, v{acc}, v{acc}")
        A(f"v_cvt_pk_bf16_f32 v{acc+2}, v{acc+2}, v{acc+2}")
        A(f"ds_write2_b32 v{aW}, v{acc}, v{acc+2} offset0:{L_W//4 % 256} offset1:{(L_W//4 + 2) % 256}" if False else f"ds_write_b32 v{aW}, v{acc} offset:{L_W}")
        A(f"ds_write_b32 v{aW}, v{acc+2} offset:{L_W+8}")
        for i in range(4):
            A(f"ds_read_b128 v[{G+4*i}:{G+4*i+3}], v{aR} offset:{L_W + 16*i}")
        A("s_waitcnt lgkmcnt(3)")
        for r in range(4):
            A(f"v_and_b32 v{X+r}, v{mk+r}, v{G}")
        for j in range(16):
            x = X + 4 * (j & 1)
            if j < 15:
                if (j + 1) % 4 == 0:
                    A(f"s_waitcnt lgkmcnt({3 - (j+1)//4})")
                xn = X + 4 * ((j + 1) & 1)
                for r in range(4):
                    A(f"v_and_b32 v{xn+r}, v{mk+r}, v{G+j+1}")
            else:
                A("s_nop 1")
            c = "0" if j == 0 else f"v[{D}:{D+3}]"
            A(f"v_mfma_f32_16x16x32_bf16 v[{D}:{D+3}], a[{4*j}:{4*j+3}], v[{x}:{x+3}], {c}")
        self.exec_mask(0xff00ff0000ff00ff)
        A(f"v_lshlrev_b32 v{t0}, 2, v1")
        A("s_nop 4")
        for r in range(4):
            A(f"ds_write_b32 v{aD}, v{D+r} offset:{L_R + 32*r}")
        self.exec_all()
        A(f"v_lshlrev_b32 v{t0}, 2, v1")
        A("s_waitcnt lgkmcnt(0)")
        A("s_barrier")
        A("s_cmp_lg_u32 s28, 0")
        A("s_cbranch_scc1 L_end")
        for i in range(8):
            A(f"ds_read_b32 v{wj+i}, v{t0} offset:{L_R + 256*i}")
        A("s_waitcnt lgkmcnt(0)")
        for i in range(4):
            A(f"v_add_f32 v{wj+2*i}, v{wj+2*i}, v{wj+2*i+1}")
        A(f"v_add_f32 v{wj}, v{wj}, v{wj+2}")
        A(f"v_add_f32 v{wj+4}, v{wj+4}, v{wj+6}")
        A(f"v_add_f32 v{wj}, v{wj}, v{wj+4}")
        A(f"buffer_store_dword v{wj}, v{t0}, s[44:47], s94 offen sc1")
        self.stamp(5)
        A("s_branch L_end")

    def roleC(self):
        A, C = self.A, self.C
        self.label("L_roleC")
        Xr = self.QS + 16
        G = RB
        H = RB + 16
        vA0 = 2
        t0, t1, t2, t3 = 4, 5, 6, 7
        sel, mk, P, X, D = 8, 12, 16, 20, 28
        A("s_and_b32 s33, s28, 1")
        A("s_lshl_b32 s33, s33, 10")
        A("s_lshr_b32 s34, s28, 1")
        A("s_lshl_b32 s35, s34, 13")
        A("s_add_u32 s35, s35, s33")
        A(f"s_add_u32 s35, s35, {WS_HP}")
        A(f"v_lshl_add_u32 v{vA0}, v1, 4, s35")
        self.emasks(mk, t0, t1, t2)
        A(f"v_and_b32 v{t0}, 3, v1")
        vals = {0: (0x0c0c0100, 0x0c0c0302), 1: (0x01000c0c, 0x03020c0c)}
        for i in range(4):
            A(f"v_mov_b32 v{sel+i}, 0x0c0c0c0c")
        for e in range(4):
            A(f"v_cmp_eq_u32 vcc, {e}, v{t0}")
            base = sel + (0 if e < 2 else 2)
            A(f"v_mov_b32 v{t1}, {hex(vals[e & 1][0])}")
            A(f"v_mov_b32 v{t2}, {hex(vals[e & 1][1])}")
            A(f"v_cndmask_b32 v{base}, v{base}, v{t1}, vcc")
            A(f"v_cndmask_b32 v{base+1}, v{base+1}, v{t2}, vcc")
        for i in range(4):
            self.unpack(H + 2 * i, H + 2 * i + 1, Xr + i)
        GG = RB + 32
        A(f"v_lshrrev_b32 v{t0}, 2, v1")
        A(f"v_lshlrev_b32 v{t0}, 11, v{t0}")
        A(f"v_and_b32 v{t1}, 3, v1")
        A(f"v_lshl_add_u32 v{t0}, v{t1}, 8, v{t0}")
        A(f"v_add_u32 v{t3}, s35, v{t0}")
        p1 = self.newlabel("C_p1"); p1d = self.newlabel("C_p1d")
        A(f"s_mov_b32 s68, {POLL_MAX}")
        A("s_mov_b64 exec, 0xffff")
        self.label(p1)
        A(f"buffer_load_dword v{t0}, v{t3}, s[44:47], 0 offen sc1")
        A("s_waitcnt vmcnt(0)")
        A(f"v_cmp_eq_u32 vcc, -1, v{t0}")
        A("s_sub_u32 s68, s68, 1")
        A("s_cmp_eq_u32 s68, 0")
        A(f"s_cbranch_scc1 {p1d}")
        A("s_bcnt1_i32_b64 s96, vcc")
        A(f"s_cmp_le_u32 s96, {self.cthr}")
        A(f"s_cbranch_scc1 {p1d}")
        A("s_sleep 2")
        A(f"s_branch {p1}")
        self.label(p1d)
        A("s_mov_b32 s97, 4096")
        def loads():
            A(f"buffer_load_dwordx4 v[{GG}:{GG+3}], v{vA0}, s[44:47], 0 offen sc1")
            A(f"buffer_load_dwordx4 v[{GG+4}:{GG+7}], v{vA0}, s[44:47], 0 offen offset:2048 sc1")
            A(f"buffer_load_dwordx4 v[{GG+8}:{GG+11}], v{vA0}, s[44:47], s97 offen sc1")
            A(f"buffer_load_dwordx4 v[{GG+12}:{GG+15}], v{vA0}, s[44:47], s97 offen offset:2048 sc1")
        self.gather_pipe(loads, 4, list(range(GG, GG + 16)), t0, self.pp, self.pgap, name="C")
        self.stamp(4)
        for h in range(2):
            A(f"v_pk_add_f32 v[{G+2*h}:{G+2*h+1}], v[{GG+2*h}:{GG+2*h+1}], v[{GG+4+2*h}:{GG+4+2*h+1}]")
            A(f"v_pk_add_f32 v[{G+8+2*h}:{G+8+2*h+1}], v[{GG+8+2*h}:{GG+8+2*h+1}], v[{GG+12+2*h}:{GG+12+2*h+1}]")
        for h in range(2):
            A(f"v_pk_add_f32 v[{G+2*h}:{G+2*h+1}], v[{G+2*h}:{G+2*h+1}], v[{G+8+2*h}:{G+8+2*h+1}]")
        A("s_lshl_b32 s34, s34, 11")
        A("s_add_u32 s34, s34, s33")
        A(f"v_lshl_add_u32 v{t0}, v1, 4, s34")
        A(f"ds_write_b128 v{t0}, v[{G}:{G+3}] offset:{L_R}")
        A(f"v_lshlrev_b32 v{t0}, 5, v1")
        A("s_waitcnt lgkmcnt(0)")
        A("s_barrier")
        A(f"ds_read_b128 v[{G}:{G+3}], v{t0} offset:{L_R}")
        A(f"ds_read_b128 v[{G+4}:{G+7}], v{t0} offset:{L_R+16}")
        A(f"ds_read_b128 v[{G+8}:{G+11}], v{t0} offset:{L_R+2048}")
        A(f"ds_read_b128 v[{G+12}:{G+15}], v{t0} offset:{L_R+2048+16}")
        A("s_waitcnt lgkmcnt(0)")
        for i in range(8):
            A(f"v_add_f32 v{G+i}, v{G+i}, v{G+8+i}")
        for i in range(0, 8, 2):
            A(f"v_cvt_pk_bf16_f32 v{t0}, v{G+i}, v{G+i+1}")
            self.unpack(G + i, G + i + 1, t0)
        for i in range(8):
            A(f"v_add_f32 v{H+i}, v{H+i}, v{G+i}")
        for i in range(0, 8, 2):
            A(f"v_cvt_pk_bf16_f32 v{t0}, v{H+i}, v{H+i+1}")
            self.unpack(H + i, H + i + 1, t0)
        self.layernorm(H, 8, t0, hex(f32bits(1.0 / 512)))
        self.stamp(7)
        for i in range(4):
            A(f"v_cvt_pk_bf16_f32 v{G+i}, v{H+2*i}, v{H+2*i+1}")
        A("s_lshl_b32 s34, s28, 6")
        A(f"v_lshrrev_b32 v{t0}, 2, v1")
        A(f"v_lshl_add_u32 v{t0}, v{t0}, 2, s34")
        for i in range(4):
            A(f"ds_bpermute_b32 v{P+i}, v{t0}, v{G+i}")
        A("s_waitcnt lgkmcnt(0)")
        def mkx(j):
            x = X + 2 * (j & 1)
            A(f"v_perm_b32 v{x}, v{P+(j>>1)}, v{P+(j>>1)}, v{sel+(j&1)}")
            A(f"v_perm_b32 v{x+1}, v{P+(j>>1)}, v{P+(j>>1)}, v{sel+2+(j&1)}")
        mkx(0)
        for j in range(8):
            x = X + 2 * (j & 1)
            if j < 7:
                mkx(j + 1)
            else:
                A("s_nop 1")
            for mat in range(2):
                for hf in range(2):
                    d = D + (mat * 2 + hf) * 4
                    c = "0" if j == 0 else f"v[{d}:{d+3}]"
                    a = 32 * mat + 4 * j + 2 * hf
                    A(f"v_mfma_f32_16x16x16_bf16 v[{d}:{d+3}], a[{a}:{a+1}], v[{x}:{x+1}], {c}")
        A("s_lshl_b32 s34, s28, 4")
        A(f"v_and_b32 v{t0}, 3, v1")
        A(f"v_lshlrev_b32 v{t0}, 6, v{t0}")
        A(f"v_lshrrev_b32 v{t1}, 4, v1")
        A(f"v_lshl_add_u32 v{t0}, v{t1}, 2, v{t0}")
        A(f"v_add_u32 v{t0}, s34, v{t0}")
        self.exec_mask(0xf0000f0000f0000f)
        A("s_nop 3")
        for mat in range(2):
            for hf in range(2):
                for r in range(4):
                    off = L_G + (mat * 32 + 8 * r + 4 * hf) * 64
                    A(f"ds_write_b32 v{t0}, v{D+(mat*2+hf)*4+r} offset:{off}")
        self.exec_all()
        A(f"v_lshlrev_b32 v{t0}, 6, v1")
        A("s_waitcnt lgkmcnt(0)")
        A("s_barrier")
        self.stamp(8)
        for i in range(4):
            A(f"ds_read_b128 v[{G+4*i}:{G+4*i+3}], v{t0} offset:{L_G + 16*i}")
        A("s_waitcnt lgkmcnt(0)")
        n = 16
        while n > 1:
            n //= 2
            for i in range(n):
                A(f"v_add_f32 v{G+i}, v{G+i}, v{G+n+i}")
        self.bf16_round1(G, G)
        A(f"v_mov_b32 v{t1}, v{G}")
        A("s_nop 1")
        A(f"v_permlane32_swap_b32 v{G}, v{t1}")
        A("s_nop 0")
        A(f"v_mul_f32 v{t0}, s63, v{G}")
        A(f"v_exp_f32 v{t0}, v{t0}")
        A("s_nop 0")
        A(f"v_add_f32 v{t0}, 1.0, v{t0}")
        A(f"v_rcp_f32 v{t2}, v{t0}")
        A("s_nop 0")
        self.bf16_round1(t2, t2)
        A(f"v_mul_f32 v{t2}, v{t2}, v{t1}")
        A(f"v_cvt_pk_bf16_f32 v{t2}, v{t2}, v{t2}")
        A(f"v_lshrrev_b32 v{t0}, 4, v1")
        A(f"v_lshlrev_b32 v{t0}, 5, v{t0}")
        for j in range(8):
            A(f"ds_bpermute_b32 v{G+j}, v{t0}, v{t2} offset:{4*j}")
        A(f"s_sub_u32 s33, s3, {C0}")
        A("s_lshl_b32 s33, s33, 11")
        A("s_lshl_b32 s34, s28, 9")
        A("s_add_u32 s33, s33, s34")
        A(f"s_add_u32 s33, s33, {WS_OP}")
        A(f"v_lshrrev_b32 v{t0}, 4, v1")
        A(f"v_lshlrev_b32 v{t0}, 7, v{t0}")
        A(f"v_and_b32 v{t1}, 7, v1")
        A(f"v_lshl_add_u32 v{t0}, v{t1}, 4, v{t0}")
        A("s_waitcnt lgkmcnt(0)")
        for r in range(4):
            A(f"v_and_b32 v{X+r}, v{mk+r}, v{G}")
        for j in range(8):
            x = X + 4 * (j & 1)
            if j < 7:
                xn = X + 4 * ((j + 1) & 1)
                for r in range(4):
                    A(f"v_and_b32 v{xn+r}, v{mk+r}, v{G+j+1}")
            else:
                A("s_nop 1")
            c = "0" if j == 0 else f"v[{D}:{D+3}]"
            A(f"v_mfma_f32_16x16x32_bf16 v[{D}:{D+3}], a[{64+4*j}:{64+4*j+3}], v[{x}:{x+3}], {c}")
        self.exec_mask(0x00ff00ff00ff00ff)
        A("s_nop 5")
        A(f"buffer_store_dwordx4 v[{D}:{D+3}], v{t0}, s[44:47], s33 offen sc1")
        self.exec_all()
        self.stamp(5)
        A("s_branch L_end")

    def roleE(self):
        A, C = self.A, self.C
        self.label("L_roleE")
        a, hp, xr = RB, RB + 8, RB + 10
        vA0, vA1, vA2 = 2, 3, 4
        t0, t1, t2 = 6, 7, 8
        A(f"s_sub_u32 s33, s3, {E0}")
        A("s_lshl_b32 s33, s33, 2")
        A("s_add_u32 s33, s33, s28")
        A("s_lshr_b32 s34, s33, 2")
        A("s_lshl_b32 s34, s34, 5")
        A("s_and_b32 s35, s33, 3")
        A("s_lshl_b32 s35, s35, 1")
        A("s_add_u32 s34, s34, s35")
        A(f"v_lshrrev_b32 v{t0}, 4, v1")
        A(f"v_lshlrev_b32 v{t0}, 3, v{t0}")
        A(f"v_add_u32 v{t0}, s34, v{t0}")
        A(f"v_lshlrev_b32 v{vA2}, 1, v{t0}")
        self.srd(56, 4, None, 1024)
        A(f"buffer_load_dword v{xr}, v{vA2}, s[56:59], 0 offen")
        A(f"v_and_b32 v{t1}, 7, v1")
        A(f"v_lshlrev_b32 v{t1}, 11, v{t1}")
        A(f"v_lshl_add_u32 v{vA1}, v{t0}, 2, v{t1}")
        A(f"v_add_u32 v{vA1}, {WS_HP}, v{vA1}")
        def loads_hp():
            A(f"buffer_load_dwordx2 v[{hp}:{hp+1}], v{vA1}, s[44:47], 0 offen sc1")
        self.gather_loop(loads_hp, [hp, hp + 1], t0, name="EH")
        for ctrl in ("quad_perm:[1,0,3,2]", "quad_perm:[2,3,0,1]", "row_half_mirror"):
            A("s_nop 1")
            self.dpp("v_add_f32", hp, hp, hp, ctrl)
            self.dpp("v_add_f32", hp + 1, hp + 1, hp + 1, ctrl)
        A(f"v_cvt_pk_bf16_f32 v{t0}, v{hp}, v{hp+1}")
        self.unpack(hp, hp + 1, t0)
        self.unpack(t0, t1, xr)
        A(f"v_add_f32 v{hp}, v{hp}, v{t0}")
        A(f"v_add_f32 v{hp+1}, v{hp+1}, v{t1}")
        A(f"v_cvt_pk_bf16_f32 v{t0}, v{hp}, v{hp+1}")
        self.unpack(hp, hp + 1, t0)
        A("s_lshl_b32 s35, s33, 5")
        A(f"s_add_u32 s35, s35, {WS_OP}")
        A(f"v_lshlrev_b32 v{vA0}, 11, v1")
        A(f"v_add_u32 v{vA0}, s35, v{vA0}")
        self.srd(52, 22, None, 1024)
        ga_ = RB + 16
        for i in range(8):
            A(f"v_mov_b32 v{ga_+i}, 0")
        def loads_op():
            A(f"buffer_load_dwordx4 v[{ga_}:{ga_+3}], v{vA0}, s[44:47], 0 offen sc1")
            A(f"buffer_load_dwordx4 v[{ga_+4}:{ga_+7}], v{vA0}, s[44:47], 0 offen offset:16 sc1")
        self.gather_pipe(loads_op, 2, list(range(ga_, ga_ + 8)), t0, self.pp, self.pgap, active_mask=(1 << NC) - 1, name="EO")
        self.stamp(4)
        for i in range(8):
            A(f"v_mov_b32 v{a+i}, v{ga_+i}")
        for e in range(2):
            for r in range(2):
                A(f"v_permlane32_swap_b32 v{a+4*e+r}, v{a+4*e+r+2}")
        A("s_nop 0")
        for e in range(2):
            for r in range(2):
                A(f"v_add_f32 v{a+4*e+r}, v{a+4*e+r}, v{a+4*e+r+2}")
        A("s_nop 1")
        for e in range(2):
            A(f"v_permlane16_swap_b32 v{a+4*e}, v{a+4*e+1}")
        A("s_nop 0")
        for e in range(2):
            A(f"v_add_f32 v{a+4*e}, v{a+4*e}, v{a+4*e+1}")
        self.row_allreduce("v_add_f32", [a, a + 4])
        A(f"v_cvt_pk_bf16_f32 v{t0}, v{a}, v{a+4}")
        self.unpack(a, a + 4, t0)
        A(f"v_add_f32 v{a}, v{a}, v{hp}")
        A(f"v_add_f32 v{a+4}, v{a+4}, v{hp+1}")
        A(f"v_cvt_pk_bf16_f32 v{t0}, v{a}, v{a+4}")
        self.exec_mask(0x0001000100010001)
        A(f"buffer_store_dword v{t0}, v{vA2}, s[52:55], 0 offen")
        self.exec_all()
        self.stamp(5)
        A("s_cmp_lg_u32 s33, 0")
        A("s_cbranch_scc1 L_end")
        C("epoch update")
        A("s_add_u32 s29, s29, 1")
        A(f"v_mov_b32 v{t0}, s29")
        A(f"v_mov_b32 v{t1}, {WS_EPOCH}")
        A("s_mov_b64 exec, 1")
        A(f"buffer_store_dword v{t0}, v{t1}, s[44:47], 0 offen")
        A("s_branch L_end")


if __name__ == "__main__":
    import argparse
    ap = argparse.ArgumentParser()
    ap.add_argument("-o", default="cdna_kernels/" + KN + ".s")
    ap.add_argument("--nr", type=int, default=3)
    ap.add_argument("--ns", type=int, default=5)
    ap.add_argument("--th", type=int, default=3)
    ap.add_argument("--ps", type=int, default=4)
    ap.add_argument("--stamps", action="store_true")
    ap.add_argument("--noq", type=int, default=0)
    ap.add_argument("--notail", action="store_true")
    ap.add_argument("--sizes", default="122,130,130,130")
    ap.add_argument("--early", default="B")
    ap.add_argument("--chunks", default="5")
    ap.add_argument("--th0", type=int, default=0)
    ap.add_argument("--pp", type=int, default=3)
    ap.add_argument("--pgap", type=int, default=6)
    ap.add_argument("--cthr", type=int, default=4)
    ap.add_argument("--gpol", default="nt")
    ap.add_argument("--qpol", default="nt")
    ap.add_argument("--n0", type=int, default=112)
    ap.add_argument("--p1", type=int, default=76)
    ap.add_argument("--p2", type=int, default=96)
    ap.add_argument("--biasc", type=float, default=6.0)
    ap.add_argument("--gain", type=float, default=1.0)
    ap.add_argument("--nobal", action="store_true")
    ap.add_argument("--qrot", type=int, default=0)
    ap.add_argument("--amode", type=int, default=0)
    ap.add_argument("--arot", type=int, default=0)
    ap.add_argument("--hst", default="sc1")
    ap.add_argument("--hld", default="sc1")
    ap.add_argument("--hrot", type=int, default=0)
    a = ap.parse_args()
    g = Gen(nr=a.nr, ns=a.ns, th=a.th, ps=a.ps, stamps=a.stamps, noq=a.noq, notail=a.notail,
            sizes=tuple(map(int, a.sizes.split(","))), early=a.early, chunks=tuple(map(int, a.chunks.split(","))), th0=a.th0, pp=a.pp, pgap=a.pgap, cthr=a.cthr, gpol=('' if a.gpol == 'none' else ' ' + a.gpol), qpol=('' if a.qpol == 'none' else ' ' + a.qpol),
            n0=a.n0, p1=a.p1, p2=a.p2, biasc=a.biasc, gain=a.gain, bal=not a.nobal, qrot=a.qrot, hrot=a.hrot, amode=a.amode, arot=a.arot)
    txt = g.gen()
    if a.hst != "sc1" or a.hld != "sc1":
        out = []
        for ln in txt.split("\n"):
            if ln.rstrip().endswith(" sc1"):
                if "buffer_store" in ln:
                    ln = ln.rstrip()[:-3] + a.hst.replace("_", " ")
                elif "buffer_load" in ln:
                    ln = ln.rstrip()[:-3] + a.hld.replace("_", " ")
            out.append(ln)
        txt = "\n".join(out)
    open(a.o, "w").write(txt)
    print("wrote", a.o)
```

```python
import sys, struct

KN = "sequential_preLN__gqa_block_cached__glu_gated_glu__decode"

def f32bits(x):
    return struct.unpack("<I", struct.pack("<f", x))[0]

WS_EPOCH = 0
WS_T     = 4096
WS_PML   = 8192
WS_HP    = 16384
WS_Q     = 32768
WS_PO    = 131072
WS_OP    = WS_PO + 524288
WS_Q1    = 786432
WS_STAMP = 1 << 20
WS_SIZE  = 2 << 20
QR = 4
INV = 0x40000000
WS_CTR2 = 1 << 20 | 1 << 19

L_Q  = 0
L_O  = 1024
L_M  = 9216
L_L  = 10240
L_W  = 11264
L_R  = 13312
L_G  = 17408
L_QP = 21504
L_CTR = 22528
L_EXT = 22536
L_QF = 22544
LDS_BYTES = 22592

NB, NC, NE_WG = 64, 56, 16
B0, C0, E0 = 0, 64, 120
POLL_MAX = 200000

vKo, vVo = 2, 3
vQ, vS, vO = 4, 20, 24
vM, vL = 32, 33
vMk0, vMk1 = 34, 35
vT0, vT1 = 36, 37
vX = 38
vF, vNM = 42, 43
vTk = 44
vIC = 48
vZ = 50
vSt = 51
RB = 56


class Gen:
    def __init__(self, nr=3, ns=5, th=3, stamps=False, ps=10, noq=0, notail=False,
                 sizes=(122, 130, 130, 130), early="B", chunks=(2, 2, 1), th0=None, pp=3, pgap=6, cthr=4, gpol=' nt', qpol=' nt', n0=112, p1=76, p2=96, biasc=6.0, gain=1.0, bal=True, qrot=0, hrot=0, amode=0, arot=0):
        self.L = []
        self.nr, self.ns, self.th, self.ps = nr, ns, th, ps
        self.stamps = stamps
        self.noq = noq
        self.notail = notail
        self.sizes = sizes
        self.early = early
        self.chunks = chunks
        self.qrot = qrot
        self.amode, self.arot = amode, arot
        self.hrot = hrot
        self.n0, self.p1, self.p2, self.biasc, self.gain, self.bal = n0, p1, p2, biasc, gain, bal
        self.gpol, self.qpol = gpol, qpol
        self.pp, self.pgap, self.cthr = pp, pgap, cthr
        self.th0 = th0 if th0 else th
        assert sum(sizes) == 512 and sum(chunks) == ns
        self.lbl = 0
        self.QS = RB + nr * 32
        self.NV = self.QS + 24

    def A(self, s): self.L.append("  " + s)
    def C(self, s): self.L.append("  ; " + s)
    def label(self, name): self.L.append(name + ":")
    def newlabel(self, p="L"):
        self.lbl += 1
        return f"{p}_{self.lbl}"

    def srd(self, d, base_lo, off_sgpr, size):
        A = self.A
        if off_sgpr is not None:
            A(f"s_add_u32 s{d}, s{base_lo}, s{off_sgpr}")
            A(f"s_addc_u32 s{d+1}, s{base_lo+1}, 0")
        else:
            A(f"s_mov_b32 s{d}, s{base_lo}")
            A(f"s_mov_b32 s{d+1}, s{base_lo+1}")
        A(f"s_mov_b32 s{d+2}, {size}")
        A(f"s_mov_b32 s{d+3}, 0x00020000")

    def exec_all(self): self.A("s_mov_b64 exec, -1")
    def exec_mask(self, m):
        lo, hi = m & 0xffffffff, m >> 32
        self.A(f"s_mov_b32 exec_lo, {hex(lo)}")
        self.A(f"s_mov_b32 exec_hi, {hex(hi)}")

    def dpp(self, op, d, s0, s1, ctrl):
        self.A(f"{op}_dpp v{d}, v{s0}, v{s1} {ctrl} row_mask:0xf bank_mask:0xf")

    def row_allreduce(self, op, regs):
        for ctrl in ("quad_perm:[1,0,3,2]", "quad_perm:[2,3,0,1]", "row_half_mirror", "row_mirror"):
            if len(regs) < 3:
                self.A("s_nop 1")
            for r in regs:
                self.dpp(op, r, r, r, ctrl)

    def cross_rows_allreduce(self, op, r, t, do16=True, do32=True):
        A = self.A
        for sw, en in (("v_permlane32_swap_b32", do32), ("v_permlane16_swap_b32", do16)):
            if not en:
                continue
            A(f"v_mov_b32 v{t}, v{r}")
            A("s_nop 1")
            A(f"{sw} v{r}, v{t}")
            A("s_nop 0")
            A(f"{op} v{r}, v{r}, v{t}")

    def wave_allreduce(self, op, r, t):
        self.row_allreduce(op, [r])
        self.cross_rows_allreduce(op, r, t)

    def bf16_round1(self, d, s):
        self.A(f"v_cvt_pk_bf16_f32 v{d}, v{s}, v{s}")
        self.A(f"v_and_b32 v{d}, s60, v{d}")

    def unpack(self, lo, hi, p):
        self.A(f"v_lshlrev_b32 v{lo}, 16, v{p}")
        self.A(f"v_and_b32 v{hi}, s60, v{p}")

    def stamp(self, idx):
        if not self.stamps:
            return
        A = self.A
        A("s_memrealtime s[98:99]")
        A("s_waitcnt lgkmcnt(0)")
        A(f"s_mul_i32 s100, s2, {5*64}")
        A("s_lshl_b32 s101, s28, 6")
        A("s_add_u32 s100, s100, s101")
        A(f"s_add_u32 s100, s100, {WS_STAMP + idx*4}")
        A(f"v_mov_b32 v{vSt}, s98")
        A(f"v_mov_b32 v{vSt+1}, s100")
        A("s_mov_b64 s[98:99], exec")
        A("s_mov_b64 exec, 1")
        A(f"buffer_store_dword v{vSt}, v{vSt+1}, s[44:47], 0 offen")
        A("s_mov_b64 exec, s[98:99]")

    def layernorm(self, X, n, T, cnt_inv, Y=None, ny=None):
        A = self.A
        t0, t1, t2, t3 = T, T + 1, T + 2, T + 3
        A(f"v_add_f32 v{t0}, v{X}, v{X+1}")
        for i in range(2, n):
            A(f"v_add_f32 v{t0}, v{t0}, v{X+i}")
        self.wave_allreduce("v_add_f32", t0, t1)
        A(f"v_mul_f32 v{t0}, {cnt_inv}, v{t0}")
        A(f"v_sub_f32 v{t1}, v{X}, v{t0}")
        A(f"v_mul_f32 v{t2}, v{t1}, v{t1}")
        for i in range(1, n):
            A(f"v_sub_f32 v{t1}, v{X+i}, v{t0}")
            A(f"v_fmac_f32 v{t2}, v{t1}, v{t1}")
        self.wave_allreduce("v_add_f32", t2, t1)
        A(f"v_mul_f32 v{t2}, {cnt_inv}, v{t2}")
        self.bf16_round1(t0, t0)
        self.bf16_round1(t2, t2)
        A(f"v_add_f32 v{t2}, {hex(f32bits(1e-5))}, v{t2}")
        self.bf16_round1(t2, t2)
        A(f"v_sqrt_f32 v{t2}, v{t2}")
        A("s_nop 0")
        self.bf16_round1(t2, t2)
        A(f"v_rcp_f32 v{t3}, v{t2}")
        if Y is not None:
            X, n = Y, ny
        for i in range(n):
            A(f"v_sub_f32 v{X+i}, v{X+i}, v{t0}")
        for i in range(0, n, 2):
            A(f"v_cvt_pk_bf16_f32 v{t1}, v{X+i}, v{X+i+1}")
            self.unpack(X + i, X + i + 1, t1)
        for i in range(n):
            A(f"v_mul_f32 v{t1}, v{X+i}, v{t3}")
            A(f"v_fma_f32 v{X+i}, -v{t1}, v{t2}, v{X+i}")
            A(f"v_fma_f32 v{X+i}, v{X+i}, v{t3}, v{t1}")
        for i in range(0, n, 2):
            A(f"v_cvt_pk_bf16_f32 v{t1}, v{X+i}, v{X+i+1}")
            self.unpack(X + i, X + i + 1, t1)

    def gather_loop(self, loads, regs, vt, active_mask=None, name="G"):
        A = self.A
        lp = self.newlabel(name + "_poll")
        dn = self.newlabel(name + "_done")
        if active_mask is None:
            A("s_mov_b64 s[66:67], -1")
        else:
            A(f"s_mov_b32 s66, {hex(active_mask & 0xffffffff)}")
            A(f"s_mov_b32 s67, {hex(active_mask >> 32)}")
        A(f"s_mov_b32 s68, {POLL_MAX}")
        self.label(lp)
        A("s_mov_b64 exec, s[66:67]")
        loads()
        A("s_waitcnt vmcnt(0)")
        rs = list(regs)
        if len(rs) == 2:
            A(f"v_max_u32 v{vt}, v{rs[0]}, v{rs[1]}")
        else:
            A(f"v_max3_u32 v{vt}, v{rs[0]}, v{rs[1]}, v{rs[2]}")
            i = 3
            while i < len(rs):
                if i + 1 < len(rs):
                    A(f"v_max3_u32 v{vt}, v{vt}, v{rs[i]}, v{rs[i+1]}")
                    i += 2
                else:
                    A(f"v_max_u32 v{vt}, v{vt}, v{rs[i]}")
                    i += 1
        A(f"v_cmp_eq_u32 vcc, -1, v{vt}")
        A("s_sub_u32 s68, s68, 1")
        A("s_cmp_eq_u32 s68, 0")
        A(f"s_cbranch_scc1 {dn}")
        A("s_mov_b64 s[66:67], vcc")
        A(f"s_cbranch_vccz {dn}")
        A("s_sleep 1")
        A(f"s_branch {lp}")
        self.label(dn)
        self.exec_all()

    def maxreduce(self, vt, rs):
        A = self.A
        rs = list(rs)
        if len(rs) == 1:
            A(f"v_mov_b32 v{vt}, v{rs[0]}")
        elif len(rs) == 2:
            A(f"v_max_u32 v{vt}, v{rs[0]}, v{rs[1]}")
        else:
            A(f"v_max3_u32 v{vt}, v{rs[0]}, v{rs[1]}, v{rs[2]}")
            i = 3
            while i < len(rs):
                if i + 1 < len(rs):
                    A(f"v_max3_u32 v{vt}, v{vt}, v{rs[i]}, v{rs[i+1]}")
                    i += 2
                else:
                    A(f"v_max_u32 v{vt}, v{vt}, v{rs[i]}")
                    i += 1

    def gather_pipe(self, loads, nload, regs, vt, P, gap, active_mask=None, name="GP", preinit=True):
        A = self.A
        lp = self.newlabel(name + "_poll")
        dn = self.newlabel(name + "_done")
        if active_mask is None:
            A("s_mov_b64 s[66:67], -1")
        else:
            A(f"s_mov_b32 s66, {hex(active_mask & 0xffffffff)}")
            A(f"s_mov_b32 s67, {hex(active_mask >> 32)}")
        A("s_mov_b64 exec, s[66:67]")
        if preinit:
            for r in regs:
                A(f"v_mov_b32 v{r}, -1")
        A(f"s_mov_b32 s68, {POLL_MAX * P}")
        A("s_waitcnt vmcnt(0)")
        for k in range(P - 1):
            loads()
            A(f"s_sleep {gap}")
        self.label(lp)
        loads()
        A(f"s_waitcnt vmcnt({nload * (P - 1)})")
        self.maxreduce(vt, regs)
        A(f"v_cmp_eq_u32 vcc, -1, v{vt}")
        A("s_sub_u32 s68, s68, 1")
        A("s_cmp_eq_u32 s68, 0")
        A(f"s_cbranch_scc1 {dn}")
        A("s_mov_b64 exec, vcc")
        A(f"s_cbranch_vccnz {lp}")
        self.label(dn)
        self.exec_all()

    def tile_body(self, pre, kb, vb, wait_k, wait_v, after_qk, after_pv):
        A = self.A
        if wait_k is not None:
            A(f"s_waitcnt vmcnt({wait_k})")
        for m in range(4):
            k = kb + 4 * m
            c = "0" if m == 0 else f"v[{vS}:{vS+3}]"
            A(f"v_mfma_f32_16x16x32_bf16 v[{vS}:{vS+3}], {pre}[{k}:{k+3}], v[{vQ+4*m}:{vQ+4*m+3}], {c}")
        n = after_qk()
        if n < 8:
            A(f"s_nop {7 - n}")
        A(f"v_cvt_pk_bf16_f32 v{vT0}, v{vS}, v{vS+1}")
        A(f"v_cvt_pk_bf16_f32 v{vT1}, v{vS+2}, v{vS+3}")
        self.unpack(vS, vS + 1, vT0)
        self.unpack(vS + 2, vS + 3, vT1)
        for r in range(4):
            A(f"v_mul_f32 v{vS+r}, s61, v{vS+r}")
        A(f"v_cvt_pk_bf16_f32 v{vT0}, v{vS}, v{vS+1}")
        A(f"v_cvt_pk_bf16_f32 v{vT1}, v{vS+2}, v{vS+3}")
        self.unpack(vS, vS + 1, vT0)
        self.unpack(vS + 2, vS + 3, vT1)
        A(f"v_max3_f32 v{vT0}, v{vS}, v{vS+1}, v{vS+2}")
        A(f"v_max3_f32 v{vT0}, v{vT0}, v{vS+3}, v{vM}")
        self.cross_rows_allreduce("v_max_f32", vT0, vT1)
        A(f"v_sub_f32 v{vF}, v{vM}, v{vT0}")
        A(f"v_mul_f32 v{vNM}, s63, v{vT0}")
        A(f"v_mul_f32 v{vF}, s62, v{vF}")
        A(f"v_mov_b32 v{vM}, v{vT0}")
        A(f"v_exp_f32 v{vF}, v{vF}")
        for r in range(4):
            A(f"v_fma_f32 v{vS+r}, v{vS+r}, s62, v{vNM}")
        for r in range(4):
            A(f"v_exp_f32 v{vS+r}, v{vS+r}")
        for i in range(8):
            A(f"v_mul_f32 v{vO+i}, v{vF}, v{vO+i}")
        A(f"v_add_f32 v{vT0}, v{vS}, v{vS+1}")
        A(f"v_add_f32 v{vT1}, v{vS+2}, v{vS+3}")
        A(f"v_add_f32 v{vT0}, v{vT0}, v{vT1}")
        A(f"v_fma_f32 v{vL}, v{vL}, v{vF}, v{vT0}")
        for r in range(4):
            A(f"v_cvt_pk_bf16_f32 v{vS+r}, v{vS+r}, v{vS+r}")
        A(f"v_and_b32 v{vX}, v{vMk0}, v{vS}")
        A(f"v_and_b32 v{vX+1}, v{vMk1}, v{vS}")
        if wait_v is not None:
            A(f"s_waitcnt vmcnt({wait_v})")
        for r in range(4):
            x = vX + 2 * (r & 1)
            if r < 3:
                xn = vX + 2 * ((r + 1) & 1)
                A(f"v_and_b32 v{xn}, v{vMk0}, v{vS+r+1}")
                A(f"v_and_b32 v{xn+1}, v{vMk1}, v{vS+r+1}")
            v = vb + 4 * r
            A(f"v_mfma_f32_16x16x16_bf16 v[{vO}:{vO+3}], {pre}[{v}:{v+1}], v[{x}:{x+1}], v[{vO}:{vO+3}]")
            A(f"v_mfma_f32_16x16x16_bf16 v[{vO+4}:{vO+7}], {pre}[{v+2}:{v+3}], v[{x}:{x+1}], v[{vO+4}:{vO+7}]")
        after_pv()

    def tk2off(self):
        A = self.A
        if self.amode == 0:
            A("s_lshl_b32 s34, s33, 12")
            A("s_add_u32 s34, s34, s81")
        elif self.amode == 1:
            A("s_lshr_b32 s34, s33, 2")
            A("s_lshl_b32 s34, s34, 16")
            A("s_and_b32 s35, s33, 3")
            A("s_lshl_b32 s35, s35, 12")
            A("s_add_u32 s34, s34, s35")
            A("s_add_u32 s34, s34, s81")
        elif self.amode in (4, 5):
            lg = (self.arot % 100).bit_length() - 1
            if self.amode == 5:
                A("s_add_u32 s34, s33, s95")
                A("s_and_b32 s34, s34, 127")
                A("s_lshr_b32 s34, s34, 2")
            else:
                A("s_lshr_b32 s34, s33, 2")
            A(f"s_lshl_b32 s34, s34, {14 + lg}")
            A("s_and_b32 s35, s33, 3")
            A(f"s_lshl_b32 s35, s35, {12 + (lg if self.arot >= 100 else 0)}")
            A("s_add_u32 s34, s34, s35")
            A("s_add_u32 s34, s34, s81")
        elif self.amode == 2:
            A("s_add_u32 s34, s33, s95")
            A("s_and_b32 s34, s34, 127")
            A("s_lshl_b32 s34, s34, 12")
            A("s_add_u32 s34, s34, s81")
        elif self.amode == 3:
            A("s_xor_b32 s34, s33, s95")
            A("s_and_b32 s34, s34, 127")
            A("s_lshl_b32 s34, s34, 12")
            A("s_add_u32 s34, s34, s81")

    def loadK(self, pre, kb, soff):
        for m in range(4):
            r = kb + 4 * m
            self.A(f"buffer_load_dwordx4 {pre}[{r}:{r+3}], v{vKo}, s[36:39], s{soff} offen offset:{m*64} nt")

    def loadV(self, pre, vb, soff):
        for m in range(4):
            r = vb + 4 * m
            self.A(f"buffer_load_dwordx4 {pre}[{r}:{r+3}], v{vVo}, s[40:43], s{soff} offen offset:{m*1024} nt")

    def gen(self):
        A, C = self.A, self.C
        NR, NS, TH = self.nr, self.ns, self.th
        self.L.append(f"; @launch grid=(256,1,1) block=(256,1,1) lds={LDS_BYTES}")
        self.L.append('.amdgcn_target "amdgcn-amd-amdhsa--gfx950"')
        self.L.append(".text")
        self.L.append(f".globl {KN}_kernel")
        self.L.append(".p2align 8")
        self.L.append(f".type {KN}_kernel,@function")
        self.label(f"{KN}_kernel")
        A("s_cmp_ge_u32 s2, 256")
        A("s_cbranch_scc1 L_end")
        A("s_load_dwordx16 s[4:19], s[0:1], 0")
        A("s_load_dwordx8 s[20:27], s[0:1], 64")
        if self.bal:
            A("s_memrealtime s[96:97]")
        A("v_lshrrev_b32 v2, 6, v0")
        A("v_and_b32 v1, 63, v0")
        A("s_mov_b32 s60, 0xffff0000")
        A("v_readfirstlane_b32 s28, v2")
        A(f"s_mov_b32 s61, {hex(f32bits(128 ** -0.5))}")
        A(f"s_mov_b32 s62, {hex(f32bits(1.4426950408889634))}")
        A(f"s_mov_b32 s63, {hex(f32bits(-1.4426950408889634))}")
        A("s_lshr_b32 s33, s2, 3")
        A("s_lshr_b32 s31, s33, 2")
        if self.hrot:
            A(f"s_add_u32 s31, s31, {self.hrot}")
            A("s_and_b32 s31, s31, 7")
        A("s_and_b32 s33, s33, 3")
        A("s_and_b32 s32, s2, 7")
        A("s_lshl_b32 s32, s32, 2")
        A("s_add_u32 s32, s32, s33")
        A("s_lshl_b32 s3, s33, 6")
        A("s_and_b32 s34, s2, 7")
        A("s_lshl_b32 s34, s34, 3")
        A("s_add_u32 s3, s3, s34")
        A("s_add_u32 s3, s3, s31")
        A(f"v_lshlrev_b32 v{vVo}, 4, v1")
        A(f"v_and_b32 v{vT0}, 3, v1")
        A(f"v_lshlrev_b32 v{vT0}, 2, v{vT0}")
        A(f"v_bfe_u32 v{vT1}, v1, 2, 2")
        A(f"v_add_u32 v{vT0}, v{vT0}, v{vT1}")
        A(f"v_lshlrev_b32 v{vT0}, 8, v{vT0}")
        A(f"v_lshrrev_b32 v{vT1}, 4, v1")
        A(f"v_lshl_add_u32 v{vKo}, v{vT1}, 4, v{vT0}")
        A(f"v_mov_b32 v{vZ}, 0")
        A(f"v_lshlrev_b32 v{vNM}, 5, v1")
        A(f"v_lshrrev_b32 v{vIC}, 4, v1")
        A(f"v_lshlrev_b32 v{vIC}, 9, v{vIC}")
        A(f"v_and_b32 v{vIC+1}, 15, v1")
        A(f"v_lshl_add_u32 v{vIC}, v{vIC+1}, 3, v{vIC}")
        A("s_mov_b32 s72, 0")
        A(f"v_mov_b32 v{self.QS+4}, 0")
        A(f"v_mov_b32 v{self.QS+5}, 0")
        A("s_mov_b32 s73, 0")
        A("s_waitcnt lgkmcnt(0)")
        A("s_load_dword s29, s[26:27], 0")
        self.srd(44, 26, None, WS_SIZE)
        self.stamp(0)
        if not self.noq:
            self.qphase_issue()
            self.sentinel_init()
        if self.amode in (4, 5):
            G = self.arot % 100
            lg = G.bit_length() - 1
            A("s_lshr_b32 s33, s2, 3")
            A(f"s_lshr_b32 s34, s33, {lg}")
            A("s_and_b32 s35, s2, 7")
            A(f"s_lshl_b32 s35, s35, {5 - lg}")
            A("s_add_u32 s34, s34, s35")
            A("s_and_b32 s31, s34, 7")
            A("s_lshr_b32 s34, s34, 3")
            A(f"s_lshl_b32 s93, s34, {19 + lg}")
            A(f"s_and_b32 s33, s33, {G-1}")
            A(f"s_lshl_b32 s33, s33, {12 if self.arot >= 100 else 14}")
            A("s_add_u32 s93, s93, s33")
            A("s_lshl_b32 s95, s31, 4")
        C("K/V SRDs: base + ga*16MiB")
        A("s_lshl_b32 s33, s31, 24")
        self.srd(36, 6, 33, 1 << 24)
        self.srd(40, 8, 33, 1 << 24)
        if self.bal:
            A(f"s_mul_i32 s81, s32, {self.n0 * 4096}")
            A("s_mov_b32 s89, s96")
            A("s_mov_b32 s87, 0")
            A("s_mov_b32 s88, 0")
            A(f"v_mov_b32 v{vT1}, -1")
            A(f"ds_write_b32 v{vZ}, v{vT1} offset:{L_EXT+4}")
        else:
            C("WG tile range: start = xcd*512 + prefix[sub], n = sizes[sub]")
            sz = self.sizes
            A("s_and_b32 s33, s32, 3")
            A(f"s_mov_b32 s65, {sz[0]}")
            A("s_mov_b32 s81, 0")
            pre = 0
            for k in range(1, 4):
                pre += sz[k - 1]
                A(f"s_cmp_eq_u32 s33, {k}")
                A(f"s_cselect_b32 s65, {sz[k]}, s65")
                A(f"s_cselect_b32 s81, {pre}, s81")
            A("s_lshr_b32 s33, s32, 2")
            A("s_lshl_b32 s33, s33, 9")
            A("s_add_u32 s81, s81, s33")
            A("s_lshl_b32 s81, s81, 12")
        if self.amode == 1:
            A("s_lshr_b32 s81, s32, 2")
            A("s_lshl_b32 s81, s81, 21")
            A("s_and_b32 s34, s32, 3")
            A("s_lshl_b32 s34, s34, 14")
            A("s_add_u32 s81, s81, s34")
        if self.amode in (4, 5):
            A("s_mov_b32 s81, s93")
        if self.amode == 2:
            if self.arot >= 100:
                A(f"s_mul_i32 s95, s2, {self.arot - 100}")
                A("s_lshl_b32 s95, s95, 2")
            else:
                A(f"s_mul_i32 s95, s31, {self.arot}")
        if self.amode == 3:
            A(f"s_bfe_i32 s95, s{31 if self.arot else 32}, {0 | (1 << 16)}")
            A("s_and_b32 s95, s95, 124")
        A("s_mov_b32 s94, s28")
        A("s_mov_b32 s33, s94")
        self.tk2off()
        A("s_mov_b32 s64, s34")
        A(f"v_mov_b32 v{vTk+1}, 1")
        A(f"v_mov_b32 v{vT0}, {4*(NR+NS)}")
        A(f"ds_write_b32 v{vZ}, v{vT0} offset:{L_CTR}")
        A(f"ds_write_b32 v{vZ}, v{vZ} offset:{L_QF}")
        halves = []
        for s in range(NR):
            halves += [("K", "v", RB + 32 * s), ("V", "v", RB + 32 * s + 16)]
        for s in range(NS):
            halves += [("K", "a", 32 * s), ("V", "a", 32 * s + 16)]
        def issue_half(hv):
            if hv[0] == "K":
                self.loadK(hv[1], hv[2], 64)
            else:
                self.loadV(hv[1], hv[2], 64)
                A("s_add_u32 s94, s94, 4")
                A("s_mov_b32 s33, s94")
                self.tk2off()
                A("s_mov_b32 s64, s34")
        A("s_waitcnt lgkmcnt(0)")
        A("s_barrier")
        TH0 = self.th0
        for hv in halves[:TH0]:
            issue_half(hv)
        if not self.noq:
            self.qphase_compute(2 + 4 * TH0, 4 * TH0)
            self.q_publish()
        A("s_mov_b32 s82, 0")
        pending = None
        for k, hv in enumerate(halves):
            if k < TH0:
                continue
            A(f"s_waitcnt vmcnt({4*(TH-1)})")
            issue_half(hv)
            if not self.noq and k >= self.ps and (k - self.ps) % TH == 0:
                self.q_poll_step(first=(k == self.ps))
        A(f"v_and_b32 v{vT0}, 3, v1")
        A(f"v_mov_b32 v{vMk0}, 0")
        A(f"v_mov_b32 v{vMk1}, 0")
        A(f"v_mov_b32 v{vT1}, 0xffff")
        A(f"v_mov_b32 v{vF}, s60")
        for e, (mk, val) in enumerate(((vMk0, vT1), (vMk0, vF), (vMk1, vT1), (vMk1, vF))):
            A(f"v_cmp_eq_u32 vcc, {e}, v{vT0}")
            A("s_nop 1")
            A(f"v_cndmask_b32 v{mk}, v{mk}, v{val}, vcc")
        for i in range(8):
            A(f"v_mov_b32 v{vO+i}, 0")
        A(f"v_mov_b32 v{vM}, 0xff800000")
        A(f"v_mov_b32 v{vL}, 0")
        for s in range(NR):
            A(f"s_mov_b32 s{77+s}, 1")
        A(f"s_mov_b32 s83, {len(self.chunks)}")
        self.stamp(13)
        if not self.noq:
            self.q_poll_final()
            lp = self.newlabel("qflag")
            ok = self.newlabel("qflag_ok")
            A(f"s_mov_b32 s68, {POLL_MAX * 16}")
            self.label(lp)
            A(f"ds_read_b32 v{vT0}, v{vZ} offset:{L_QF}")
            A("s_waitcnt lgkmcnt(0)")
            A(f"v_readfirstlane_b32 s33, v{vT0}")
            A("s_cmp_lg_u32 s33, 0")
            A(f"s_cbranch_scc1 {ok}")
            A("s_sleep 1")
            A("s_sub_u32 s68, s68, 1")
            A("s_cmp_lg_u32 s68, 0")
            A(f"s_cbranch_scc1 {lp}")
            self.label(ok)
        A(f"v_bfe_u32 v{vT0}, v1, 2, 2")
        A(f"v_lshlrev_b32 v{vT0}, 8, v{vT0}")
        A(f"v_lshrrev_b32 v{vT1}, 4, v1")
        A(f"v_lshl_add_u32 v{vT0}, v{vT1}, 4, v{vT0}")
        for m in range(4):
            A(f"ds_read_b128 v[{vQ+4*m}:{vQ+4*m+3}], v{vT0} offset:{L_Q + m*64}")
        self.stamp(1)
        A("s_waitcnt lgkmcnt(0)")
        W = 8 * NR - 4
        self.label("L_loop")
        for s in range(NR):
            C(f"---- ring slot {s}")
            kb, vb = RB + 32 * s, RB + 32 * s + 16
            so, sv = 74 + s, 77 + s
            A(f"s_cmp_eq_u32 s{sv}, 0")
            A("s_cbranch_scc1 L_loop_done")
            A("s_mov_b64 exec, 1")
            A(f"ds_add_rtn_u32 v{vTk}, v{vZ}, v{vTk+1} offset:{L_CTR}")
            A("s_mov_b64 exec, -1")
            def after_qk(s=s, kb=kb, so=so, sv=sv):
                A("s_waitcnt lgkmcnt(0)")
                A(f"v_readfirstlane_b32 s33, v{vTk}")
                if self.bal:
                    A(f"s_cmp_lt_u32 s33, {self.p1}")
                    A(f"s_cbranch_scc1 L_fast{s}")
                    A(f"s_mov_b32 s92, {s}")
                    A("s_branch L_slow")
                    self.label(f"L_ret{s}")
                    A(f"s_mov_b32 s{so}, s34")
                    A(f"s_mov_b32 s{sv}, s35")
                    A(f"s_branch L_ld{s}")
                    self.label(f"L_fast{s}")
                    A("s_lshl_b32 s34, s33, 12")
                    A(f"s_add_u32 s{so}, s34, s81")
                    self.label(f"L_ld{s}")
                else:
                    self.tk2off()
                    A("s_cmp_lt_u32 s33, s65")
                    A(f"s_cselect_b32 s{so}, s34, {hex(INV)}")
                    A(f"s_cselect_b32 s{sv}, 1, 0")
                self.loadK("v", kb, so)
                return 8
            def after_pv(vb=vb, so=so):
                self.loadV("v", vb, so)
            self.tile_body("v", kb, vb, W, W, after_qk, after_pv)
        A("s_cmp_eq_u32 s83, 0")
        A("s_cbranch_scc1 L_loop")
        C("---- backlog: startup tiles held in AGPRs")
        nch = len(self.chunks)
        labs = [self.newlabel("bk") for _ in range(nch)]
        for c in range(1, nch):
            A(f"s_cmp_eq_u32 s83, {nch - c}")
            A(f"s_cbranch_scc1 {labs[c]}")
        t = 0
        for c in range(nch):
            self.label(labs[c])
            A("s_sub_u32 s83, s83, 1")
            if c == 0:
                A(f"s_waitcnt vmcnt({8*NR})")
            for _ in range(self.chunks[c]):
                self.tile_body("a", 32 * t, 32 * t + 16, None, None, lambda: 0, lambda: None)
                t += 1
            if c == nch - 1:
                self.stamp(6)
                if not self.notail:
                    self.role_prefetch(True)
            A("s_branch L_loop")
        if self.bal:
            self.slow_path()
        self.label("L_loop_done")
        self.stamp(2)
        if self.notail:
            A("s_branch L_end")
        A("s_waitcnt vmcnt(0)")

        C("---- WG combine")
        self.cross_rows_allreduce("v_add_f32", vL, vT1)
        A("s_lshl_b32 s33, s28, 11")
        A(f"v_lshl_add_u32 v{vT0}, v1, 4, s33")
        A(f"ds_write_b128 v{vT0}, v[{vO}:{vO+3}] offset:{L_O}")
        A(f"ds_write_b128 v{vT0}, v[{vO+4}:{vO+7}] offset:{L_O+1024}")
        A("s_lshl_b32 s33, s28, 8")
        A(f"v_lshl_add_u32 v{vT0}, v1, 2, s33")
        A(f"ds_write_b32 v{vT0}, v{vM} offset:{L_M}")
        A(f"ds_write_b32 v{vT0}, v{vL} offset:{L_L}")
        A("s_waitcnt lgkmcnt(0)")
        A("s_barrier")
        self.stamp(11)
        A("s_cmp_ge_u32 s28, 2")
        A("s_cbranch_scc1 L_after_publish")
        m_, l_ = vQ, vQ + 4
        Ob = [vQ + 8, vQ + 12, vS, vO]
        A(f"v_lshlrev_b32 v{vT0}, 2, v1")
        for w in range(4):
            A(f"ds_read_b32 v{m_+w}, v{vT0} offset:{L_M + w*256}")
            A(f"ds_read_b32 v{l_+w}, v{vT0} offset:{L_L + w*256}")
        A("s_lshl_b32 s33, s28, 10")
        A(f"v_lshl_add_u32 v{vT0}, v1, 4, s33")
        for w in range(4):
            A(f"ds_read_b128 v[{Ob[w]}:{Ob[w]+3}], v{vT0} offset:{L_O + w*2048}")
        A("s_lshl_b32 s33, s31, 5")
        A("s_add_u32 s33, s33, s32")
        A("s_lshl_b32 s34, s33, 11")
        A("s_lshl_b32 s35, s28, 8")
        A("s_add_u32 s34, s34, s35")
        A(f"s_add_u32 s34, s34, {WS_PO}")
        A(f"v_bfe_u32 v{vT0}, v1, 2, 2")
        A(f"v_lshlrev_b32 v{vT0}, 9, v{vT0}")
        A(f"v_lshrrev_b32 v{vT1}, 4, v1")
        A(f"v_lshl_add_u32 v{vT0}, v{vT1}, 6, v{vT0}")
        A(f"v_and_b32 v{vT1}, 3, v1")
        A(f"v_lshl_add_u32 v{vT0}, v{vT1}, 4, v{vT0}")
        A("s_waitcnt lgkmcnt(4)")
        A(f"v_max3_f32 v{vM}, v{m_}, v{m_+1}, v{m_+2}")
        A(f"v_max_f32 v{vM}, v{vM}, v{m_+3}")
        for w in range(4):
            A(f"v_sub_f32 v{m_+w}, v{m_+w}, v{vM}")
        for w in range(4):
            A(f"v_mul_f32 v{m_+w}, s62, v{m_+w}")
        for w in range(4):
            A(f"v_exp_f32 v{m_+w}, v{m_+w}")
        A("s_waitcnt lgkmcnt(0)")
        acc = vO + 4
        for r in range(4):
            A(f"v_mul_f32 v{acc+r}, v{m_}, v{Ob[0]+r}")
        for w in range(1, 4):
            for r in range(4):
                A(f"v_fmac_f32 v{acc+r}, v{m_+w}, v{Ob[w]+r}")
        A(f"buffer_store_dwordx4 v[{acc}:{acc+3}], v{vT0}, s[44:47], s34 offen sc1")
        A("s_cmp_lg_u32 s28, 0")
        A("s_cbranch_scc1 L_after_publish")
        A(f"v_mul_f32 v{vL}, v{m_}, v{l_}")
        for w in range(1, 4):
            A(f"v_fmac_f32 v{vL}, v{m_+w}, v{l_+w}")
        A("s_lshl_b32 s34, s33, 5")
        A(f"s_add_u32 s34, s34, {WS_PML}")
        A(f"v_lshlrev_b32 v{vT0}, 1, v1")
        A("s_mov_b64 exec, 0x1111")
        A(f"buffer_store_dwordx2 v[{vM}:{vL}], v{vT0}, s[44:47], s34 offen sc1")
        self.exec_all()
        self.label("L_after_publish")
        self.stamp(3)
        A(f"s_cmp_ge_u32 s3, {E0 + NE_WG}")
        A("s_cbranch_scc1 L_end")
        self.role_prefetch(False)
        self.init_check()
        A(f"s_cmp_lt_u32 s3, {C0}")
        A("s_cbranch_scc1 L_roleB")
        A(f"s_cmp_lt_u32 s3, {E0}")
        A("s_cbranch_scc1 L_roleC")
        A("s_branch L_roleE")
        self.roleB()
        self.roleC()
        self.roleE()
        self.label("L_end")
        A("s_endpgm")
        acc_off = (self.NV + 3) // 4 * 4
        na = max(32 * NS, 96)
        self.L.append('.section .rodata,"a"')
        self.L.append(".p2align 6")
        self.L.append(f".amdhsa_kernel {KN}_kernel")
        self.L.append(f"  .amdhsa_next_free_vgpr {acc_off + na}")
        self.L.append("  .amdhsa_next_free_sgpr 102")
        self.L.append(f"  .amdhsa_accum_offset {acc_off}")
        self.L.append("  .amdhsa_group_segment_fixed_size 0")
        self.L.append("  .amdhsa_kernarg_size 96")
        self.L.append("  .amdhsa_user_sgpr_count 2")
        self.L.append("  .amdhsa_user_sgpr_kernarg_segment_ptr 1")
        self.L.append("  .amdhsa_system_sgpr_workgroup_id_x 1")
        self.L.append("  .amdhsa_float_denorm_mode_32 3")
        self.L.append(".end_amdhsa_kernel")
        return "\n".join(self.L) + "\n"

    def slow_path(self):
        A, C = self.A, self.C
        NR, n0, P1, P2 = self.nr, self.n0, self.p1, self.p2
        POOL = 4096 - 32 * n0
        E = POOL / 32.0
        vG = vTk + 2
        t0, t1, t2, t3, t4, t5 = vT0, vT1, vX, vX + 1, vX + 2, vX + 3
        def gather_issue():
            A(f"v_and_b32 v{t0}, 31, v1")
            A(f"v_lshlrev_b32 v{t0}, 3, v{t0}")
            A("s_lshl_b32 s35, s31, 8")
            A(f"s_add_u32 s35, s35, {WS_T}")
            A(f"buffer_load_dwordx2 v[{vG}:{vG+1}], v{t0}, s[44:47], s35 offen sc1")
        self.label("L_slow")
        A(f"s_cmp_lg_u32 s33, {P1}")
        A("s_cbranch_scc1 L_sl1")
        C("publish progress time")
        A("s_memrealtime s[90:91]")
        A("s_lshl_b32 s35, s31, 8")
        A("s_lshl_b32 s93, s32, 3")
        A("s_add_u32 s35, s35, s93")
        A(f"s_add_u32 s35, s35, {WS_T}")
        A("s_waitcnt lgkmcnt(0)")
        A("s_sub_u32 s34, s90, s89")
        A("s_min_u32 s34, s34, 4095")
        A("s_lshl_b32 s34, s34, 20")
        A("s_and_b32 s90, s90, 0xfffff")
        A("s_or_b32 s34, s34, s90")
        A(f"v_mov_b32 v{t2}, s34")
        A(f"v_mov_b32 v{t3}, s30")
        A("s_mov_b64 exec, 1")
        A(f"buffer_store_dwordx2 v[{t2}:{t3}], v{vZ}, s[44:47], s35 offen sc1")
        A("s_mov_b64 exec, -1")
        self.label("L_sl1")
        A(f"s_cmp_lg_u32 s33, {P2}")
        A("s_cbranch_scc1 L_sl2")
        gather_issue()
        A(f"s_mov_b32 s88, {NR}")
        A("s_branch L_sl3")
        self.label("L_sl2")
        A("s_cmp_eq_u32 s88, 0")
        A("s_cbranch_scc1 L_sl3")
        A("s_sub_u32 s88, s88, 1")
        A("s_cmp_lg_u32 s88, 0")
        A("s_cbranch_scc1 L_sl3")
        A("s_mov_b32 s93, 0")
        self.label("L_alloc")
        A(f"v_cmp_ne_u32 vcc, s30, v{vG+1}")
        A("s_nop 0")
        A("s_cbranch_vccz L_alloc_ok")
        gather_issue()
        A(f"s_mov_b32 s88, {NR}")
        A("s_cmp_eq_u32 s93, 0")
        A("s_cbranch_scc1 L_sl3")
        A("s_mov_b32 s88, 0")
        A("s_waitcnt vmcnt(0)")
        A("s_add_u32 s93, s93, 1")
        A(f"s_cmp_lt_u32 s93, {POLL_MAX}")
        A("s_cbranch_scc1 L_alloc")
        self.label("L_alloc_ok")
        A(f"v_readfirstlane_b32 s34, v{vG}")
        A(f"v_lshrrev_b32 v{t1}, 20, v{vG}")
        A(f"v_cvt_f32_u32 v{t1}, v{t1}")
        A("s_nop 0")
        A(f"v_subrev_u32 v{t0}, s34, v{vG}")
        A(f"v_bfe_i32 v{t0}, v{t0}, 0, 20")
        A(f"v_cvt_f32_i32 v{t0}, v{t0}")
        A(f"v_mov_b32 v{t2}, v{t0}")
        self.row_allreduce("v_add_f32", [t1, t2])
        self.cross_rows_allreduce("v_add_f32", t1, t3, do32=False)
        self.cross_rows_allreduce("v_add_f32", t2, t3, do32=False)
        A(f"v_rcp_f32 v{t1}, v{t1}")
        A(f"v_mul_f32 v{t2}, {hex(f32bits(1.0/32))}, v{t2}")
        A(f"v_sub_f32 v{t0}, v{t0}, v{t2}")
        A(f"v_mul_f32 v{t1}, {hex(f32bits(-32.0 * P1 * self.gain))}, v{t1}")
        A(f"v_mov_b32 v{t2}, {hex(f32bits(E))}")
        A(f"v_fmac_f32 v{t2}, v{t0}, v{t1}")
        A(f"v_and_b32 v{t3}, 3, v1")
        A(f"v_and_b32 v{t4}, 31, v1")
        A(f"v_cmp_eq_u32 vcc, 1, v{t3}")
        A(f"v_cmp_gt_u32 s[90:91], 28, v{t4}")
        A(f"v_mov_b32 v{t3}, {hex(f32bits(self.biasc))}")
        A("s_and_b64 vcc, vcc, s[90:91]")
        A("s_nop 0")
        A(f"v_cndmask_b32 v{t3}, 0, v{t3}, vcc")
        A(f"v_sub_f32 v{t2}, v{t2}, v{t3}")
        A(f"v_max_f32 v{t2}, 0, v{t2}")
        for sh in (1, 2, 4, 8):
            A("s_nop 1")
            A(f"v_add_f32_dpp v{t2}, v{t2}, v{t2} row_shr:{sh} row_mask:0xf bank_mask:0xf bound_ctrl:0")
        A("s_nop 1")
        A(f"v_add_f32_dpp v{t2}, v{t2}, v{t2} row_bcast:15 row_mask:0xa bank_mask:0xf")
        A("s_nop 0")
        A(f"v_readlane_b32 s34, v{t2}, 31")
        A("s_nop 1")
        A(f"v_rcp_f32 v{t3}, s34")
        A("s_max_u32 s35, s32, 1")
        A("s_sub_u32 s35, s35, 1")
        A(f"v_mul_f32 v{t3}, {hex(f32bits(float(POOL)))}, v{t3}")
        A(f"v_mul_f32 v{t2}, v{t2}, v{t3}")
        A(f"v_rndne_f32 v{t2}, v{t2}")
        A(f"v_cvt_u32_f32 v{t2}, v{t2}")
        A(f"v_min_u32 v{t2}, {POOL}, v{t2}")
        A("s_nop 0")
        A(f"v_readlane_b32 s86, v{t2}, s32")
        A(f"v_readlane_b32 s85, v{t2}, s35")
        A("s_cmp_eq_u32 s32, 31")
        A(f"s_cselect_b32 s86, {POOL}, s86")
        A("s_cmp_eq_u32 s32, 0")
        A("s_cselect_b32 s85, 0, s85")
        A("s_sub_u32 s86, s86, s85")
        A("s_lshl_b32 s85, s85, 12")
        A(f"s_add_u32 s85, s85, {32 * n0 * 4096}")
        A(f"v_mov_b32 v{t2}, s85")
        A(f"v_mov_b32 v{t3}, s86")
        A(f"ds_write_b64 v{vZ}, v[{t2}:{t3}] offset:{L_EXT}")
        A("s_mov_b32 s87, 1")
        if self.stamps:
            A(f"v_mov_b32 v{vSt}, s86")
            A(f"s_mul_i32 s100, s2, {5*64}")
            A(f"s_add_u32 s100, s100, {WS_STAMP + 4*64}")
            A(f"v_mov_b32 v{vSt+1}, s100")
            A("s_mov_b64 exec, 1")
            A(f"buffer_store_dword v{vSt}, v{vSt+1}, s[44:47], 0 offen")
            A("s_mov_b64 exec, -1")
        self.label("L_sl3")
        A(f"s_cmp_ge_u32 s33, {n0}")
        A("s_cbranch_scc1 L_ext")
        A("s_lshl_b32 s34, s33, 12")
        A("s_add_u32 s34, s34, s81")
        A("s_mov_b32 s35, 1")
        A("s_branch L_slret")
        self.label("L_ext")
        A("s_cmp_lg_u32 s87, 0")
        A("s_cbranch_scc1 L_ext_ok")
        A("s_cmp_eq_u32 s88, 0")
        A("s_cbranch_scc1 L_ext_wait")
        A("s_mov_b32 s88, 0")
        A("s_mov_b32 s93, 1")
        A("s_waitcnt vmcnt(0)")
        A("s_branch L_alloc")
        self.label("L_ext_wait")
        A(f"s_mov_b32 s93, {POLL_MAX * 8}")
        self.label("L_ext_spin")
        A(f"ds_read_b64 v[{t2}:{t3}], v{vZ} offset:{L_EXT}")
        A("s_waitcnt lgkmcnt(0)")
        A(f"v_readfirstlane_b32 s85, v{t2}")
        A(f"v_readfirstlane_b32 s86, v{t3}")
        A("s_cmp_lg_u32 s86, -1")
        A("s_cbranch_scc1 L_ext_got")
        A("s_sleep 1")
        A("s_sub_u32 s93, s93, 1")
        A("s_cmp_lg_u32 s93, 0")
        A("s_cbranch_scc1 L_ext_spin")
        A("s_mov_b32 s86, 0")
        self.label("L_ext_got")
        A("s_mov_b32 s87, 1")
        self.label("L_ext_ok")
        A(f"s_sub_u32 s35, s33, {n0}")
        A("s_lshl_b32 s34, s35, 12")
        A("s_add_u32 s34, s34, s85")
        A("s_cmp_lt_u32 s35, s86")
        A(f"s_cselect_b32 s34, s34, {hex(INV)}")
        A("s_cselect_b32 s35, 1, 0")
        self.label("L_slret")
        for k in range(NR - 1):
            A(f"s_cmp_eq_u32 s92, {k}")
            A(f"s_cbranch_scc1 L_ret{k}")
        A(f"s_branch L_ret{NR-1}")

    def qphase_issue(self):
        A = self.A
        t0, t1 = vT0, vT1
        R = self.QS
        W, XS, XO = R, R + 16, R + 20
        self.srd(56, 4, None, 1024)
        A(f"buffer_load_dwordx4 v[{XS}:{XS+3}], v{vVo}, s[56:59], 0 offen")
        A("s_and_b32 s33, s2, 7")
        A("s_lshl_b32 s33, s33, 5")
        A("s_lshr_b32 s34, s2, 3")
        A("s_add_u32 s84, s33, s34")
        A("s_and_b32 s33, s34, 3")
        A("s_lshl_b32 s33, s33, 2")
        A("s_add_u32 s33, s33, s28")
        A("s_lshl_b32 s35, s33, 6")
        A(f"v_lshrrev_b32 v{t0}, 3, v1")
        A(f"v_lshl_add_u32 v{t1}, v{t0}, 3, s35")
        A(f"buffer_load_dwordx2 v[{XO}:{XO+1}], v{t1}, s[56:59], 0 offen")
        A("s_lshl_b32 s33, s33, 18")
        A("s_lshr_b32 s34, s84, 2")
        A("s_lshl_b32 s34, s34, 7")
        A("s_add_u32 s34, s34, s33")
        self.srd(52, 10, 34, 31 * 8192 + 128)
        A(f"v_lshlrev_b32 v{t0}, 15, v{t0}")
        A(f"v_and_b32 v{t1}, 7, v1")
        A(f"v_lshl_add_u32 v{t0}, v{t1}, 4, v{t0}")
        for j in range(4):
            A(f"s_mov_b32 s35, {j*8192}")
            A(f"buffer_load_dwordx4 v[{W+4*j}:{W+4*j+3}], v{t0}, s[52:55], s35 offen{self.qpol}")

    def sentinel_init(self):
        A, C = self.A, self.C
        C("sentinel init")
        G = vO
        hi = self.newlabel("si_hi"); dn = self.newlabel("si_dn"); nb = self.newlabel("si_nb")
        for i in range(4):
            A(f"v_mov_b32 v{G+i}, -1")
        A("s_lshl_b32 s33, s31, 5")
        A("s_add_u32 s33, s33, s32")
        A("s_and_b32 s35, s28, 1")
        A("s_lshl_b32 s35, s35, 10")
        A("s_mov_b64 s[86:87], -1")
        A(f"s_mov_b32 s85, {hex(INV)}")
        A(f"s_mov_b32 s88, {hex(INV)}")
        A("s_mov_b32 s89, 3")
        A("s_mov_b32 s90, -1")
        A(f"v_mov_b32 v{vT0}, v{vVo}")
        A("s_cmp_ge_u32 s28, 2")
        A(f"s_cbranch_scc1 {hi}")
        A("s_lshl_b32 s85, s33, 11")
        A("s_add_u32 s85, s85, s35")
        A(f"s_add_u32 s85, s85, {WS_PO}")
        A("s_lshl_b32 s88, s33, 5")
        A(f"s_add_u32 s88, s88, {WS_PML}")
        A("s_cmp_eq_u32 s28, 0")
        A(f"s_cbranch_scc1 {dn}")
        A(f"s_mov_b32 s88, {hex(INV)}")
        A(f"s_branch {dn}")
        self.label(hi)
        A(f"s_cmp_ge_u32 s3, {E0}")
        A(f"s_cbranch_scc1 {dn}")
        A(f"s_cmp_ge_u32 s3, {C0}")
        A(f"s_cbranch_scc1 {nb}")
        A("s_cmp_eq_u32 s28, 3")
        A(f"s_cbranch_scc1 {dn}")
        A("s_and_b32 s33, s3, 7")
        A("s_lshl_b32 s85, s33, 11")
        A("s_lshr_b32 s34, s3, 3")
        A("s_lshl_b32 s34, s34, 8")
        A("s_add_u32 s85, s85, s34")
        A(f"s_add_u32 s85, s85, {WS_HP}")
        A("s_mov_b64 s[86:87], 0xffff")
        A(f"s_branch {dn}")
        self.label(nb)
        A(f"s_sub_u32 s33, s3, {C0}")
        A("s_lshl_b32 s85, s33, 11")
        A("s_add_u32 s85, s85, s35")
        A(f"s_add_u32 s85, s85, {WS_OP}")
        self.label(dn)
        for i in range(4):
            A(f"v_mov_b32 v{G+4+i}, s90")
        A("s_mov_b64 exec, s[86:87]")
        A(f"buffer_store_dwordx4 v[{G}:{G+3}], v{vVo}, s[44:47], s85 offen sc1")
        A("s_mov_b32 exec_lo, s89")
        A("s_mov_b32 exec_hi, 0")
        A(f"buffer_store_dwordx4 v[{G+4}:{G+7}], v{vT0}, s[44:47], s88 offen sc1")
        self.exec_all()

    def qphase_compute(self, younger, after_stores):
        A = self.A
        R = self.QS
        W, XS, XO = R, R + 16, R + 20
        XF, XN, acc = 4, 12, 16
        t0, t1 = 32, 33
        u0, u1 = 38, 39
        A(f"s_waitcnt vmcnt({younger + 4})")
        self.stamp(7)
        self.stamp(14)
        for i in range(4):
            self.unpack(XF + 2 * i, XF + 2 * i + 1, XS + i)
        for i in range(2):
            self.unpack(XN + 2 * i, XN + 2 * i + 1, XO + i)
        self.layernorm(XF, 8, t0, hex(f32bits(1.0 / 512)), Y=XN, ny=4)
        self.stamp(8)
        for j in range(4):
            A(f"s_waitcnt vmcnt({younger + 3 - j})")
            for i in range(4):
                self.unpack(u0, u1, W + 4 * j + i)
                if j == 0:
                    A(f"v_mul_f32 v{acc+2*i}, v{XN+j}, v{u0}")
                    A(f"v_mul_f32 v{acc+2*i+1}, v{XN+j}, v{u1}")
                else:
                    A(f"v_fmac_f32 v{acc+2*i}, v{XN+j}, v{u0}")
                    A(f"v_fmac_f32 v{acc+2*i+1}, v{XN+j}, v{u1}")
        self.stamp(15)
        A("s_nop 1")
        for i in range(4):
            A(f"v_permlane32_swap_b32 v{acc+i}, v{acc+i+4}")
        A("s_nop 0")
        for i in range(4):
            A(f"v_add_f32 v{acc+i}, v{acc+i}, v{acc+i+4}")
        A("s_nop 1")
        for i in range(2):
            A(f"v_permlane16_swap_b32 v{acc+i}, v{acc+i+2}")
        A("s_nop 0")
        for i in range(2):
            A(f"v_add_f32 v{acc+i}, v{acc+i}, v{acc+i+2}")
        A("s_lshl_b32 s35, s28, 8")
        A(f"v_and_b32 v{t0}, 7, v1")
        self.dpp("v_add_f32", acc, acc, acc, "row_ror:8")
        self.dpp("v_add_f32", acc + 1, acc + 1, acc + 1, "row_ror:8")
        A(f"v_lshlrev_b32 v{t0}, 5, v{t0}")
        A(f"v_lshrrev_b32 v{t1}, 4, v1")
        A(f"v_lshl_add_u32 v{t0}, v{t1}, 3, v{t0}")
        A(f"v_add_u32 v{t0}, s35, v{t0}")
        self.exec_mask(0x00ff00ff00ff00ff)
        A(f"ds_write_b64 v{t0}, v[{acc}:{acc+1}] offset:{L_QP}")
        self.exec_all()
        A(f"s_waitcnt vmcnt({after_stores}) lgkmcnt(0)")
        A("s_mul_i32 s30, s29, 0x9e3779b1")
        A("s_add_u32 s30, s30, 0x7f4a7c15")
        A("s_barrier")
        self.stamp(9)

    def q_publish(self):
        A = self.A
        sk = self.newlabel("nopub")
        P = 4
        A("s_cmp_lg_u32 s28, 0")
        A(f"s_cbranch_scc1 {sk}")
        A(f"v_lshlrev_b32 v{vT0}, 2, v1")
        for w in range(4):
            A(f"ds_read_b32 v{P+2*w}, v{vT0} offset:{L_QP + 256*w}")
        A(f"v_lshlrev_b32 v{vT0}, 3, v1")
        A("s_lshl_b32 s33, s84, 9")
        A(f"s_add_u32 s33, s33, {WS_Q1}")
        A(f"v_mov_b32 v{P+1}, s30")
        A("s_waitcnt lgkmcnt(0)")
        A(f"v_add_f32 v{P}, v{P}, v{P+2}")
        A(f"v_add_f32 v{P+4}, v{P+4}, v{P+6}")
        A(f"v_add_f32 v{P}, v{P}, v{P+4}")
        A(f"buffer_store_dwordx2 v[{P}:{P+1}], v{vT0}, s[44:47], s33 offen sc1")
        A(f"s_and_b32 s73, s32, {QR-1}")
        A("s_lshl_b32 s73, s73, 14")
        A("s_lshl_b32 s33, s31, 11")
        A("s_add_u32 s73, s73, s33")
        A(f"s_add_u32 s73, s73, {WS_Q}")
        A("s_and_b32 s72, s84, -4")
        A("s_lshl_b32 s72, s72, 9")
        A("s_and_b32 s33, s84, 3")
        A("s_lshl_b32 s33, s33, 7")
        A("s_add_u32 s72, s72, s33")
        A(f"s_add_u32 s72, s72, {WS_Q1}")
        self.label(sk)

    def s2_issue(self):
        self.A(f"buffer_load_dwordx2 v[8:9], v{vIC}, s[44:47], s72 offen sc1")

    def s2_check(self, fail):
        A = self.A
        A(f"v_cmp_ne_u32 vcc, s30, v9")
        A("s_nop 0")
        A(f"s_cbranch_vccnz {fail}")
        self.cross_rows_allreduce("v_add_f32", 8, vT1)
        A(f"v_and_b32 v{vT0}, 15, v1")
        A(f"v_lshlrev_b32 v{vT0}, 2, v{vT0}")
        A(f"v_mov_b32_dpp v{vT1}, v8 quad_perm:[1,0,3,2] row_mask:0xf bank_mask:0xf")
        A(f"v_lshrrev_b32 v10, 4, v1")
        A(f"v_lshl_add_u32 v{vT0}, v10, 14, v{vT0}")
        A(f"v_cvt_pk_bf16_f32 v8, v8, v{vT1}")
        A("s_lshl_b32 s33, s84, 6")
        A(f"s_add_u32 s33, s33, {WS_Q}")
        self.exec_mask(0x5555555555555555)
        A(f"buffer_store_dwordx2 v[8:9], v{vT0}, s[44:47], s33 offen sc1")
        self.exec_all()
        A("s_mov_b32 s82, 1")
        self.stamp(10)

    def q_poll_issue(self):
        g = 12
        self.A(f"buffer_load_dwordx4 v[{g}:{g+3}], v{vNM}, s[44:47], s73 offen sc1")
        self.A(f"buffer_load_dwordx4 v[{g+4}:{g+7}], v{vNM}, s[44:47], s73 offen offset:16 sc1")

    def q_check(self, fail):
        A = self.A
        g = 12
        A(f"v_xor_b32 v{vT0}, s30, v{g+1}")
        A(f"v_xor_b32 v{vT1}, s30, v{g+3}")
        A(f"v_or_b32 v{vT0}, v{vT0}, v{vT1}")
        A(f"v_xor_b32 v{vT1}, s30, v{g+5}")
        A(f"v_or_b32 v{vT0}, v{vT0}, v{vT1}")
        A(f"v_xor_b32 v{vT1}, s30, v{g+7}")
        A(f"v_or_b32 v{vT0}, v{vT0}, v{vT1}")
        A(f"v_cmp_ne_u32 vcc, 0, v{vT0}")
        A("s_nop 0")
        A(f"s_cbranch_vccnz {fail}")
        A(f"v_mov_b32 v{g+1}, v{g+2}")
        A(f"v_mov_b32 v{g+2}, v{g+4}")
        A(f"v_mov_b32 v{g+3}, v{g+6}")
        A(f"ds_write_b128 v{vVo}, v[{g}:{g+3}] offset:{L_Q}")
        A(f"ds_write_b32 v{vZ}, v{vTk+1} offset:{L_QF}")
        A("s_mov_b32 s82, 2")
        self.stamp(12)

    def q_poll_step(self, first):
        A = self.A
        sk = self.newlabel("qp_skip")
        st1 = self.newlabel("qp_st1")
        a0 = self.newlabel("qp_a0")
        a1 = self.newlabel("qp_a1")
        A("s_cmp_lg_u32 s28, 0")
        A(f"s_cbranch_scc1 {sk}")
        if first:
            self.s2_issue()
        else:
            A("s_cmp_eq_u32 s82, 2")
            A(f"s_cbranch_scc1 {sk}")
            A("s_cmp_eq_u32 s82, 1")
            A(f"s_cbranch_scc1 {st1}")
            self.s2_check(a0)
            A(f"s_branch {a1}")
            self.label(a0)
            self.s2_issue()
            A(f"s_branch {sk}")
            self.label(st1)
            self.q_check(a1)
            A(f"s_branch {sk}")
            self.label(a1)
            self.q_poll_issue()
        self.label(sk)

    def q_poll_final(self):
        A = self.A
        sk = self.newlabel("qf_skip")
        lp = self.newlabel("qf_loop")
        st1 = self.newlabel("qf_st1")
        a0 = self.newlabel("qf_a0")
        a1 = self.newlabel("qf_a1")
        nx = self.newlabel("qf_nx")
        A("s_cmp_lg_u32 s28, 0")
        A(f"s_cbranch_scc1 {sk}")
        A(f"s_mov_b32 s68, {POLL_MAX}")
        self.label(lp)
        A("s_cmp_eq_u32 s82, 2")
        A(f"s_cbranch_scc1 {sk}")
        A("s_waitcnt vmcnt(0)")
        A("s_cmp_eq_u32 s82, 1")
        A(f"s_cbranch_scc1 {st1}")
        self.s2_check(a0)
        A(f"s_branch {a1}")
        self.label(a0)
        self.s2_issue()
        A(f"s_branch {nx}")
        self.label(st1)
        self.q_check(a1)
        A(f"s_branch {sk}")
        self.label(a1)
        self.q_poll_issue()
        self.label(nx)
        A("s_sub_u32 s68, s68, 1")
        A("s_cmp_lg_u32 s68, 0")
        A(f"s_cbranch_scc1 {lp}")
        self.label(sk)
        A("s_waitcnt lgkmcnt(0)")

    def ic_addr(self, vd, vsa, vga, t):
        A = self.A
        A(f"v_lshrrev_b32 v{t}, 2, v{vsa}")
        A(f"v_lshlrev_b32 v{t}, 11, v{t}")
        A(f"v_and_b32 v{vd}, 3, v{vsa}")
        A(f"v_lshl_add_u32 v{vd}, v{vga}, 2, v{vd}")
        A(f"v_lshl_add_u32 v{vd}, v{vd}, 6, v{t}")
        A(f"v_add_u32 v{vd}, s91, v{vd}")

    def ic_issue(self):
        A = self.A
        a0, a1 = self.QS + 4, self.QS + 5
        vsa, vga, t = self.QS + 6, self.QS + 7, self.QS + 8
        nb = self.newlabel("ic_nb"); jn = self.newlabel("ic_jn")
        A(f"s_and_b32 s91, s2, {QR-1}")
        A("s_lshl_b32 s91, s91, 14")
        A(f"s_add_u32 s91, s91, {WS_Q + 4}")
        A(f"s_cmp_ge_u32 s3, {C0}")
        A(f"s_cbranch_scc1 {nb}")
        A("s_and_b32 s33, s3, 7")
        A(f"v_and_b32 v{vsa}, 31, v1")
        A(f"v_mov_b32 v{vga}, s33")
        self.ic_addr(a0, vsa, vga, t)
        A(f"v_mov_b32 v{a1}, v{a0}")
        A(f"s_branch {jn}")
        self.label(nb)
        A(f"v_lshrrev_b32 v{vsa}, 3, v1")
        A(f"v_lshlrev_b32 v{vsa}, 2, v{vsa}")
        A(f"v_and_b32 v{vga}, 7, v1")
        self.ic_addr(a0, vsa, vga, t)
        A(f"v_min_u32 v{a1}, {NC-1}, v1")
        A(f"v_lshrrev_b32 v{vsa}, 3, v{a1}")
        A(f"v_lshlrev_b32 v{vsa}, 2, v{vsa}")
        A(f"v_add_u32 v{vsa}, 1, v{vsa}")
        A(f"v_and_b32 v{vga}, 7, v{a1}")
        self.ic_addr(a1, vsa, vga, t)
        self.label(jn)
        A(f"buffer_load_dword v{vIC}, v{a0}, s[44:47], 0 offen sc1")
        A(f"buffer_load_dword v{vIC+1}, v{a1}, s[44:47], 0 offen sc1")

    def init_check(self):
        A = self.A
        a0, a1 = self.QS + 4, self.QS + 5
        lp = self.newlabel("ic_loop")
        ok = self.newlabel("ic_ok")
        A(f"s_mov_b32 s68, {POLL_MAX}")
        self.label(lp)
        A(f"v_xor_b32 v{vT0}, s30, v{vIC}")
        A(f"v_xor_b32 v{vT1}, s30, v{vIC+1}")
        A(f"v_or_b32 v{vT0}, v{vT0}, v{vT1}")
        A(f"v_cmp_ne_u32 vcc, 0, v{vT0}")
        A("s_nop 0")
        A(f"s_cbranch_vccz {ok}")
        A(f"buffer_load_dword v{vIC}, v{a0}, s[44:47], 0 offen sc1")
        A(f"buffer_load_dword v{vIC+1}, v{a1}, s[44:47], 0 offen sc1")
        A("s_waitcnt vmcnt(0)")
        A("s_sub_u32 s68, s68, 1")
        A("s_cmp_lg_u32 s68, 0")
        A(f"s_cbranch_scc1 {lp}")
        self.label(ok)

    def role_prefetch(self, early):
        A, C = self.A, self.C
        t0, t1 = vT0, vT1
        doB = ("B" in self.early) == early
        doG = ("C" in self.early or "G" in self.early) == early
        doD = ("C" in self.early or "D" in self.early) == early
        done = self.newlabel("pf_done")
        notB = self.newlabel("pf_notB")
        wdone = self.newlabel("pf_wdone")
        A(f"s_cmp_ge_u32 s3, {E0}")
        A(f"s_cbranch_scc1 {wdone}")
        A(f"s_cmp_ge_u32 s3, {C0}")
        A(f"s_cbranch_scc1 {notB}")
        if early:
            self.ic_issue()
        if doB:
            C("role B weights")
            A("s_and_b32 s33, s3, 7")
            A("s_lshl_b32 s33, s33, 2")
            A("s_add_u32 s33, s33, s28")
            A("s_lshl_b32 s33, s33, 17")
            A("s_lshr_b32 s34, s3, 3")
            A("s_lshl_b32 s34, s34, 7")
            A("s_add_u32 s33, s33, s34")
            self.srd(52, 12, 33, 131072 - 896)
            A(f"v_bfe_u32 v{t0}, v1, 3, 2")
            A(f"v_lshlrev_b32 v{t0}, 15, v{t0}")
            A(f"v_lshrrev_b32 v{t1}, 5, v1")
            A(f"v_lshl_add_u32 v{t0}, v{t1}, 12, v{t0}")
            A(f"v_and_b32 v{t1}, 7, v1")
            A(f"v_lshl_add_u32 v{t0}, v{t1}, 4, v{t0}")
            for j in range(16):
                off = (8 * (j & 3) + (j >> 2)) * 1024
                so, io = off & ~4095, off & 4095
                A(f"s_mov_b32 s34, {so}")
                A(f"buffer_load_dwordx4 a[{4*j}:{4*j+3}], v{t0}, s[52:55], s34 offen offset:{io} nt")
        A(f"s_branch {done}")
        self.label(notB)
        A(f"s_sub_u32 s33, s3, {C0}")
        if doG:
            C("role C gate/up weights")
            A("s_lshl_b32 s34, s33, 6")
            A(f"s_mul_i32 s35, s28, {128*3584}")
            A("s_add_u32 s34, s34, s35")
            self.srd(52, 16, 34, 128 * 3584 - 3584 + 64)
            self.srd(56, 18, 34, 128 * 3584 - 3584 + 64)
            A(f"v_lshrrev_b32 v{t0}, 2, v1")
            A(f"v_mul_u32_u24 v{t0}, {8*3584}, v{t0}")
            A(f"v_and_b32 v{t1}, 3, v1")
            A(f"v_lshl_add_u32 v{t0}, v{t1}, 4, v{t0}")
            for j in range(8):
                A(f"s_mov_b32 s35, {j*3584}")
                A(f"buffer_load_dwordx4 a[{4*j}:{4*j+3}], v{t0}, s[52:55], s35 offen{self.gpol}")
                A(f"buffer_load_dwordx4 a[{32+4*j}:{32+4*j+3}], v{t0}, s[56:59], s35 offen{self.gpol}")
        if doD:
            C("role C down weights")
            A("s_lshl_b32 s34, s33, 15")
            A("s_lshl_b32 s35, s28, 8")
            A("s_add_u32 s34, s34, s35")
            self.srd(52, 20, 34, 32768 - 768)
            A(f"v_lshrrev_b32 v{t0}, 4, v1")
            A(f"v_lshlrev_b32 v{t0}, 13, v{t0}")
            A(f"v_and_b32 v{t1}, 15, v1")
            A(f"v_lshl_add_u32 v{t0}, v{t1}, 4, v{t0}")
            for j in range(8):
                off = j * 1024
                so, io = off & ~4095, off & 4095
                A(f"s_mov_b32 s35, {so}")
                A(f"buffer_load_dwordx4 a[{64+4*j}:{64+4*j+3}], v{t0}, s[52:55], s35 offen offset:{io} nt")
        self.label(wdone)
        if not early:
            self.ic_issue()
            A("s_waitcnt vmcnt(0)")
        self.label(done)

    def emasks(self, mk, t0, t1, t2):
        A = self.A
        A(f"v_and_b32 v{t0}, 1, v1")
        A(f"v_mov_b32 v{t1}, 0xffff")
        A(f"v_mov_b32 v{t2}, s60")
        A(f"v_cmp_eq_u32 vcc, 1, v{t0}")
        A("s_nop 1")
        A(f"v_cndmask_b32 v{t1}, v{t1}, v{t2}, vcc")
        A(f"v_bfe_u32 v{t0}, v1, 1, 2")
        for r in range(4):
            A(f"v_cmp_eq_u32 vcc, {r}, v{t0}")
            A("s_nop 1")
            A(f"v_cndmask_b32 v{mk+r}, 0, v{t1}, vcc")

    def roleB(self):
        A, C = self.A, self.C
        self.label("L_roleB")
        G = RB
        vML = 2
        vA0, vA1 = 4, 5
        t0, t1, t2, t3 = 6, 7, 8, 9
        aW, aR, aD = 10, 11, 53
        mk, acc, X, D, wj = 12, 16, 20, 28, 32
        A("s_and_b32 s33, s3, 7")
        A("s_lshl_b32 s34, s33, 16")
        A("s_lshl_b32 s35, s28, 9")
        A("s_add_u32 s34, s34, s35")
        A(f"s_add_u32 s34, s34, {WS_PO}")
        A(f"v_lshrrev_b32 v{t0}, 5, v1")
        A(f"v_lshlrev_b32 v{t0}, 11, v{t0}")
        A(f"v_and_b32 v{t1}, 31, v1")
        A(f"v_lshl_add_u32 v{vA0}, v{t1}, 4, v{t0}")
        A(f"v_add_u32 v{vA0}, s34, v{vA0}")
        A("s_lshl_b32 s34, s33, 10")
        A("s_lshl_b32 s35, s28, 3")
        A("s_add_u32 s34, s34, s35")
        A(f"s_add_u32 s34, s34, {WS_PML}")
        A(f"v_and_b32 v{t0}, 15, v1")
        A(f"v_lshlrev_b32 v{t0}, 6, v{t0}")
        A(f"v_lshrrev_b32 v{t1}, 5, v1")
        A(f"v_lshl_add_u32 v{vA1}, v{t1}, 5, v{t0}")
        A(f"v_add_u32 v{vA1}, s34, v{vA1}")
        lp = self.newlabel("B_round")
        dn = self.newlabel("B_done")
        first = self.newlabel("B_first")
        A("s_mov_b32 s69, -1")
        A("s_mov_b64 s[66:67], -1")
        A(f"s_mov_b32 s68, {POLL_MAX}")
        A("s_mov_b32 s93, 1")
        self.label(lp)
        noml = self.newlabel("B_noml")
        A("s_mov_b64 exec, s[66:67]")
        A(f"s_cbranch_execz {noml}")
        A(f"buffer_load_dwordx2 v[{vML}:{vML+1}], v{vA1}, s[44:47], 0 offen sc1")
        self.label(noml)
        for grp in range(4):
            gs = self.newlabel("B_gs")
            A(f"s_bfe_u32 s34, s69, {(8*grp) | (8 << 16)}")
            A(f"s_cbranch_scc0 {gs}")
            for j in range(4 * grp, 4 * grp + 4):
                sk = self.newlabel("B_sk")
                A(f"s_bfe_u32 s34, s69, {(2*j) | (2 << 16)}")
                A(f"s_cbranch_scc0 {sk}")
                A(f"s_bfe_i32 exec_lo, s69, {(2*j) | (1 << 16)}")
                A(f"s_bfe_i32 exec_hi, s69, {(2*j+1) | (1 << 16)}")
                A(f"s_mov_b32 s35, {j*4096}")
                A(f"buffer_load_dwordx4 v[{G+4*j}:{G+4*j+3}], v{vA0}, s[44:47], s35 offen sc1")
                self.label(sk)
            self.label(gs)
        self.exec_all()
        A("s_cmp_eq_u32 s93, 0")
        A(f"s_cbranch_scc1 {first}")
        A("s_mov_b32 s93, 0")
        self.emasks(mk, t0, t1, t2)
        A("s_lshl_b32 s34, s28, 9")
        A(f"v_and_b32 v{t0}, 31, v1")
        A(f"v_lshlrev_b32 v{t0}, 4, v{t0}")
        A(f"v_lshrrev_b32 v{t1}, 5, v1")
        A(f"v_lshl_add_u32 v{t0}, v{t1}, 2, v{t0}")
        A(f"v_add_u32 v{aW}, s34, v{t0}")
        A(f"v_lshrrev_b32 v{t0}, 3, v1")
        A(f"v_lshlrev_b32 v{t0}, 6, v{t0}")
        A(f"v_add_u32 v{aR}, s34, v{t0}")
        A(f"v_lshrrev_b32 v{t0}, 5, v1")
        A(f"v_lshlrev_b32 v{t0}, 8, v{t0}")
        A(f"v_bfe_u32 v{t1}, v1, 4, 1")
        A(f"v_lshl_add_u32 v{t0}, v{t1}, 7, v{t0}")
        A(f"v_and_b32 v{t1}, 7, v1")
        A(f"v_lshl_add_u32 v{t0}, v{t1}, 2, v{t0}")
        A(f"v_add_u32 v{aD}, s34, v{t0}")
        A("s_lshl_b32 s94, s33, 11")
        A("s_lshr_b32 s35, s3, 3")
        A("s_lshl_b32 s35, s35, 8")
        A("s_add_u32 s94, s94, s35")
        A(f"s_add_u32 s94, s94, {WS_HP}")
        self.label(first)
        A("s_waitcnt vmcnt(0)")
        A(f"v_max_u32 v{t0}, v{vML}, v{vML+1}")
        A(f"v_cmp_eq_u32 s[66:67], -1, v{t0}")
        A("s_mov_b32 s95, 0")
        for grp in range(4):
            gs = self.newlabel("B_gc")
            A(f"s_bfe_u32 s34, s69, {(8*grp) | (8 << 16)}")
            A(f"s_cbranch_scc0 {gs}")
            for j in range(4 * grp, 4 * grp + 4):
                sk = self.newlabel("B_ck")
                A(f"s_bfe_u32 s34, s69, {(2*j) | (2 << 16)}")
                A(f"s_cbranch_scc0 {sk}")
                A(f"v_max3_u32 v{t0}, v{G+4*j}, v{G+4*j+1}, v{G+4*j+2}")
                A(f"v_max_u32 v{t0}, v{t0}, v{G+4*j+3}")
                A(f"v_cmp_eq_u32 vcc, -1, v{t0}")
                A("s_cmp_lg_u32 vcc_lo, 0")
                A(f"s_cselect_b32 s34, {hex(1 << (2*j))}, 0")
                A("s_or_b32 s95, s95, s34")
                A("s_cmp_lg_u32 vcc_hi, 0")
                A(f"s_cselect_b32 s34, {hex(2 << (2*j))}, 0")
                A("s_or_b32 s95, s95, s34")
                self.label(sk)
            self.label(gs)
        A("s_mov_b32 s69, s95")
        A("s_or_b32 s34, s66, s67")
        A("s_or_b32 s34, s34, s69")
        A(f"s_cbranch_scc0 {dn}")
        A("s_sub_u32 s68, s68, 1")
        A("s_cmp_lg_u32 s68, 0")
        A(f"s_cbranch_scc1 {lp}")
        self.label(dn)
        self.stamp(4)
        A(f"v_mov_b32 v{t0}, v{vML}")
        self.row_allreduce("v_max_f32", [t0])
        self.cross_rows_allreduce("v_max_f32", t0, t1, do16=False)
        A(f"v_sub_f32 v{t0}, v{vML}, v{t0}")
        A(f"v_mul_f32 v{t0}, s62, v{t0}")
        A(f"v_exp_f32 v{t0}, v{t0}")
        A("s_nop 0")
        for j in range(16):
            A(f"ds_swizzle_b32 v{wj+j}, v{t0} offset:{j << 5}")
        A(f"v_mul_f32 v{t2}, v{t0}, v{vML+1}")
        self.row_allreduce("v_add_f32", [t2])
        self.cross_rows_allreduce("v_add_f32", t2, t1, do16=False)
        A(f"v_rcp_f32 v{t2}, v{t2}")
        for j in range(16):
            if j % 4 == 0:
                A(f"s_waitcnt lgkmcnt({12 - j})")
            sel = j & 1
            w2 = wj + (j & ~1)
            for h in range(2):
                g = G + 4 * j + 2 * h
                d = acc + 2 * h
                if j == 0:
                    A(f"v_pk_mul_f32 v[{d}:{d+1}], v[{w2}:{w2+1}], v[{g}:{g+1}] op_sel:[{sel},0] op_sel_hi:[{sel},1]")
                else:
                    A(f"v_pk_fma_f32 v[{d}:{d+1}], v[{w2}:{w2+1}], v[{g}:{g+1}], v[{d}:{d+1}] op_sel:[{sel},0,0] op_sel_hi:[{sel},1,1]")
        A("s_nop 1")
        A(f"v_permlane32_swap_b32 v{acc}, v{acc+1}")
        A(f"v_permlane32_swap_b32 v{acc+2}, v{acc+3}")
        A("s_nop 0")
        A(f"v_add_f32 v{acc}, v{acc}, v{acc+1}")
        A(f"v_add_f32 v{acc+2}, v{acc+2}, v{acc+3}")
        A(f"v_mul_f32 v{acc}, v{acc}, v{t2}")
        A(f"v_mul_f32 v{acc+2}, v{acc+2}, v{t2}")
        A(f"v_cvt_pk_bf16_f32 v{acc}, v{acc}, v{acc}")
        A(f"v_cvt_pk_bf16_f32 v{acc+2}, v{acc+2}, v{acc+2}")
        A(f"ds_write2_b32 v{aW}, v{acc}, v{acc+2} offset0:{L_W//4 % 256} offset1:{(L_W//4 + 2) % 256}" if False else f"ds_write_b32 v{aW}, v{acc} offset:{L_W}")
        A(f"ds_write_b32 v{aW}, v{acc+2} offset:{L_W+8}")
        for i in range(4):
            A(f"ds_read_b128 v[{G+4*i}:{G+4*i+3}], v{aR} offset:{L_W + 16*i}")
        A("s_waitcnt lgkmcnt(3)")
        for r in range(4):
            A(f"v_and_b32 v{X+r}, v{mk+r}, v{G}")
        for j in range(16):
            x = X + 4 * (j & 1)
            if j < 15:
                if (j + 1) % 4 == 0:
                    A(f"s_waitcnt lgkmcnt({3 - (j+1)//4})")
                xn = X + 4 * ((j + 1) & 1)
                for r in range(4):
                    A(f"v_and_b32 v{xn+r}, v{mk+r}, v{G+j+1}")
            else:
                A("s_nop 1")
            c = "0" if j == 0 else f"v[{D}:{D+3}]"
            A(f"v_mfma_f32_16x16x32_bf16 v[{D}:{D+3}], a[{4*j}:{4*j+3}], v[{x}:{x+3}], {c}")
        self.exec_mask(0xff00ff0000ff00ff)
        A(f"v_lshlrev_b32 v{t0}, 2, v1")
        A("s_nop 4")
        for r in range(4):
            A(f"ds_write_b32 v{aD}, v{D+r} offset:{L_R + 32*r}")
        self.exec_all()
        A(f"v_lshlrev_b32 v{t0}, 2, v1")
        A("s_waitcnt lgkmcnt(0)")
        A("s_barrier")
        A("s_cmp_lg_u32 s28, 0")
        A("s_cbranch_scc1 L_end")
        for i in range(8):
            A(f"ds_read_b32 v{wj+i}, v{t0} offset:{L_R + 256*i}")
        A("s_waitcnt lgkmcnt(0)")
        for i in range(4):
            A(f"v_add_f32 v{wj+2*i}, v{wj+2*i}, v{wj+2*i+1}")
        A(f"v_add_f32 v{wj}, v{wj}, v{wj+2}")
        A(f"v_add_f32 v{wj+4}, v{wj+4}, v{wj+6}")
        A(f"v_add_f32 v{wj}, v{wj}, v{wj+4}")
        A(f"buffer_store_dword v{wj}, v{t0}, s[44:47], s94 offen sc1")
        self.stamp(5)
        A("s_branch L_end")

    def roleC(self):
        A, C = self.A, self.C
        self.label("L_roleC")
        Xr = self.QS + 16
        G = RB
        H = RB + 16
        vA0 = 2
        t0, t1, t2, t3 = 4, 5, 6, 7
        sel, mk, P, X, D = 8, 12, 16, 20, 28
        A("s_and_b32 s33, s28, 1")
        A("s_lshl_b32 s33, s33, 10")
        A("s_lshr_b32 s34, s28, 1")
        A("s_lshl_b32 s35, s34, 13")
        A("s_add_u32 s35, s35, s33")
        A(f"s_add_u32 s35, s35, {WS_HP}")
        A(f"v_lshl_add_u32 v{vA0}, v1, 4, s35")
        self.emasks(mk, t0, t1, t2)
        A(f"v_and_b32 v{t0}, 3, v1")
        vals = {0: (0x0c0c0100, 0x0c0c0302), 1: (0x01000c0c, 0x03020c0c)}
        for i in range(4):
            A(f"v_mov_b32 v{sel+i}, 0x0c0c0c0c")
        for e in range(4):
            A(f"v_cmp_eq_u32 vcc, {e}, v{t0}")
            base = sel + (0 if e < 2 else 2)
            A(f"v_mov_b32 v{t1}, {hex(vals[e & 1][0])}")
            A(f"v_mov_b32 v{t2}, {hex(vals[e & 1][1])}")
            A(f"v_cndmask_b32 v{base}, v{base}, v{t1}, vcc")
            A(f"v_cndmask_b32 v{base+1}, v{base+1}, v{t2}, vcc")
        for i in range(4):
            self.unpack(H + 2 * i, H + 2 * i + 1, Xr + i)
        GG = RB + 32
        A(f"v_lshrrev_b32 v{t0}, 2, v1")
        A(f"v_lshlrev_b32 v{t0}, 11, v{t0}")
        A(f"v_and_b32 v{t1}, 3, v1")
        A(f"v_lshl_add_u32 v{t0}, v{t1}, 8, v{t0}")
        A(f"v_add_u32 v{t3}, s35, v{t0}")
        p1 = self.newlabel("C_p1"); p1d = self.newlabel("C_p1d")
        A(f"s_mov_b32 s68, {POLL_MAX}")
        A("s_mov_b64 exec, 0xffff")
        self.label(p1)
        A(f"buffer_load_dword v{t0}, v{t3}, s[44:47], 0 offen sc1")
        A("s_waitcnt vmcnt(0)")
        A(f"v_cmp_eq_u32 vcc, -1, v{t0}")
        A("s_sub_u32 s68, s68, 1")
        A("s_cmp_eq_u32 s68, 0")
        A(f"s_cbranch_scc1 {p1d}")
        A("s_bcnt1_i32_b64 s96, vcc")
        A(f"s_cmp_le_u32 s96, {self.cthr}")
        A(f"s_cbranch_scc1 {p1d}")
        A("s_sleep 2")
        A(f"s_branch {p1}")
        self.label(p1d)
        A("s_mov_b32 s97, 4096")
        def loads():
            A(f"buffer_load_dwordx4 v[{GG}:{GG+3}], v{vA0}, s[44:47], 0 offen sc1")
            A(f"buffer_load_dwordx4 v[{GG+4}:{GG+7}], v{vA0}, s[44:47], 0 offen offset:2048 sc1")
            A(f"buffer_load_dwordx4 v[{GG+8}:{GG+11}], v{vA0}, s[44:47], s97 offen sc1")
            A(f"buffer_load_dwordx4 v[{GG+12}:{GG+15}], v{vA0}, s[44:47], s97 offen offset:2048 sc1")
        self.gather_pipe(loads, 4, list(range(GG, GG + 16)), t0, self.pp, self.pgap, name="C")
        self.stamp(4)
        for h in range(2):
            A(f"v_pk_add_f32 v[{G+2*h}:{G+2*h+1}], v[{GG+2*h}:{GG+2*h+1}], v[{GG+4+2*h}:{GG+4+2*h+1}]")
            A(f"v_pk_add_f32 v[{G+8+2*h}:{G+8+2*h+1}], v[{GG+8+2*h}:{GG+8+2*h+1}], v[{GG+12+2*h}:{GG+12+2*h+1}]")
        for h in range(2):
            A(f"v_pk_add_f32 v[{G+2*h}:{G+2*h+1}], v[{G+2*h}:{G+2*h+1}], v[{G+8+2*h}:{G+8+2*h+1}]")
        A("s_lshl_b32 s34, s34, 11")
        A("s_add_u32 s34, s34, s33")
        A(f"v_lshl_add_u32 v{t0}, v1, 4, s34")
        A(f"ds_write_b128 v{t0}, v[{G}:{G+3}] offset:{L_R}")
        A(f"v_lshlrev_b32 v{t0}, 5, v1")
        A("s_waitcnt lgkmcnt(0)")
        A("s_barrier")
        A(f"ds_read_b128 v[{G}:{G+3}], v{t0} offset:{L_R}")
        A(f"ds_read_b128 v[{G+4}:{G+7}], v{t0} offset:{L_R+16}")
        A(f"ds_read_b128 v[{G+8}:{G+11}], v{t0} offset:{L_R+2048}")
        A(f"ds_read_b128 v[{G+12}:{G+15}], v{t0} offset:{L_R+2048+16}")
        A("s_waitcnt lgkmcnt(0)")
        for i in range(8):
            A(f"v_add_f32 v{G+i}, v{G+i}, v{G+8+i}")
        for i in range(0, 8, 2):
            A(f"v_cvt_pk_bf16_f32 v{t0}, v{G+i}, v{G+i+1}")
            self.unpack(G + i, G + i + 1, t0)
        for i in range(8):
            A(f"v_add_f32 v{H+i}, v{H+i}, v{G+i}")
        for i in range(0, 8, 2):
            A(f"v_cvt_pk_bf16_f32 v{t0}, v{H+i}, v{H+i+1}")
            self.unpack(H + i, H + i + 1, t0)
        self.layernorm(H, 8, t0, hex(f32bits(1.0 / 512)))
        self.stamp(7)
        for i in range(4):
            A(f"v_cvt_pk_bf16_f32 v{G+i}, v{H+2*i}, v{H+2*i+1}")
        A("s_lshl_b32 s34, s28, 6")
        A(f"v_lshrrev_b32 v{t0}, 2, v1")
        A(f"v_lshl_add_u32 v{t0}, v{t0}, 2, s34")
        for i in range(4):
            A(f"ds_bpermute_b32 v{P+i}, v{t0}, v{G+i}")
        A("s_waitcnt lgkmcnt(0)")
        def mkx(j):
            x = X + 2 * (j & 1)
            A(f"v_perm_b32 v{x}, v{P+(j>>1)}, v{P+(j>>1)}, v{sel+(j&1)}")
            A(f"v_perm_b32 v{x+1}, v{P+(j>>1)}, v{P+(j>>1)}, v{sel+2+(j&1)}")
        mkx(0)
        for j in range(8):
            x = X + 2 * (j & 1)
            if j < 7:
                mkx(j + 1)
            else:
                A("s_nop 1")
            for mat in range(2):
                for hf in range(2):
                    d = D + (mat * 2 + hf) * 4
                    c = "0" if j == 0 else f"v[{d}:{d+3}]"
                    a = 32 * mat + 4 * j + 2 * hf
                    A(f"v_mfma_f32_16x16x16_bf16 v[{d}:{d+3}], a[{a}:{a+1}], v[{x}:{x+1}], {c}")
        A("s_lshl_b32 s34, s28, 4")
        A(f"v_and_b32 v{t0}, 3, v1")
        A(f"v_lshlrev_b32 v{t0}, 6, v{t0}")
        A(f"v_lshrrev_b32 v{t1}, 4, v1")
        A(f"v_lshl_add_u32 v{t0}, v{t1}, 2, v{t0}")
        A(f"v_add_u32 v{t0}, s34, v{t0}")
        self.exec_mask(0xf0000f0000f0000f)
        A("s_nop 3")
        for mat in range(2):
            for hf in range(2):
                for r in range(4):
                    off = L_G + (mat * 32 + 8 * r + 4 * hf) * 64
                    A(f"ds_write_b32 v{t0}, v{D+(mat*2+hf)*4+r} offset:{off}")
        self.exec_all()
        A(f"v_lshlrev_b32 v{t0}, 6, v1")
        A("s_waitcnt lgkmcnt(0)")
        A("s_barrier")
        self.stamp(8)
        for i in range(4):
            A(f"ds_read_b128 v[{G+4*i}:{G+4*i+3}], v{t0} offset:{L_G + 16*i}")
        A("s_waitcnt lgkmcnt(0)")
        n = 16
        while n > 1:
            n //= 2
            for i in range(n):
                A(f"v_add_f32 v{G+i}, v{G+i}, v{G+n+i}")
        self.bf16_round1(G, G)
        A(f"v_mov_b32 v{t1}, v{G}")
        A("s_nop 1")
        A(f"v_permlane32_swap_b32 v{G}, v{t1}")
        A("s_nop 0")
        A(f"v_mul_f32 v{t0}, s63, v{G}")
        A(f"v_exp_f32 v{t0}, v{t0}")
        A("s_nop 0")
        A(f"v_add_f32 v{t0}, 1.0, v{t0}")
        A(f"v_rcp_f32 v{t2}, v{t0}")
        A("s_nop 0")
        self.bf16_round1(t2, t2)
        A(f"v_mul_f32 v{t2}, v{t2}, v{t1}")
        A(f"v_cvt_pk_bf16_f32 v{t2}, v{t2}, v{t2}")
        A(f"v_lshrrev_b32 v{t0}, 4, v1")
        A(f"v_lshlrev_b32 v{t0}, 5, v{t0}")
        for j in range(8):
            A(f"ds_bpermute_b32 v{G+j}, v{t0}, v{t2} offset:{4*j}")
        A(f"s_sub_u32 s33, s3, {C0}")
        A("s_lshl_b32 s33, s33, 11")
        A("s_lshl_b32 s34, s28, 9")
        A("s_add_u32 s33, s33, s34")
        A(f"s_add_u32 s33, s33, {WS_OP}")
        A(f"v_lshrrev_b32 v{t0}, 4, v1")
        A(f"v_lshlrev_b32 v{t0}, 7, v{t0}")
        A(f"v_and_b32 v{t1}, 7, v1")
        A(f"v_lshl_add_u32 v{t0}, v{t1}, 4, v{t0}")
        A("s_waitcnt lgkmcnt(0)")
        for r in range(4):
            A(f"v_and_b32 v{X+r}, v{mk+r}, v{G}")
        for j in range(8):
            x = X + 4 * (j & 1)
            if j < 7:
                xn = X + 4 * ((j + 1) & 1)
                for r in range(4):
                    A(f"v_and_b32 v{xn+r}, v{mk+r}, v{G+j+1}")
            else:
                A("s_nop 1")
            c = "0" if j == 0 else f"v[{D}:{D+3}]"
            A(f"v_mfma_f32_16x16x32_bf16 v[{D}:{D+3}], a[{64+4*j}:{64+4*j+3}], v[{x}:{x+3}], {c}")
        self.exec_mask(0x00ff00ff00ff00ff)
        A("s_nop 5")
        A(f"buffer_store_dwordx4 v[{D}:{D+3}], v{t0}, s[44:47], s33 offen sc1")
        self.exec_all()
        self.stamp(5)
        A("s_branch L_end")

    def roleE(self):
        A, C = self.A, self.C
        self.label("L_roleE")
        a, hp, xr = RB, RB + 8, RB + 10
        vA0, vA1, vA2 = 2, 3, 4
        t0, t1, t2 = 6, 7, 8
        A(f"s_sub_u32 s33, s3, {E0}")
        A("s_lshl_b32 s33, s33, 2")
        A("s_add_u32 s33, s33, s28")
        A("s_lshr_b32 s34, s33, 2")
        A("s_lshl_b32 s34, s34, 5")
        A("s_and_b32 s35, s33, 3")
        A("s_lshl_b32 s35, s35, 1")
        A("s_add_u32 s34, s34, s35")
        A(f"v_lshrrev_b32 v{t0}, 4, v1")
        A(f"v_lshlrev_b32 v{t0}, 3, v{t0}")
        A(f"v_add_u32 v{t0}, s34, v{t0}")
        A(f"v_lshlrev_b32 v{vA2}, 1, v{t0}")
        self.srd(56, 4, None, 1024)
        A(f"buffer_load_dword v{xr}, v{vA2}, s[56:59], 0 offen")
        A(f"v_and_b32 v{t1}, 7, v1")
        A(f"v_lshlrev_b32 v{t1}, 11, v{t1}")
        A(f"v_lshl_add_u32 v{vA1}, v{t0}, 2, v{t1}")
        A(f"v_add_u32 v{vA1}, {WS_HP}, v{vA1}")
        def loads_hp():
            A(f"buffer_load_dwordx2 v[{hp}:{hp+1}], v{vA1}, s[44:47], 0 offen sc1")
        self.gather_loop(loads_hp, [hp, hp + 1], t0, name="EH")
        for ctrl in ("quad_perm:[1,0,3,2]", "quad_perm:[2,3,0,1]", "row_half_mirror"):
            A("s_nop 1")
            self.dpp("v_add_f32", hp, hp, hp, ctrl)
            self.dpp("v_add_f32", hp + 1, hp + 1, hp + 1, ctrl)
        A(f"v_cvt_pk_bf16_f32 v{t0}, v{hp}, v{hp+1}")
        self.unpack(hp, hp + 1, t0)
        self.unpack(t0, t1, xr)
        A(f"v_add_f32 v{hp}, v{hp}, v{t0}")
        A(f"v_add_f32 v{hp+1}, v{hp+1}, v{t1}")
        A(f"v_cvt_pk_bf16_f32 v{t0}, v{hp}, v{hp+1}")
        self.unpack(hp, hp + 1, t0)
        A("s_lshl_b32 s35, s33, 5")
        A(f"s_add_u32 s35, s35, {WS_OP}")
        A(f"v_lshlrev_b32 v{vA0}, 11, v1")
        A(f"v_add_u32 v{vA0}, s35, v{vA0}")
        self.srd(52, 22, None, 1024)
        ga_ = RB + 16
        for i in range(8):
            A(f"v_mov_b32 v{ga_+i}, 0")
        def loads_op():
            A(f"buffer_load_dwordx4 v[{ga_}:{ga_+3}], v{vA0}, s[44:47], 0 offen sc1")
            A(f"buffer_load_dwordx4 v[{ga_+4}:{ga_+7}], v{vA0}, s[44:47], 0 offen offset:16 sc1")
        self.gather_pipe(loads_op, 2, list(range(ga_, ga_ + 8)), t0, self.pp, self.pgap, active_mask=(1 << NC) - 1, name="EO")
        self.stamp(4)
        for i in range(8):
            A(f"v_mov_b32 v{a+i}, v{ga_+i}")
        for e in range(2):
            for r in range(2):
                A(f"v_permlane32_swap_b32 v{a+4*e+r}, v{a+4*e+r+2}")
        A("s_nop 0")
        for e in range(2):
            for r in range(2):
                A(f"v_add_f32 v{a+4*e+r}, v{a+4*e+r}, v{a+4*e+r+2}")
        A("s_nop 1")
        for e in range(2):
            A(f"v_permlane16_swap_b32 v{a+4*e}, v{a+4*e+1}")
        A("s_nop 0")
        for e in range(2):
            A(f"v_add_f32 v{a+4*e}, v{a+4*e}, v{a+4*e+1}")
        self.row_allreduce("v_add_f32", [a, a + 4])
        A(f"v_cvt_pk_bf16_f32 v{t0}, v{a}, v{a+4}")
        self.unpack(a, a + 4, t0)
        A(f"v_add_f32 v{a}, v{a}, v{hp}")
        A(f"v_add_f32 v{a+4}, v{a+4}, v{hp+1}")
        A(f"v_cvt_pk_bf16_f32 v{t0}, v{a}, v{a+4}")
        self.exec_mask(0x0001000100010001)
        A(f"buffer_store_dword v{t0}, v{vA2}, s[52:55], 0 offen")
        self.exec_all()
        self.stamp(5)
        A("s_cmp_lg_u32 s33, 0")
        A("s_cbranch_scc1 L_end")
        C("epoch update")
        A("s_add_u32 s29, s29, 1")
        A(f"v_mov_b32 v{t0}, s29")
        A(f"v_mov_b32 v{t1}, {WS_EPOCH}")
        A("s_mov_b64 exec, 1")
        A(f"buffer_store_dword v{t0}, v{t1}, s[44:47], 0 offen")
        A("s_branch L_end")


if __name__ == "__main__":
    import argparse
    ap = argparse.ArgumentParser()
    ap.add_argument("-o", default="cdna_kernels/" + KN + ".s")
    ap.add_argument("--nr", type=int, default=3)
    ap.add_argument("--ns", type=int, default=5)
    ap.add_argument("--th", type=int, default=3)
    ap.add_argument("--ps", type=int, default=4)
    ap.add_argument("--stamps", action="store_true")
    ap.add_argument("--noq", type=int, default=0)
    ap.add_argument("--notail", action="store_true")
    ap.add_argument("--sizes", default="122,130,130,130")
    ap.add_argument("--early", default="B")
    ap.add_argument("--chunks", default="5")
    ap.add_argument("--th0", type=int, default=0)
    ap.add_argument("--pp", type=int, default=3)
    ap.add_argument("--pgap", type=int, default=6)
    ap.add_argument("--cthr", type=int, default=4)
    ap.add_argument("--gpol", default="nt")
    ap.add_argument("--qpol", default="nt")
    ap.add_argument("--n0", type=int, default=112)
    ap.add_argument("--p1", type=int, default=76)
    ap.add_argument("--p2", type=int, default=96)
    ap.add_argument("--biasc", type=float, default=6.0)
    ap.add_argument("--gain", type=float, default=1.0)
    ap.add_argument("--nobal", action="store_true")
    ap.add_argument("--qrot", type=int, default=0)
    ap.add_argument("--amode", type=int, default=0)
    ap.add_argument("--arot", type=int, default=0)
    ap.add_argument("--hst", default="sc1")
    ap.add_argument("--defpol", default="")
    ap.add_argument("--hld", default="sc1")
    ap.add_argument("--hrot", type=int, default=0)
    a = ap.parse_args()
    g = Gen(nr=a.nr, ns=a.ns, th=a.th, ps=a.ps, stamps=a.stamps, noq=a.noq, notail=a.notail,
            sizes=tuple(map(int, a.sizes.split(","))), early=a.early, chunks=tuple(map(int, a.chunks.split(","))), th0=a.th0, pp=a.pp, pgap=a.pgap, cthr=a.cthr, gpol=('' if a.gpol == 'none' else ' ' + a.gpol), qpol=('' if a.qpol == 'none' else ' ' + a.qpol),
            n0=a.n0, p1=a.p1, p2=a.p2, biasc=a.biasc, gain=a.gain, bal=not a.nobal, qrot=a.qrot, hrot=a.hrot, amode=a.amode, arot=a.arot)
    txt = g.gen()
    if a.hst != "sc1" or a.hld != "sc1":
        out = []
        for ln in txt.split("\n"):
            if ln.rstrip().endswith(" sc1"):
                if "buffer_store" in ln:
                    ln = ln.rstrip()[:-3] + a.hst.replace("_", " ")
                elif "buffer_load" in ln:
                    ln = ln.rstrip()[:-3] + a.hld.replace("_", " ")
            out.append(ln)
        txt = "\n".join(out)
    import re as _re
    for ch, srd in (("K", r"s\[36:39\]"), ("V", r"s\[40:43\]"), ("W", r"s\[52:55\]"), ("W", r"s\[56:59\]")):
        if ch in a.defpol:
            txt = _re.sub("(" + srd + r".*) nt$", r"\1", txt, flags=_re.M)
    open(a.o, "w").write(txt)
    print("wrote", a.o)
```

```python
import sys, struct

KN = "sequential_preLN__gqa_block_cached__glu_gated_glu__decode"

def f32bits(x):
    return struct.unpack("<I", struct.pack("<f", x))[0]

WS_EPOCH = 0
WS_T     = 4096
WS_PML   = 8192
WS_HP    = 32768
WS_Q     = 65536
WS_PO    = 131072
WS_OP    = WS_PO + 524288
WS_Q1    = 786432
WS_STAMP = 1 << 20
WS_SIZE  = 2 << 20
QR = 4
INV = 0x40000000
WS_CTR2 = 1 << 20 | 1 << 19

L_Q  = 0
L_O  = 1024
L_M  = 9216
L_L  = 10240
L_W  = 11264
L_R  = 13312
L_G  = 17408
L_QP = 21504
L_CTR = 22528
L_EXT = 22536
L_QF = 22544
LDS_BYTES = 22592

NB, NC, NE_WG = 64, 56, 16
B0, C0, E0 = 0, 64, 120
POLL_MAX = 200000

vKo, vVo = 2, 3
vQ, vS, vO = 4, 20, 24
vM, vL = 32, 33
vMk0, vMk1 = 34, 35
vT0, vT1 = 36, 37
vX = 38
vF, vNM = 42, 43
vTk = 44
vIC = 48
vZ = 50
vSt = 51
vTg = 54
vPA = 55
RB = 56


class Gen:
    def __init__(self, nr=3, ns=5, th=3, stamps=False, ps=10, noq=0, notail=False,
                 sizes=(122, 130, 130, 130), early="B", chunks=(2, 2, 1), th0=None, pp=3, pgap=6, cthr=4, gpol=' nt', qpol=' nt', n0=112, p1=76, p2=96, biasc=6.0, gain=1.0, bal=True, qrot=0, hrot=0, amode=0, arot=0, csleep=1, mid='', qc=0, pstep=0):
        self.L = []
        self.nr, self.ns, self.th, self.ps = nr, ns, th, ps
        self.stamps = stamps
        self.noq = noq
        self.notail = notail
        self.sizes = sizes
        self.early = early
        self.chunks = chunks
        self.qrot = qrot
        self.csleep = csleep
        self.mid = mid
        self.qc = qc
        self.pstep = pstep
        self.amode, self.arot = amode, arot
        self.hrot = hrot
        self.n0, self.p1, self.p2, self.biasc, self.gain, self.bal = n0, p1, p2, biasc, gain, bal
        self.gpol, self.qpol = gpol, qpol
        self.pp, self.pgap, self.cthr = pp, pgap, cthr
        self.th0 = th0 if th0 else th
        assert sum(sizes) == 512 and sum(chunks) == ns
        self.lbl = 0
        self.QS = RB + nr * 32
        self.NV = self.QS + 24

    def A(self, s): self.L.append("  " + s)
    def C(self, s): self.L.append("  ; " + s)
    def label(self, name): self.L.append(name + ":")
    def newlabel(self, p="L"):
        self.lbl += 1
        return f"{p}_{self.lbl}"

    def srd(self, d, base_lo, off_sgpr, size):
        A = self.A
        if off_sgpr is not None:
            A(f"s_add_u32 s{d}, s{base_lo}, s{off_sgpr}")
            A(f"s_addc_u32 s{d+1}, s{base_lo+1}, 0")
        else:
            A(f"s_mov_b32 s{d}, s{base_lo}")
            A(f"s_mov_b32 s{d+1}, s{base_lo+1}")
        A(f"s_mov_b32 s{d+2}, {size}")
        A(f"s_mov_b32 s{d+3}, 0x00020000")

    def exec_all(self): self.A("s_mov_b64 exec, -1")
    def exec_mask(self, m):
        lo, hi = m & 0xffffffff, m >> 32
        self.A(f"s_mov_b32 exec_lo, {hex(lo)}")
        self.A(f"s_mov_b32 exec_hi, {hex(hi)}")

    def dpp(self, op, d, s0, s1, ctrl):
        self.A(f"{op}_dpp v{d}, v{s0}, v{s1} {ctrl} row_mask:0xf bank_mask:0xf")

    def row_allreduce(self, op, regs):
        for ctrl in ("quad_perm:[1,0,3,2]", "quad_perm:[2,3,0,1]", "row_half_mirror", "row_mirror"):
            if len(regs) < 3:
                self.A("s_nop 1")
            for r in regs:
                self.dpp(op, r, r, r, ctrl)

    def cross_rows_allreduce(self, op, r, t, do16=True, do32=True):
        A = self.A
        for sw, en in (("v_permlane32_swap_b32", do32), ("v_permlane16_swap_b32", do16)):
            if not en:
                continue
            A(f"v_mov_b32 v{t}, v{r}")
            A("s_nop 1")
            A(f"{sw} v{r}, v{t}")
            A("s_nop 0")
            A(f"{op} v{r}, v{r}, v{t}")

    def wave_allreduce(self, op, r, t):
        self.row_allreduce(op, [r])
        self.cross_rows_allreduce(op, r, t)

    def bf16_round1(self, d, s):
        self.A(f"v_cvt_pk_bf16_f32 v{d}, v{s}, v{s}")
        self.A(f"v_and_b32 v{d}, s60, v{d}")

    def unpack(self, lo, hi, p):
        self.A(f"v_lshlrev_b32 v{lo}, 16, v{p}")
        self.A(f"v_and_b32 v{hi}, s60, v{p}")

    def stamp(self, idx):
        if not self.stamps:
            return
        A = self.A
        A("s_memrealtime s[98:99]")
        A("s_waitcnt lgkmcnt(0)")
        A(f"s_mul_i32 s100, s2, {5*64}")
        A("s_lshl_b32 s101, s28, 6")
        A("s_add_u32 s100, s100, s101")
        A(f"s_add_u32 s100, s100, {WS_STAMP + idx*4}")
        A(f"v_mov_b32 v{vSt}, s98")
        A(f"v_mov_b32 v{vSt+1}, s100")
        A("s_mov_b64 s[98:99], exec")
        A("s_mov_b64 exec, 1")
        A(f"buffer_store_dword v{vSt}, v{vSt+1}, s[44:47], 0 offen")
        A("s_mov_b64 exec, s[98:99]")

    def layernorm(self, X, n, T, cnt_inv, Y=None, ny=None):
        A = self.A
        t0, t1, t2, t3 = T, T + 1, T + 2, T + 3
        A(f"v_add_f32 v{t0}, v{X}, v{X+1}")
        for i in range(2, n):
            A(f"v_add_f32 v{t0}, v{t0}, v{X+i}")
        self.wave_allreduce("v_add_f32", t0, t1)
        A(f"v_mul_f32 v{t0}, {cnt_inv}, v{t0}")
        A(f"v_sub_f32 v{t1}, v{X}, v{t0}")
        A(f"v_mul_f32 v{t2}, v{t1}, v{t1}")
        for i in range(1, n):
            A(f"v_sub_f32 v{t1}, v{X+i}, v{t0}")
            A(f"v_fmac_f32 v{t2}, v{t1}, v{t1}")
        self.wave_allreduce("v_add_f32", t2, t1)
        A(f"v_mul_f32 v{t2}, {cnt_inv}, v{t2}")
        self.bf16_round1(t0, t0)
        self.bf16_round1(t2, t2)
        A(f"v_add_f32 v{t2}, {hex(f32bits(1e-5))}, v{t2}")
        self.bf16_round1(t2, t2)
        A(f"v_sqrt_f32 v{t2}, v{t2}")
        A("s_nop 0")
        self.bf16_round1(t2, t2)
        A(f"v_rcp_f32 v{t3}, v{t2}")
        if Y is not None:
            X, n = Y, ny
        for i in range(n):
            A(f"v_sub_f32 v{X+i}, v{X+i}, v{t0}")
        for i in range(0, n, 2):
            A(f"v_cvt_pk_bf16_f32 v{t1}, v{X+i}, v{X+i+1}")
            self.unpack(X + i, X + i + 1, t1)
        for i in range(n):
            A(f"v_mul_f32 v{t1}, v{X+i}, v{t3}")
            A(f"v_fma_f32 v{X+i}, -v{t1}, v{t2}, v{X+i}")
            A(f"v_fma_f32 v{X+i}, v{X+i}, v{t3}, v{t1}")
        for i in range(0, n, 2):
            A(f"v_cvt_pk_bf16_f32 v{t1}, v{X+i}, v{X+i+1}")
            self.unpack(X + i, X + i + 1, t1)

    def gather_loop(self, loads, regs, vt, active_mask=None, name="G"):
        A = self.A
        lp = self.newlabel(name + "_poll")
        dn = self.newlabel(name + "_done")
        if active_mask is None:
            A("s_mov_b64 s[66:67], -1")
        else:
            A(f"s_mov_b32 s66, {hex(active_mask & 0xffffffff)}")
            A(f"s_mov_b32 s67, {hex(active_mask >> 32)}")
        A(f"s_mov_b32 s68, {POLL_MAX}")
        self.label(lp)
        A("s_mov_b64 exec, s[66:67]")
        loads()
        A("s_waitcnt vmcnt(0)")
        rs = list(regs)
        if len(rs) == 2:
            A(f"v_max_u32 v{vt}, v{rs[0]}, v{rs[1]}")
        else:
            A(f"v_max3_u32 v{vt}, v{rs[0]}, v{rs[1]}, v{rs[2]}")
            i = 3
            while i < len(rs):
                if i + 1 < len(rs):
                    A(f"v_max3_u32 v{vt}, v{vt}, v{rs[i]}, v{rs[i+1]}")
                    i += 2
                else:
                    A(f"v_max_u32 v{vt}, v{vt}, v{rs[i]}")
                    i += 1
        A(f"v_cmp_eq_u32 vcc, -1, v{vt}")
        A("s_sub_u32 s68, s68, 1")
        A("s_cmp_eq_u32 s68, 0")
        A(f"s_cbranch_scc1 {dn}")
        A("s_mov_b64 s[66:67], vcc")
        A(f"s_cbranch_vccz {dn}")
        A("s_sleep 1")
        A(f"s_branch {lp}")
        self.label(dn)
        self.exec_all()

    def maxreduce(self, vt, rs):
        A = self.A
        rs = list(rs)
        if len(rs) == 1:
            A(f"v_mov_b32 v{vt}, v{rs[0]}")
        elif len(rs) == 2:
            A(f"v_max_u32 v{vt}, v{rs[0]}, v{rs[1]}")
        else:
            A(f"v_max3_u32 v{vt}, v{rs[0]}, v{rs[1]}, v{rs[2]}")
            i = 3
            while i < len(rs):
                if i + 1 < len(rs):
                    A(f"v_max3_u32 v{vt}, v{vt}, v{rs[i]}, v{rs[i+1]}")
                    i += 2
                else:
                    A(f"v_max_u32 v{vt}, v{vt}, v{rs[i]}")
                    i += 1

    def gather_pipe(self, loads, nload, regs, vt, P, gap, active_mask=None, name="GP", preinit=True):
        A = self.A
        lp = self.newlabel(name + "_poll")
        dn = self.newlabel(name + "_done")
        if active_mask is None:
            A("s_mov_b64 s[66:67], -1")
        else:
            A(f"s_mov_b32 s66, {hex(active_mask & 0xffffffff)}")
            A(f"s_mov_b32 s67, {hex(active_mask >> 32)}")
        A("s_mov_b64 exec, s[66:67]")
        if preinit:
            for r in regs:
                A(f"v_mov_b32 v{r}, -1")
        A(f"s_mov_b32 s68, {POLL_MAX * P}")
        A("s_waitcnt vmcnt(0)")
        for k in range(P - 1):
            loads()
            A(f"s_sleep {gap}")
        self.label(lp)
        loads()
        A(f"s_waitcnt vmcnt({nload * (P - 1)})")
        self.maxreduce(vt, regs)
        A(f"v_cmp_eq_u32 vcc, -1, v{vt}")
        A("s_sub_u32 s68, s68, 1")
        A("s_cmp_eq_u32 s68, 0")
        A(f"s_cbranch_scc1 {dn}")
        A("s_mov_b64 exec, vcc")
        A(f"s_cbranch_vccnz {lp}")
        self.label(dn)
        self.exec_all()

    def tile_body(self, pre, kb, vb, wait_k, wait_v, after_qk, after_pv):
        A = self.A
        if wait_k is not None:
            A(f"s_waitcnt vmcnt({wait_k})")
        for m in range(4):
            k = kb + 4 * m
            c = "0" if m == 0 else f"v[{vS}:{vS+3}]"
            A(f"v_mfma_f32_16x16x32_bf16 v[{vS}:{vS+3}], {pre}[{k}:{k+3}], v[{vQ+4*m}:{vQ+4*m+3}], {c}")
        n = after_qk()
        if n < 8:
            A(f"s_nop {7 - n}")
        A(f"v_cvt_pk_bf16_f32 v{vT0}, v{vS}, v{vS+1}")
        A(f"v_cvt_pk_bf16_f32 v{vT1}, v{vS+2}, v{vS+3}")
        self.unpack(vS, vS + 1, vT0)
        self.unpack(vS + 2, vS + 3, vT1)
        for r in range(4):
            A(f"v_mul_f32 v{vS+r}, s61, v{vS+r}")
        A(f"v_cvt_pk_bf16_f32 v{vT0}, v{vS}, v{vS+1}")
        A(f"v_cvt_pk_bf16_f32 v{vT1}, v{vS+2}, v{vS+3}")
        self.unpack(vS, vS + 1, vT0)
        self.unpack(vS + 2, vS + 3, vT1)
        A(f"v_max3_f32 v{vT0}, v{vS}, v{vS+1}, v{vS+2}")
        A(f"v_max3_f32 v{vT0}, v{vT0}, v{vS+3}, v{vM}")
        self.cross_rows_allreduce("v_max_f32", vT0, vT1)
        A(f"v_sub_f32 v{vF}, v{vM}, v{vT0}")
        A(f"v_mul_f32 v{vNM}, s63, v{vT0}")
        A(f"v_mul_f32 v{vF}, s62, v{vF}")
        A(f"v_mov_b32 v{vM}, v{vT0}")
        A(f"v_exp_f32 v{vF}, v{vF}")
        for r in range(4):
            A(f"v_fma_f32 v{vS+r}, v{vS+r}, s62, v{vNM}")
        for r in range(4):
            A(f"v_exp_f32 v{vS+r}, v{vS+r}")
        for i in range(8):
            A(f"v_mul_f32 v{vO+i}, v{vF}, v{vO+i}")
        A(f"v_add_f32 v{vT0}, v{vS}, v{vS+1}")
        A(f"v_add_f32 v{vT1}, v{vS+2}, v{vS+3}")
        A(f"v_add_f32 v{vT0}, v{vT0}, v{vT1}")
        A(f"v_fma_f32 v{vL}, v{vL}, v{vF}, v{vT0}")
        for r in range(4):
            A(f"v_cvt_pk_bf16_f32 v{vS+r}, v{vS+r}, v{vS+r}")
        A(f"v_and_b32 v{vX}, v{vMk0}, v{vS}")
        A(f"v_and_b32 v{vX+1}, v{vMk1}, v{vS}")
        if wait_v is not None:
            A(f"s_waitcnt vmcnt({wait_v})")
        for r in range(4):
            x = vX + 2 * (r & 1)
            if r < 3:
                xn = vX + 2 * ((r + 1) & 1)
                A(f"v_and_b32 v{xn}, v{vMk0}, v{vS+r+1}")
                A(f"v_and_b32 v{xn+1}, v{vMk1}, v{vS+r+1}")
            v = vb + 4 * r
            A(f"v_mfma_f32_16x16x16_bf16 v[{vO}:{vO+3}], {pre}[{v}:{v+1}], v[{x}:{x+1}], v[{vO}:{vO+3}]")
            A(f"v_mfma_f32_16x16x16_bf16 v[{vO+4}:{vO+7}], {pre}[{v+2}:{v+3}], v[{x}:{x+1}], v[{vO+4}:{vO+7}]")
        after_pv()

    def tk2off(self):
        A = self.A
        if self.amode == 0:
            A("s_lshl_b32 s34, s33, 12")
            A("s_add_u32 s34, s34, s81")
        elif self.amode == 1:
            A("s_lshr_b32 s34, s33, 2")
            A("s_lshl_b32 s34, s34, 16")
            A("s_and_b32 s35, s33, 3")
            A("s_lshl_b32 s35, s35, 12")
            A("s_add_u32 s34, s34, s35")
            A("s_add_u32 s34, s34, s81")
        elif self.amode in (4, 5):
            lg = (self.arot % 100).bit_length() - 1
            if self.amode == 5:
                A("s_add_u32 s34, s33, s95")
                A("s_and_b32 s34, s34, 127")
                A("s_lshr_b32 s34, s34, 2")
            else:
                A("s_lshr_b32 s34, s33, 2")
            A(f"s_lshl_b32 s34, s34, {14 + lg}")
            A("s_and_b32 s35, s33, 3")
            A(f"s_lshl_b32 s35, s35, {12 + (lg if self.arot >= 100 else 0)}")
            A("s_add_u32 s34, s34, s35")
            A("s_add_u32 s34, s34, s81")
        elif self.amode == 2:
            A("s_add_u32 s34, s33, s95")
            A("s_and_b32 s34, s34, 127")
            A("s_lshl_b32 s34, s34, 12")
            A("s_add_u32 s34, s34, s81")
        elif self.amode == 3:
            A("s_xor_b32 s34, s33, s95")
            A("s_and_b32 s34, s34, 127")
            A("s_lshl_b32 s34, s34, 12")
            A("s_add_u32 s34, s34, s81")

    def loadK(self, pre, kb, soff):
        for m in range(4):
            r = kb + 4 * m
            self.A(f"buffer_load_dwordx4 {pre}[{r}:{r+3}], v{vKo}, s[36:39], s{soff} offen offset:{m*64} nt")

    def loadV(self, pre, vb, soff):
        for m in range(4):
            r = vb + 4 * m
            self.A(f"buffer_load_dwordx4 {pre}[{r}:{r+3}], v{vVo}, s[40:43], s{soff} offen offset:{m*1024} nt")

    def gen(self):
        A, C = self.A, self.C
        NR, NS, TH = self.nr, self.ns, self.th
        self.L.append(f"; @launch grid=(256,1,1) block=(256,1,1) lds={LDS_BYTES}")
        self.L.append('.amdgcn_target "amdgcn-amd-amdhsa--gfx950"')
        self.L.append(".text")
        self.L.append(f".globl {KN}_kernel")
        self.L.append(".p2align 8")
        self.L.append(f".type {KN}_kernel,@function")
        self.label(f"{KN}_kernel")
        A("s_cmp_ge_u32 s2, 256")
        A("s_cbranch_scc1 L_end")
        A("s_load_dwordx16 s[4:19], s[0:1], 0")
        A("s_load_dwordx8 s[20:27], s[0:1], 64")
        if self.bal:
            A("s_memrealtime s[96:97]")
        A("v_lshrrev_b32 v2, 6, v0")
        A("v_and_b32 v1, 63, v0")
        A("s_mov_b32 s60, 0xffff0000")
        A("v_readfirstlane_b32 s28, v2")
        A(f"s_mov_b32 s61, {hex(f32bits(128 ** -0.5))}")
        A(f"s_mov_b32 s62, {hex(f32bits(1.4426950408889634))}")
        A(f"s_mov_b32 s63, {hex(f32bits(-1.4426950408889634))}")
        A("s_lshr_b32 s33, s2, 3")
        A("s_lshr_b32 s31, s33, 2")
        if self.hrot:
            A(f"s_add_u32 s31, s31, {self.hrot}")
            A("s_and_b32 s31, s31, 7")
        A("s_and_b32 s33, s33, 3")
        A("s_and_b32 s32, s2, 7")
        A("s_lshl_b32 s32, s32, 2")
        A("s_add_u32 s32, s32, s33")
        A("s_and_b32 s34, s2, 7")
        A("s_lshl_b32 s34, s34, 3")
        A("s_add_u32 s3, s34, s31")
        C("role class s70: 1=B (sub 0,2) 2=C 3=E 0=none ; s3 = index")
        A("s_mov_b32 s70, 1")
        A("s_bitcmp0_b32 s33, 0")
        A("s_cbranch_scc1 L_role_done")
        A("s_cmp_eq_u32 s33, 1")
        A("s_cbranch_scc0 L_role_s3")
        A("s_mov_b32 s70, 2")
        A(f"s_cmp_lt_u32 s3, {NC}")
        A("s_cbranch_scc1 L_role_done")
        A("s_mov_b32 s70, 3")
        A(f"s_sub_u32 s3, s3, {NC}")
        A("s_branch L_role_done")
        self.label("L_role_s3")
        A("s_cmp_lt_u32 s3, 8")
        A("s_cselect_b32 s70, 3, 0")
        A("s_add_u32 s3, s3, 8")
        self.label("L_role_done")
        A("s_movk_i32 s49, 0xfff")
        A(f"v_lshlrev_b32 v{vVo}, 4, v1")
        A(f"v_and_b32 v{vT0}, 3, v1")
        A(f"v_lshlrev_b32 v{vT0}, 2, v{vT0}")
        A(f"v_bfe_u32 v{vT1}, v1, 2, 2")
        A(f"v_add_u32 v{vT0}, v{vT0}, v{vT1}")
        A(f"v_lshlrev_b32 v{vT0}, 8, v{vT0}")
        A(f"v_lshrrev_b32 v{vT1}, 4, v1")
        A(f"v_lshl_add_u32 v{vKo}, v{vT1}, 4, v{vT0}")
        A(f"v_mov_b32 v{vZ}, 0")
        A(f"v_lshlrev_b32 v{vNM}, 5, v1")
        A(f"v_lshrrev_b32 v{vIC}, 4, v1")
        A(f"v_lshlrev_b32 v{vIC}, 9, v{vIC}")
        A(f"v_and_b32 v{vIC+1}, 15, v1")
        A(f"v_lshl_add_u32 v{vIC}, v{vIC+1}, 3, v{vIC}")
        A("s_mov_b32 s72, 0")
        A(f"v_mov_b32 v{self.QS+4}, 0")
        A(f"v_mov_b32 v{self.QS+5}, 0")
        A("s_mov_b32 s73, 0")
        A("s_waitcnt lgkmcnt(0)")
        A("s_load_dword s29, s[26:27], 0")
        self.srd(44, 26, None, WS_SIZE)
        self.stamp(0)
        if not self.noq:
            self.qphase_issue()
        if self.amode in (4, 5):
            G = self.arot % 100
            lg = G.bit_length() - 1
            A("s_lshr_b32 s33, s2, 3")
            A(f"s_lshr_b32 s34, s33, {lg}")
            A("s_and_b32 s35, s2, 7")
            A(f"s_lshl_b32 s35, s35, {5 - lg}")
            A("s_add_u32 s34, s34, s35")
            A("s_and_b32 s31, s34, 7")
            A("s_lshr_b32 s34, s34, 3")
            A(f"s_lshl_b32 s93, s34, {19 + lg}")
            A(f"s_and_b32 s33, s33, {G-1}")
            A(f"s_lshl_b32 s33, s33, {12 if self.arot >= 100 else 14}")
            A("s_add_u32 s93, s93, s33")
            A("s_lshl_b32 s95, s31, 4")
        C("K/V SRDs: base + ga*16MiB")
        A("s_lshl_b32 s33, s31, 24")
        self.srd(36, 6, 33, 1 << 24)
        self.srd(40, 8, 33, 1 << 24)
        if self.bal:
            A(f"s_mul_i32 s81, s32, {self.n0 * 4096}")
            A("s_mov_b32 s89, s96")
            A("s_mov_b32 s87, 0")
            A("s_mov_b32 s50, 0")
            A("s_mov_b32 s88, 0")
            A(f"v_mov_b32 v{vT1}, -1")
            A(f"ds_write_b32 v{vZ}, v{vT1} offset:{L_EXT+4}")
        else:
            C("WG tile range: start = xcd*512 + prefix[sub], n = sizes[sub]")
            sz = self.sizes
            A("s_and_b32 s33, s32, 3")
            A(f"s_mov_b32 s65, {sz[0]}")
            A("s_mov_b32 s81, 0")
            pre = 0
            for k in range(1, 4):
                pre += sz[k - 1]
                A(f"s_cmp_eq_u32 s33, {k}")
                A(f"s_cselect_b32 s65, {sz[k]}, s65")
                A(f"s_cselect_b32 s81, {pre}, s81")
            A("s_lshr_b32 s33, s32, 2")
            A("s_lshl_b32 s33, s33, 9")
            A("s_add_u32 s81, s81, s33")
            A("s_lshl_b32 s81, s81, 12")
        if self.amode == 1:
            A("s_lshr_b32 s81, s32, 2")
            A("s_lshl_b32 s81, s81, 21")
            A("s_and_b32 s34, s32, 3")
            A("s_lshl_b32 s34, s34, 14")
            A("s_add_u32 s81, s81, s34")
        if self.amode in (4, 5):
            A("s_mov_b32 s81, s93")
        if self.amode == 2:
            if self.arot >= 100:
                A(f"s_mul_i32 s95, s2, {self.arot - 100}")
                A("s_lshl_b32 s95, s95, 2")
            else:
                A(f"s_mul_i32 s95, s31, {self.arot}")
        if self.amode == 3:
            A(f"s_bfe_i32 s95, s{31 if self.arot else 32}, {0 | (1 << 16)}")
            A("s_and_b32 s95, s95, 124")
        A("s_mov_b32 s94, s28")
        A("s_mov_b32 s33, s94")
        self.tk2off()
        A("s_mov_b32 s64, s34")
        A(f"v_mov_b32 v{vTk+1}, 1")
        A(f"v_mov_b32 v{vT0}, {4*(NR+NS)}")
        A(f"ds_write_b32 v{vZ}, v{vT0} offset:{L_CTR}")
        A(f"ds_write_b32 v{vZ}, v{vZ} offset:{L_QF}")
        halves = []
        for s in range(NR):
            halves += [("K", "v", RB + 32 * s), ("V", "v", RB + 32 * s + 16)]
        for s in range(NS):
            halves += [("K", "a", 32 * s), ("V", "a", 32 * s + 16)]
        def issue_half(hv):
            if hv[0] == "K":
                self.loadK(hv[1], hv[2], 64)
            else:
                self.loadV(hv[1], hv[2], 64)
                A("s_add_u32 s94, s94, 4")
                A("s_mov_b32 s33, s94")
                self.tk2off()
                A("s_mov_b32 s64, s34")
        A("s_waitcnt lgkmcnt(0)")
        A("s_barrier")
        TH0 = self.th0
        for hv in halves[:TH0]:
            issue_half(hv)
        QC = max(self.qc, TH0)
        def qwork(younger):
            self.qphase_compute(younger, younger)
            self.q_publish()
        A("s_mov_b32 s82, 0")
        if not self.noq and QC == TH0:
            qwork(4 * TH0)
        PST = self.pstep if self.pstep else TH
        for k, hv in enumerate(halves):
            if k < TH0:
                continue
            A(f"s_waitcnt vmcnt({4*(TH-1)})")
            issue_half(hv)
            if not self.noq and k + 1 == QC and QC > TH0:
                qwork(4 * TH)
            if not self.noq and k >= self.ps and (k - self.ps) % PST == 0:
                if PST < TH and k != self.ps:
                    sk = self.newlabel("pw")
                    A("s_cmp_lg_u32 s28, 0")
                    A(f"s_cbranch_scc1 {sk}")
                    A(f"s_waitcnt vmcnt({4*PST})")
                    self.label(sk)
                self.q_poll_step(first=(k == self.ps))
        A(f"v_and_b32 v{vT0}, 3, v1")
        A(f"v_mov_b32 v{vMk0}, 0")
        A(f"v_mov_b32 v{vMk1}, 0")
        A(f"v_mov_b32 v{vT1}, 0xffff")
        A(f"v_mov_b32 v{vF}, s60")
        for e, (mk, val) in enumerate(((vMk0, vT1), (vMk0, vF), (vMk1, vT1), (vMk1, vF))):
            A(f"v_cmp_eq_u32 vcc, {e}, v{vT0}")
            A("s_nop 1")
            A(f"v_cndmask_b32 v{mk}, v{mk}, v{val}, vcc")
        for i in range(8):
            A(f"v_mov_b32 v{vO+i}, 0")
        if not self.noq:
            A(f"v_mov_b32 v{vTg}, s71")
        A(f"v_bfe_u32 v{vT0}, v1, 2, 2")
        A(f"v_lshlrev_b32 v{vT0}, 9, v{vT0}")
        A(f"v_lshrrev_b32 v{vT1}, 4, v1")
        A(f"v_lshl_add_u32 v{vT0}, v{vT1}, 6, v{vT0}")
        A(f"v_and_b32 v{vT1}, 3, v1")
        A(f"v_lshl_add_u32 v{vPA}, v{vT1}, 4, v{vT0}")
        A(f"v_mov_b32 v{vM}, 0xff800000")
        A(f"v_mov_b32 v{vL}, 0")
        for s in range(NR):
            A(f"s_mov_b32 s{77+s}, 1")
        A(f"s_mov_b32 s83, {len(self.chunks)}")
        self.stamp(13)
        if not self.noq:
            self.q_poll_final()
            lp = self.newlabel("qflag")
            ok = self.newlabel("qflag_ok")
            A(f"s_mov_b32 s68, {POLL_MAX * 16}")
            self.label(lp)
            A(f"ds_read_b32 v{vT0}, v{vZ} offset:{L_QF}")
            A("s_waitcnt lgkmcnt(0)")
            A(f"v_readfirstlane_b32 s33, v{vT0}")
            A("s_cmp_lg_u32 s33, 0")
            A(f"s_cbranch_scc1 {ok}")
            A("s_sleep 1")
            A("s_sub_u32 s68, s68, 1")
            A("s_cmp_lg_u32 s68, 0")
            A(f"s_cbranch_scc1 {lp}")
            self.label(ok)
        A(f"v_bfe_u32 v{vT0}, v1, 2, 2")
        A(f"v_lshlrev_b32 v{vT0}, 8, v{vT0}")
        A(f"v_lshrrev_b32 v{vT1}, 4, v1")
        A(f"v_lshl_add_u32 v{vT0}, v{vT1}, 4, v{vT0}")
        for m in range(4):
            A(f"ds_read_b128 v[{vQ+4*m}:{vQ+4*m+3}], v{vT0} offset:{L_Q + m*64}")
        self.stamp(1)
        A("s_waitcnt lgkmcnt(0)")
        W = 8 * NR - 4
        self.label("L_loop")
        for s in range(NR):
            C(f"---- ring slot {s}")
            kb, vb = RB + 32 * s, RB + 32 * s + 16
            so, sv = 74 + s, 77 + s
            A(f"s_cmp_eq_u32 s{sv}, 0")
            A("s_cbranch_scc1 L_loop_done")
            A("s_mov_b64 exec, 1")
            A(f"ds_add_rtn_u32 v{vTk}, v{vZ}, v{vTk+1} offset:{L_CTR}")
            A("s_mov_b64 exec, -1")
            def after_qk(s=s, kb=kb, so=so, sv=sv):
                A("s_waitcnt lgkmcnt(0)")
                A(f"v_readfirstlane_b32 s33, v{vTk}")
                if self.bal:
                    A(f"s_cmp_lt_u32 s33, {self.p1}")
                    A(f"s_cbranch_scc1 L_fast{s}")
                    A(f"s_mov_b32 s92, {s}")
                    A("s_branch L_slow")
                    self.label(f"L_ret{s}")
                    A(f"s_mov_b32 s{so}, s34")
                    A(f"s_mov_b32 s{sv}, s35")
                    A(f"s_branch L_ld{s}")
                    self.label(f"L_fast{s}")
                    A("s_lshl_b32 s34, s33, 12")
                    A(f"s_add_u32 s{so}, s34, s81")
                    self.label(f"L_ld{s}")
                else:
                    self.tk2off()
                    A("s_cmp_lt_u32 s33, s65")
                    A(f"s_cselect_b32 s{so}, s34, {hex(INV)}")
                    A(f"s_cselect_b32 s{sv}, 1, 0")
                self.loadK("v", kb, so)
                return 8
            def after_pv(vb=vb, so=so):
                self.loadV("v", vb, so)
            self.tile_body("v", kb, vb, W, W, after_qk, after_pv)
        A("s_cmp_eq_u32 s83, 0")
        A("s_cbranch_scc1 L_loop")
        C("---- backlog: startup tiles held in AGPRs")
        nch = len(self.chunks)
        labs = [self.newlabel("bk") for _ in range(nch)]
        for c in range(1, nch):
            A(f"s_cmp_eq_u32 s83, {nch - c}")
            A(f"s_cbranch_scc1 {labs[c]}")
        t = 0
        for c in range(nch):
            self.label(labs[c])
            A("s_sub_u32 s83, s83, 1")
            if c == 0:
                A(f"s_waitcnt vmcnt({8*NR})")
            for _ in range(self.chunks[c]):
                self.tile_body("a", 32 * t, 32 * t + 16, None, None, lambda: 0, lambda: None)
                t += 1
            if c == nch - 1:
                self.stamp(6)
                if not self.notail:
                    self.role_prefetch(True)
            A("s_branch L_loop")
        if self.bal:
            self.slow_path()
        self.label("L_loop_done")
        self.stamp(2)
        if self.notail:
            A("s_branch L_end")
        C("---- WG combine")
        A("s_nop 3")
        A("s_lshl_b32 s33, s28, 11")
        A(f"v_lshl_add_u32 v{vT0}, v1, 4, s33")
        A(f"ds_write_b128 v{vT0}, v[{vO}:{vO+3}] offset:{L_O}")
        A(f"ds_write_b128 v{vT0}, v[{vO+4}:{vO+7}] offset:{L_O+1024}")
        A("s_lshl_b32 s33, s28, 8")
        A(f"v_lshl_add_u32 v{vT0}, v1, 2, s33")
        A(f"ds_write_b32 v{vT0}, v{vM} offset:{L_M}")
        A(f"ds_write_b32 v{vT0}, v{vL} offset:{L_L}")
        A("s_waitcnt lgkmcnt(0)")
        A("s_barrier")
        self.stamp(11)
        A("s_cmp_ge_u32 s28, 2")
        A("s_cbranch_scc1 L_after_publish")
        m_, l_ = vQ, vQ + 4
        Ob = [vQ + 8, vQ + 12, vS, vO]
        A(f"v_lshlrev_b32 v{vT0}, 2, v1")
        for w in range(4):
            A(f"ds_read_b32 v{m_+w}, v{vT0} offset:{L_M + w*256}")
            A(f"ds_read_b32 v{l_+w}, v{vT0} offset:{L_L + w*256}")
        A("s_lshl_b32 s33, s28, 10")
        A(f"v_lshl_add_u32 v{vT0}, v1, 4, s33")
        for w in range(4):
            A(f"ds_read_b128 v[{Ob[w]}:{Ob[w]+3}], v{vT0} offset:{L_O + w*2048}")
        A("s_lshl_b32 s33, s31, 5")
        A("s_add_u32 s33, s33, s32")
        A("s_lshl_b32 s34, s33, 11")
        A("s_lshl_b32 s35, s28, 8")
        A("s_add_u32 s34, s34, s35")
        A(f"s_add_u32 s34, s34, {WS_PO}")
        A("s_waitcnt lgkmcnt(4)")
        A(f"v_max3_f32 v{vM}, v{m_}, v{m_+1}, v{m_+2}")
        A(f"v_max_f32 v{vM}, v{vM}, v{m_+3}")
        for w in range(4):
            A(f"v_sub_f32 v{m_+w}, v{m_+w}, v{vM}")
        for w in range(4):
            A(f"v_mul_f32 v{m_+w}, s62, v{m_+w}")
        for w in range(4):
            A(f"v_exp_f32 v{m_+w}, v{m_+w}")
        A("s_waitcnt lgkmcnt(0)")
        acc = vO + 4
        for r in range(4):
            A(f"v_mul_f32 v{acc+r}, v{m_}, v{Ob[0]+r}")
        for w in range(1, 4):
            for r in range(4):
                A(f"v_fmac_f32 v{acc+r}, v{m_+w}, v{Ob[w]+r}")
        for r in range(4):
            A(f"v_bfi_b32 v{acc+r}, s49, v{vTg}, v{acc+r}")
        A(f"buffer_store_dwordx4 v[{acc}:{acc+3}], v{vPA}, s[44:47], s34 offen sc1")
        A("s_cmp_lg_u32 s28, 0")
        A("s_cbranch_scc1 L_after_publish")
        A(f"v_mul_f32 v{vL}, v{m_}, v{l_}")
        for w in range(1, 4):
            A(f"v_fmac_f32 v{vL}, v{m_+w}, v{l_+w}")
        self.cross_rows_allreduce("v_add_f32", vL, vT1)
        A("s_lshl_b32 s34, s33, 6")
        A(f"s_add_u32 s34, s34, {WS_PML}")
        A(f"v_lshlrev_b32 v{vT0}, 2, v1")
        A(f"v_mov_b32 v{vM+2}, s30")
        A(f"v_mov_b32 v{vM+3}, s30")
        A("s_mov_b64 exec, 0x1111")
        A(f"buffer_store_dwordx4 v[{vM}:{vM+3}], v{vT0}, s[44:47], s34 offen sc1")
        self.exec_all()
        self.label("L_after_publish")
        self.stamp(3)
        A("s_cmp_eq_u32 s70, 0")
        A("s_cbranch_scc1 L_end")
        A("s_cmp_eq_u32 s70, 1")
        A("s_cbranch_scc1 L_roleB")
        self.role_prefetch(False)
        A("s_cmp_eq_u32 s70, 2")
        A("s_cbranch_scc1 L_roleC")
        A("s_branch L_roleE")
        self.roleB()
        self.roleC()
        self.roleE()
        self.label("L_end")
        A("s_endpgm")
        acc_off = (self.NV + 3) // 4 * 4
        na = max(32 * NS, 96)
        self.L.append('.section .rodata,"a"')
        self.L.append(".p2align 6")
        self.L.append(f".amdhsa_kernel {KN}_kernel")
        self.L.append(f"  .amdhsa_next_free_vgpr {acc_off + na}")
        self.L.append("  .amdhsa_next_free_sgpr 102")
        self.L.append(f"  .amdhsa_accum_offset {acc_off}")
        self.L.append("  .amdhsa_group_segment_fixed_size 0")
        self.L.append("  .amdhsa_kernarg_size 96")
        self.L.append("  .amdhsa_user_sgpr_count 2")
        self.L.append("  .amdhsa_user_sgpr_kernarg_segment_ptr 1")
        self.L.append("  .amdhsa_system_sgpr_workgroup_id_x 1")
        self.L.append("  .amdhsa_float_denorm_mode_32 3")
        self.L.append(".end_amdhsa_kernel")
        return "\n".join(self.L) + "\n"

    def slow_path(self):
        A, C = self.A, self.C
        NR, n0, P1, P2 = self.nr, self.n0, self.p1, self.p2
        POOL = 4096 - 32 * n0
        E = POOL / 32.0
        vG = vTk + 2
        t0, t1, t2, t3, t4, t5 = vT0, vT1, vX, vX + 1, vX + 2, vX + 3
        def gather_issue():
            A(f"v_and_b32 v{t0}, 31, v1")
            A(f"v_lshlrev_b32 v{t0}, 3, v{t0}")
            A("s_lshl_b32 s35, s31, 8")
            A(f"s_add_u32 s35, s35, {WS_T}")
            A(f"buffer_load_dwordx2 v[{vG}:{vG+1}], v{t0}, s[44:47], s35 offen sc1")
        self.label("L_slow")
        A(f"s_cmp_lg_u32 s33, {P1}")
        A("s_cbranch_scc1 L_sl1")
        C("publish progress time")
        A("s_memrealtime s[90:91]")
        A("s_lshl_b32 s35, s31, 8")
        A("s_lshl_b32 s93, s32, 3")
        A("s_add_u32 s35, s35, s93")
        A(f"s_add_u32 s35, s35, {WS_T}")
        A("s_waitcnt lgkmcnt(0)")
        A("s_sub_u32 s34, s90, s89")
        A("s_min_u32 s34, s34, 4095")
        A("s_lshl_b32 s34, s34, 20")
        A("s_and_b32 s90, s90, 0xfffff")
        A("s_or_b32 s34, s34, s90")
        A(f"v_mov_b32 v{t2}, s34")
        A(f"v_mov_b32 v{t3}, s30")
        A("s_mov_b64 exec, 1")
        A(f"buffer_store_dwordx2 v[{t2}:{t3}], v{vZ}, s[44:47], s35 offen sc1")
        A("s_mov_b64 exec, -1")
        self.label("L_sl1")
        A(f"s_cmp_lg_u32 s33, {P2}")
        A("s_cbranch_scc1 L_sl2")
        gather_issue()
        A(f"s_mov_b32 s88, {NR}")
        A("s_branch L_sl3")
        self.label("L_sl2")
        A("s_cmp_eq_u32 s88, 0")
        A("s_cbranch_scc1 L_sl3")
        A("s_sub_u32 s88, s88, 1")
        A("s_cmp_lg_u32 s88, 0")
        A("s_cbranch_scc1 L_sl3")
        A("s_mov_b32 s93, 0")
        self.label("L_alloc")
        A(f"v_cmp_ne_u32 vcc, s30, v{vG+1}")
        A("s_nop 0")
        A("s_cbranch_vccz L_alloc_ok")
        gather_issue()
        A(f"s_mov_b32 s88, {NR}")
        A("s_cmp_eq_u32 s93, 0")
        A("s_cbranch_scc1 L_sl3")
        A("s_mov_b32 s88, 0")
        A("s_waitcnt vmcnt(0)")
        A("s_add_u32 s93, s93, 1")
        A(f"s_cmp_lt_u32 s93, {POLL_MAX}")
        A("s_cbranch_scc1 L_alloc")
        self.label("L_alloc_ok")
        A(f"v_readfirstlane_b32 s34, v{vG}")
        A(f"v_lshrrev_b32 v{t1}, 20, v{vG}")
        A(f"v_cvt_f32_u32 v{t1}, v{t1}")
        A("s_nop 0")
        A(f"v_subrev_u32 v{t0}, s34, v{vG}")
        A(f"v_bfe_i32 v{t0}, v{t0}, 0, 20")
        A(f"v_cvt_f32_i32 v{t0}, v{t0}")
        A(f"v_mov_b32 v{t2}, v{t0}")
        self.row_allreduce("v_add_f32", [t1, t2])
        self.cross_rows_allreduce("v_add_f32", t1, t3, do32=False)
        self.cross_rows_allreduce("v_add_f32", t2, t3, do32=False)
        A(f"v_rcp_f32 v{t1}, v{t1}")
        A(f"v_mul_f32 v{t2}, {hex(f32bits(1.0/32))}, v{t2}")
        A(f"v_sub_f32 v{t0}, v{t0}, v{t2}")
        A(f"v_mul_f32 v{t1}, {hex(f32bits(-32.0 * P1 * self.gain))}, v{t1}")
        A(f"v_mov_b32 v{t2}, {hex(f32bits(E))}")
        A(f"v_fmac_f32 v{t2}, v{t0}, v{t1}")
        A(f"v_and_b32 v{t3}, 3, v1")
        A(f"v_and_b32 v{t4}, 31, v1")
        A(f"v_cmp_eq_u32 vcc, 1, v{t3}")
        A(f"v_cmp_gt_u32 s[90:91], 28, v{t4}")
        A(f"v_mov_b32 v{t3}, {hex(f32bits(self.biasc))}")
        A("s_and_b64 vcc, vcc, s[90:91]")
        A("s_nop 0")
        A(f"v_cndmask_b32 v{t3}, 0, v{t3}, vcc")
        A(f"v_sub_f32 v{t2}, v{t2}, v{t3}")
        A(f"v_max_f32 v{t2}, 0, v{t2}")
        for sh in (1, 2, 4, 8):
            A("s_nop 1")
            A(f"v_add_f32_dpp v{t2}, v{t2}, v{t2} row_shr:{sh} row_mask:0xf bank_mask:0xf bound_ctrl:0")
        A("s_nop 1")
        A(f"v_add_f32_dpp v{t2}, v{t2}, v{t2} row_bcast:15 row_mask:0xa bank_mask:0xf")
        A("s_nop 0")
        A(f"v_readlane_b32 s34, v{t2}, 31")
        A("s_nop 1")
        A(f"v_rcp_f32 v{t3}, s34")
        A("s_max_u32 s35, s32, 1")
        A("s_sub_u32 s35, s35, 1")
        A(f"v_mul_f32 v{t3}, {hex(f32bits(float(POOL)))}, v{t3}")
        A(f"v_mul_f32 v{t2}, v{t2}, v{t3}")
        A(f"v_rndne_f32 v{t2}, v{t2}")
        A(f"v_cvt_u32_f32 v{t2}, v{t2}")
        A(f"v_min_u32 v{t2}, {POOL}, v{t2}")
        A("s_nop 0")
        A(f"v_readlane_b32 s86, v{t2}, s32")
        A(f"v_readlane_b32 s85, v{t2}, s35")
        A("s_cmp_eq_u32 s32, 31")
        A(f"s_cselect_b32 s86, {POOL}, s86")
        A("s_cmp_eq_u32 s32, 0")
        A("s_cselect_b32 s85, 0, s85")
        A("s_sub_u32 s86, s86, s85")
        A("s_lshl_b32 s85, s85, 12")
        A(f"s_add_u32 s85, s85, {32 * n0 * 4096}")
        A(f"v_mov_b32 v{t2}, s85")
        A(f"v_mov_b32 v{t3}, s86")
        A(f"ds_write_b64 v{vZ}, v[{t2}:{t3}] offset:{L_EXT}")
        A("s_mov_b32 s87, 1")
        if self.stamps:
            A(f"v_mov_b32 v{vSt}, s86")
            A(f"s_mul_i32 s100, s2, {5*64}")
            A(f"s_add_u32 s100, s100, {WS_STAMP + 4*64}")
            A(f"v_mov_b32 v{vSt+1}, s100")
            A("s_mov_b64 exec, 1")
            A(f"buffer_store_dword v{vSt}, v{vSt+1}, s[44:47], 0 offen")
            A("s_mov_b64 exec, -1")
        self.label("L_sl3")
        A(f"s_cmp_ge_u32 s33, {n0}")
        A("s_cbranch_scc1 L_ext")
        A("s_lshl_b32 s34, s33, 12")
        A("s_add_u32 s34, s34, s81")
        A("s_mov_b32 s35, 1")
        A("s_branch L_slret")
        self.label("L_ext")
        A("s_cmp_lg_u32 s87, 0")
        A("s_cbranch_scc1 L_ext_ok")
        A("s_cmp_eq_u32 s88, 0")
        A("s_cbranch_scc1 L_ext_wait")
        A("s_mov_b32 s88, 0")
        A("s_mov_b32 s93, 1")
        A("s_waitcnt vmcnt(0)")
        A("s_branch L_alloc")
        self.label("L_ext_wait")
        A(f"s_mov_b32 s93, {POLL_MAX * 8}")
        self.label("L_ext_spin")
        A(f"ds_read_b64 v[{t2}:{t3}], v{vZ} offset:{L_EXT}")
        A("s_waitcnt lgkmcnt(0)")
        A(f"v_readfirstlane_b32 s85, v{t2}")
        A(f"v_readfirstlane_b32 s86, v{t3}")
        A("s_cmp_lg_u32 s86, -1")
        A("s_cbranch_scc1 L_ext_got")
        A("s_sleep 1")
        A("s_sub_u32 s93, s93, 1")
        A("s_cmp_lg_u32 s93, 0")
        A("s_cbranch_scc1 L_ext_spin")
        A("s_mov_b32 s86, 0")
        self.label("L_ext_got")
        A("s_mov_b32 s87, 1")
        self.label("L_ext_ok")
        A(f"s_sub_u32 s35, s33, {n0}")
        A("s_lshl_b32 s34, s35, 12")
        A("s_add_u32 s34, s34, s85")
        A("s_cmp_lt_u32 s35, s86")
        A(f"s_cselect_b32 s34, s34, {hex(INV)}")
        A("s_cselect_b32 s35, 1, 0")
        if self.mid and not self.notail:
            A("s_cbranch_scc1 L_slret")
            A("s_cmp_lg_u32 s50, 0")
            A("s_cbranch_scc1 L_slret")
            A("s_mov_b32 s50, 1")
            self.role_prefetch("mid")
            A(f"s_mov_b32 s34, {hex(INV)}")
            A("s_mov_b32 s35, 0")
        self.label("L_slret")
        for k in range(NR - 1):
            A(f"s_cmp_eq_u32 s92, {k}")
            A(f"s_cbranch_scc1 L_ret{k}")
        A(f"s_branch L_ret{NR-1}")

    def qphase_issue(self):
        A = self.A
        t0, t1 = vT0, vT1
        R = self.QS
        W, XS, XO = R, R + 16, R + 20
        self.srd(56, 4, None, 1024)
        A(f"buffer_load_dwordx4 v[{XS}:{XS+3}], v{vVo}, s[56:59], 0 offen")
        A("s_and_b32 s33, s2, 7")
        A("s_lshl_b32 s33, s33, 5")
        A("s_lshr_b32 s34, s2, 3")
        A("s_add_u32 s84, s33, s34")
        A("s_and_b32 s33, s34, 3")
        A("s_lshl_b32 s33, s33, 2")
        A("s_add_u32 s33, s33, s28")
        A("s_lshl_b32 s35, s33, 6")
        A(f"v_lshrrev_b32 v{t0}, 3, v1")
        A(f"v_lshl_add_u32 v{t1}, v{t0}, 3, s35")
        A(f"buffer_load_dwordx2 v[{XO}:{XO+1}], v{t1}, s[56:59], 0 offen")
        A("s_lshl_b32 s33, s33, 18")
        A("s_lshr_b32 s34, s84, 2")
        A("s_lshl_b32 s34, s34, 7")
        A("s_add_u32 s34, s34, s33")
        self.srd(52, 10, 34, 31 * 8192 + 128)
        A(f"v_lshlrev_b32 v{t0}, 15, v{t0}")
        A(f"v_and_b32 v{t1}, 7, v1")
        A(f"v_lshl_add_u32 v{t0}, v{t1}, 4, v{t0}")
        for j in range(4):
            A(f"s_mov_b32 s35, {j*8192}")
            A(f"buffer_load_dwordx4 v[{W+4*j}:{W+4*j+3}], v{t0}, s[52:55], s35 offen{self.qpol}")

    def qphase_compute(self, younger, after_stores):
        A = self.A
        R = self.QS
        W, XS, XO = R, R + 16, R + 20
        XF, XN, acc = 4, 12, 16
        t0, t1 = 32, 33
        u0, u1 = 38, 39
        A(f"s_waitcnt vmcnt({younger + 4})")
        self.stamp(7)
        self.stamp(14)
        for i in range(4):
            self.unpack(XF + 2 * i, XF + 2 * i + 1, XS + i)
        for i in range(2):
            self.unpack(XN + 2 * i, XN + 2 * i + 1, XO + i)
        self.layernorm(XF, 8, t0, hex(f32bits(1.0 / 512)), Y=XN, ny=4)
        self.stamp(8)
        for j in range(4):
            A(f"s_waitcnt vmcnt({younger + 3 - j})")
            for i in range(4):
                self.unpack(u0, u1, W + 4 * j + i)
                if j == 0:
                    A(f"v_mul_f32 v{acc+2*i}, v{XN+j}, v{u0}")
                    A(f"v_mul_f32 v{acc+2*i+1}, v{XN+j}, v{u1}")
                else:
                    A(f"v_fmac_f32 v{acc+2*i}, v{XN+j}, v{u0}")
                    A(f"v_fmac_f32 v{acc+2*i+1}, v{XN+j}, v{u1}")
        self.stamp(15)
        A("s_nop 1")
        for i in range(4):
            A(f"v_permlane32_swap_b32 v{acc+i}, v{acc+i+4}")
        A("s_nop 0")
        for i in range(4):
            A(f"v_add_f32 v{acc+i}, v{acc+i}, v{acc+i+4}")
        A("s_nop 1")
        for i in range(2):
            A(f"v_permlane16_swap_b32 v{acc+i}, v{acc+i+2}")
        A("s_nop 0")
        for i in range(2):
            A(f"v_add_f32 v{acc+i}, v{acc+i}, v{acc+i+2}")
        A("s_lshl_b32 s35, s28, 8")
        A(f"v_and_b32 v{t0}, 7, v1")
        self.dpp("v_add_f32", acc, acc, acc, "row_ror:8")
        self.dpp("v_add_f32", acc + 1, acc + 1, acc + 1, "row_ror:8")
        A(f"v_lshlrev_b32 v{t0}, 5, v{t0}")
        A(f"v_lshrrev_b32 v{t1}, 4, v1")
        A(f"v_lshl_add_u32 v{t0}, v{t1}, 3, v{t0}")
        A(f"v_add_u32 v{t0}, s35, v{t0}")
        self.exec_mask(0x00ff00ff00ff00ff)
        A(f"ds_write_b64 v{t0}, v[{acc}:{acc+1}] offset:{L_QP}")
        self.exec_all()
        A("s_waitcnt lgkmcnt(0)")
        A("s_mul_i32 s30, s29, 0x9e3779b1")
        A("s_add_u32 s30, s30, 0x7f4a7c15")
        A("s_add_u32 s71, s29, 1")
        A("s_and_b32 s71, s71, s49")
        A("s_barrier")
        self.stamp(9)

    def q_publish(self):
        A = self.A
        sk = self.newlabel("nopub")
        P = 4
        A("s_cmp_lg_u32 s28, 0")
        A(f"s_cbranch_scc1 {sk}")
        A(f"v_lshlrev_b32 v{vT0}, 2, v1")
        for w in range(4):
            A(f"ds_read_b32 v{P+2*w}, v{vT0} offset:{L_QP + 256*w}")
        A(f"v_lshlrev_b32 v{vT0}, 3, v1")
        A("s_lshl_b32 s33, s84, 9")
        A(f"s_add_u32 s33, s33, {WS_Q1}")
        A(f"v_mov_b32 v{P+1}, s30")
        A("s_waitcnt lgkmcnt(0)")
        A(f"v_add_f32 v{P}, v{P}, v{P+2}")
        A(f"v_add_f32 v{P+4}, v{P+4}, v{P+6}")
        A(f"v_add_f32 v{P}, v{P}, v{P+4}")
        A(f"buffer_store_dwordx2 v[{P}:{P+1}], v{vT0}, s[44:47], s33 offen sc1")
        A(f"s_and_b32 s73, s32, {QR-1}")
        A("s_lshl_b32 s73, s73, 14")
        A("s_lshl_b32 s33, s31, 11")
        A("s_add_u32 s73, s73, s33")
        A(f"s_add_u32 s73, s73, {WS_Q}")
        A("s_and_b32 s72, s84, -4")
        A("s_lshl_b32 s72, s72, 9")
        A("s_and_b32 s33, s84, 3")
        A("s_lshl_b32 s33, s33, 7")
        A("s_add_u32 s72, s72, s33")
        A(f"s_add_u32 s72, s72, {WS_Q1}")
        self.label(sk)

    def s2_issue(self):
        self.A(f"buffer_load_dwordx2 v[8:9], v{vIC}, s[44:47], s72 offen sc1")

    def s2_check(self, fail):
        A = self.A
        A(f"v_cmp_ne_u32 vcc, s30, v9")
        A("s_nop 0")
        A(f"s_cbranch_vccnz {fail}")
        self.cross_rows_allreduce("v_add_f32", 8, vT1)
        A(f"v_and_b32 v{vT0}, 15, v1")
        A(f"v_lshlrev_b32 v{vT0}, 2, v{vT0}")
        A(f"v_mov_b32_dpp v{vT1}, v8 quad_perm:[1,0,3,2] row_mask:0xf bank_mask:0xf")
        A(f"v_lshrrev_b32 v10, 4, v1")
        A(f"v_lshl_add_u32 v{vT0}, v10, 14, v{vT0}")
        A(f"v_cvt_pk_bf16_f32 v8, v8, v{vT1}")
        A("s_lshl_b32 s33, s84, 6")
        A(f"s_add_u32 s33, s33, {WS_Q}")
        self.exec_mask(0x5555555555555555)
        A(f"buffer_store_dwordx2 v[8:9], v{vT0}, s[44:47], s33 offen sc1")
        self.exec_all()
        A("s_mov_b32 s82, 1")
        self.stamp(10)

    def q_poll_issue(self):
        g = 12
        self.A(f"buffer_load_dwordx4 v[{g}:{g+3}], v{vNM}, s[44:47], s73 offen sc1")
        self.A(f"buffer_load_dwordx4 v[{g+4}:{g+7}], v{vNM}, s[44:47], s73 offen offset:16 sc1")

    def q_check(self, fail):
        A = self.A
        g = 12
        A(f"v_xor_b32 v{vT0}, s30, v{g+1}")
        A(f"v_xor_b32 v{vT1}, s30, v{g+3}")
        A(f"v_or_b32 v{vT0}, v{vT0}, v{vT1}")
        A(f"v_xor_b32 v{vT1}, s30, v{g+5}")
        A(f"v_or_b32 v{vT0}, v{vT0}, v{vT1}")
        A(f"v_xor_b32 v{vT1}, s30, v{g+7}")
        A(f"v_or_b32 v{vT0}, v{vT0}, v{vT1}")
        A(f"v_cmp_ne_u32 vcc, 0, v{vT0}")
        A("s_nop 0")
        A(f"s_cbranch_vccnz {fail}")
        A(f"v_mov_b32 v{g+1}, v{g+2}")
        A(f"v_mov_b32 v{g+2}, v{g+4}")
        A(f"v_mov_b32 v{g+3}, v{g+6}")
        A(f"ds_write_b128 v{vVo}, v[{g}:{g+3}] offset:{L_Q}")
        A(f"ds_write_b32 v{vZ}, v{vTk+1} offset:{L_QF}")
        A("s_mov_b32 s82, 2")
        self.stamp(12)

    def q_poll_step(self, first):
        A = self.A
        sk = self.newlabel("qp_skip")
        st1 = self.newlabel("qp_st1")
        a0 = self.newlabel("qp_a0")
        a1 = self.newlabel("qp_a1")
        A("s_cmp_lg_u32 s28, 0")
        A(f"s_cbranch_scc1 {sk}")
        if first:
            self.s2_issue()
        else:
            A("s_cmp_eq_u32 s82, 2")
            A(f"s_cbranch_scc1 {sk}")
            A("s_cmp_eq_u32 s82, 1")
            A(f"s_cbranch_scc1 {st1}")
            self.s2_check(a0)
            A(f"s_branch {a1}")
            self.label(a0)
            self.s2_issue()
            A(f"s_branch {sk}")
            self.label(st1)
            self.q_check(a1)
            A(f"s_branch {sk}")
            self.label(a1)
            self.q_poll_issue()
        self.label(sk)

    def q_poll_final(self):
        A = self.A
        sk = self.newlabel("qf_skip")
        lp = self.newlabel("qf_loop")
        st1 = self.newlabel("qf_st1")
        a0 = self.newlabel("qf_a0")
        a1 = self.newlabel("qf_a1")
        nx = self.newlabel("qf_nx")
        A("s_cmp_lg_u32 s28, 0")
        A(f"s_cbranch_scc1 {sk}")
        A(f"s_mov_b32 s68, {POLL_MAX}")
        self.label(lp)
        A("s_cmp_eq_u32 s82, 2")
        A(f"s_cbranch_scc1 {sk}")
        A("s_waitcnt vmcnt(0)")
        A("s_cmp_eq_u32 s82, 1")
        A(f"s_cbranch_scc1 {st1}")
        self.s2_check(a0)
        A(f"s_branch {a1}")
        self.label(a0)
        self.s2_issue()
        A(f"s_branch {nx}")
        self.label(st1)
        self.q_check(a1)
        A(f"s_branch {sk}")
        self.label(a1)
        self.q_poll_issue()
        self.label(nx)
        A("s_sub_u32 s68, s68, 1")
        A("s_cmp_lg_u32 s68, 0")
        A(f"s_cbranch_scc1 {lp}")
        self.label(sk)
        A("s_waitcnt lgkmcnt(0)")

    def mismatch(self, vt, regs):
        A = self.A
        A(f"v_xor_b32 v{vt}, s71, v{regs[0]}")
        for r in regs[1:]:
            A(f"v_bitop3_b32 v{vt}, v{vt}, v{r}, s71 bitop3:0xf6")
        A(f"v_and_b32 v{vt}, s49, v{vt}")

    def role_prefetch(self, early):
        A, C = self.A, self.C
        t0, t1 = vT0, vT1
        def when(chs):
            if any(c in self.early for c in chs): return True
            if any(c in self.mid for c in chs): return "mid"
            return False
        doB = when("B") == early
        doG = when("CG") == early
        doD = when("CD") == early
        if not (doB or doG or doD):
            return
        done = self.newlabel("pf_done")
        notB = self.newlabel("pf_notB")
        A("s_cmp_lg_u32 s70, 1")
        A(f"s_cbranch_scc1 {notB}")
        if doB:
            C("role B weights: head = ga*4 + (sub&2) + (w>>1), ph = w&1, cb = xcd")
            A("s_lshl_b32 s33, s31, 2")
            A("s_and_b32 s34, s32, 2")
            A("s_add_u32 s33, s33, s34")
            A("s_lshr_b32 s34, s28, 1")
            A("s_add_u32 s33, s33, s34")
            A("s_lshl_b32 s33, s33, 17")
            A("s_and_b32 s34, s28, 1")
            A("s_lshl_b32 s34, s34, 12")
            A("s_add_u32 s33, s33, s34")
            A("s_lshr_b32 s34, s32, 2")
            A("s_lshl_b32 s34, s34, 7")
            A("s_add_u32 s33, s33, s34")
            self.srd(52, 12, 33, 123 * 1024 + 128)
            A(f"v_lshrrev_b32 v{t0}, 4, v1")
            A(f"v_lshlrev_b32 v{t0}, 15, v{t0}")
            A(f"v_bfe_u32 v{t1}, v1, 3, 1")
            A(f"v_lshl_add_u32 v{t0}, v{t1}, 11, v{t0}")
            A(f"v_and_b32 v{t1}, 7, v1")
            A(f"v_lshl_add_u32 v{t0}, v{t1}, 4, v{t0}")
            for j in range(8):
                off = (8 * (j & 3) + (j >> 2)) * 1024
                so, io = off & ~4095, off & 4095
                A(f"s_mov_b32 s34, {so}")
                A(f"buffer_load_dwordx4 a[{4*j}:{4*j+3}], v{t0}, s[52:55], s34 offen offset:{io} nt")
        A(f"s_branch {done}")
        self.label(notB)
        A("s_cmp_lg_u32 s70, 2")
        A(f"s_cbranch_scc1 {done}")
        if doG:
            C("role C gate/up weights")
            A("s_lshl_b32 s34, s3, 6")
            A(f"s_mul_i32 s35, s28, {128*3584}")
            A("s_add_u32 s34, s34, s35")
            self.srd(52, 16, 34, 128 * 3584 - 3584 + 64)
            self.srd(56, 18, 34, 128 * 3584 - 3584 + 64)
            A(f"v_lshrrev_b32 v{t0}, 2, v1")
            A(f"v_mul_u32_u24 v{t0}, {8*3584}, v{t0}")
            A(f"v_and_b32 v{t1}, 3, v1")
            A(f"v_lshl_add_u32 v{t0}, v{t1}, 4, v{t0}")
            for j in range(8):
                A(f"s_mov_b32 s35, {j*3584}")
                A(f"buffer_load_dwordx4 a[{4*j}:{4*j+3}], v{t0}, s[52:55], s35 offen{self.gpol}")
                A(f"buffer_load_dwordx4 a[{32+4*j}:{32+4*j+3}], v{t0}, s[56:59], s35 offen{self.gpol}")
        if doD:
            C("role C down weights")
            A("s_lshl_b32 s34, s3, 15")
            A("s_lshl_b32 s35, s28, 8")
            A("s_add_u32 s34, s34, s35")
            self.srd(52, 20, 34, 32768 - 768)
            A(f"v_lshrrev_b32 v{t0}, 4, v1")
            A(f"v_lshlrev_b32 v{t0}, 13, v{t0}")
            A(f"v_and_b32 v{t1}, 15, v1")
            A(f"v_lshl_add_u32 v{t0}, v{t1}, 4, v{t0}")
            for j in range(8):
                off = j * 1024
                so, io = off & ~4095, off & 4095
                A(f"s_mov_b32 s35, {so}")
                A(f"buffer_load_dwordx4 a[{64+4*j}:{64+4*j+3}], v{t0}, s[52:55], s35 offen offset:{io} nt")
        self.label(done)

    def emasks(self, mk, t0, t1, t2):
        A = self.A
        A(f"v_and_b32 v{t0}, 1, v1")
        A(f"v_mov_b32 v{t1}, 0xffff")
        A(f"v_mov_b32 v{t2}, s60")
        A(f"v_cmp_eq_u32 vcc, 1, v{t0}")
        A("s_nop 1")
        A(f"v_cndmask_b32 v{t1}, v{t1}, v{t2}, vcc")
        A(f"v_bfe_u32 v{t0}, v1, 1, 2")
        for r in range(4):
            A(f"v_cmp_eq_u32 vcc, {r}, v{t0}")
            A("s_nop 1")
            A(f"v_cndmask_b32 v{mk+r}, 0, v{t1}, vcc")

    def red8_rows(self, op, regs, t):
        for ctrl in ("quad_perm:[1,0,3,2]", "quad_perm:[2,3,0,1]", "row_half_mirror"):
            self.A("s_nop 1")
            for r in regs:
                self.dpp(op, r, r, r, ctrl)
        for r in regs:
            self.cross_rows_allreduce(op, r, t)

    def roleB(self):
        A, C = self.A, self.C
        self.label("L_roleB")
        G = RB
        vML = 4
        vA0, vA1 = 2, 3
        t0, t1, t2, t3 = 8, 9, 10, 11
        mk, acc, X, D, wj = 12, 16, 20, 28, 32
        aW, aR, aD = 40, 41, 42
        PM = 76
        C("hl = (sub&2) + (w>>1) ; ph = w&1")
        A("s_and_b32 s33, s32, 2")
        A("s_lshr_b32 s34, s28, 1")
        A("s_add_u32 s33, s33, s34")
        A("s_lshl_b32 s34, s31, 16")
        A("s_lshl_b32 s35, s33, 9")
        A("s_add_u32 s34, s34, s35")
        A("s_and_b32 s35, s28, 1")
        A("s_lshl_b32 s35, s35, 8")
        A("s_add_u32 s34, s34, s35")
        A(f"s_add_u32 s34, s34, {WS_PO}")
        A(f"v_lshrrev_b32 v{t0}, 4, v1")
        A(f"v_lshlrev_b32 v{t2}, 11, v{t0}")
        A(f"v_and_b32 v{t1}, 15, v1")
        A(f"v_lshl_add_u32 v{vA0}, v{t1}, 4, v{t2}")
        A(f"v_add_u32 v{vA0}, s34, v{vA0}")
        A("s_lshl_b32 s34, s31, 11")
        A("s_lshl_b32 s35, s33, 4")
        A("s_add_u32 s34, s34, s35")
        A(f"s_add_u32 s34, s34, {WS_PML}")
        A(f"v_and_b32 v{t1}, 7, v1")
        A(f"v_lshlrev_b32 v{t1}, 8, v{t1}")
        A(f"v_lshl_add_u32 v{vA1}, v{t0}, 6, v{t1}")
        A(f"v_add_u32 v{vA1}, s34, v{vA1}")
        lp = self.newlabel("B_round")
        dn = self.newlabel("B_done")
        first = self.newlabel("B_first")
        for j in range(8):
            A(f"s_mov_b64 s[{PM+2*j}:{PM+2*j+1}], -1")
        A("s_mov_b64 s[66:67], -1")
        A(f"s_mov_b32 s68, {POLL_MAX}")
        A("s_mov_b32 s93, 1")
        self.label(lp)
        noml = self.newlabel("B_noml")
        A("s_mov_b64 exec, s[66:67]")
        A(f"s_cbranch_execz {noml}")
        A(f"buffer_load_dwordx4 v[{vML}:{vML+3}], v{vA1}, s[44:47], 0 offen sc1")
        self.label(noml)
        for j in range(8):
            sk = self.newlabel("B_sk")
            A(f"s_mov_b64 exec, s[{PM+2*j}:{PM+2*j+1}]")
            A(f"s_cbranch_execz {sk}")
            A(f"s_mov_b32 s35, {j*8192}")
            A(f"buffer_load_dwordx4 v[{G+4*j}:{G+4*j+3}], v{vA0}, s[44:47], s35 offen sc1")
            self.label(sk)
        self.exec_all()
        A("s_cmp_eq_u32 s93, 0")
        A(f"s_cbranch_scc1 {first}")
        A("s_mov_b32 s93, 0")
        lateB = "B" not in self.early and "B" not in self.mid
        if lateB:
            self.role_prefetch(False)
        self.emasks(mk, t0, t1, t2)
        A("s_lshl_b32 s34, s28, 8")
        A(f"v_and_b32 v{t0}, 15, v1")
        A(f"v_lshlrev_b32 v{t0}, 4, v{t0}")
        A(f"v_lshrrev_b32 v{t1}, 4, v1")
        A(f"v_lshl_add_u32 v{t0}, v{t1}, 2, v{t0}")
        A(f"v_add_u32 v{aW}, s34, v{t0}")
        A(f"v_lshrrev_b32 v{t0}, 3, v1")
        A(f"v_lshlrev_b32 v{t0}, 5, v{t0}")
        A(f"v_add_u32 v{aR}, s34, v{t0}")
        A("s_lshl_b32 s34, s28, 9")
        A(f"v_lshrrev_b32 v{t0}, 5, v1")
        A(f"v_lshlrev_b32 v{t0}, 8, v{t0}")
        A(f"v_bfe_u32 v{t1}, v1, 4, 1")
        A(f"v_lshl_add_u32 v{t0}, v{t1}, 7, v{t0}")
        A(f"v_and_b32 v{t1}, 7, v1")
        A(f"v_lshl_add_u32 v{t0}, v{t1}, 2, v{t0}")
        A(f"v_add_u32 v{aD}, s34, v{t0}")
        A("s_lshl_b32 s94, s31, 1")
        A("s_bfe_u32 s35, s32, 0x10001")
        A("s_add_u32 s94, s94, s35")
        A("s_lshl_b32 s94, s94, 11")
        A("s_lshr_b32 s35, s32, 2")
        A("s_lshl_b32 s35, s35, 8")
        A("s_add_u32 s94, s94, s35")
        A(f"s_add_u32 s94, s94, {WS_HP}")
        w1 = self.newlabel("B_w1")
        A(f"s_waitcnt vmcnt({8 if lateB else 0})")
        A(f"s_branch {w1}")
        self.label(first)
        A("s_waitcnt vmcnt(0)")
        self.label(w1)
        A(f"v_xor_b32 v{t0}, s30, v{vML+2}")
        A(f"v_bitop3_b32 v{t0}, v{t0}, v{vML+3}, s30 bitop3:0xf6")
        A(f"v_cmp_ne_u32 s[66:67], 0, v{t0}")
        A("s_mov_b64 s[96:97], 0")
        for j in range(8):
            sk = self.newlabel("B_ck")
            A(f"s_mov_b64 exec, s[{PM+2*j}:{PM+2*j+1}]")
            A(f"s_cbranch_execz {sk}")
            self.mismatch(t0, list(range(G + 4 * j, G + 4 * j + 4)))
            A(f"v_cmp_ne_u32 s[{PM+2*j}:{PM+2*j+1}], 0, v{t0}")
            A(f"s_or_b64 s[96:97], s[96:97], s[{PM+2*j}:{PM+2*j+1}]")
            self.label(sk)
        self.exec_all()
        A("s_or_b64 s[96:97], s[96:97], s[66:67]")
        A(f"s_cbranch_scc0 {dn}")
        A("s_sub_u32 s68, s68, 1")
        A("s_cmp_lg_u32 s68, 0")
        A(f"s_cbranch_scc1 {lp}")
        self.label(dn)
        self.stamp(4)
        A(f"v_mov_b32 v{t0}, v{vML}")
        self.red8_rows("v_max_f32", [t0], t1)
        A(f"v_sub_f32 v{t0}, v{vML}, v{t0}")
        A(f"v_mul_f32 v{t0}, s62, v{t0}")
        A(f"v_exp_f32 v{t0}, v{t0}")
        A("s_nop 0")
        A(f"v_mul_f32 v{t2}, v{t0}, v{vML+1}")
        steps = [("dpp", "quad_perm:[1,0,3,2]"), ("dpp", "quad_perm:[2,3,0,1]"), ("dpp", "row_half_mirror"),
                 ("mov", None), ("sw", "v_permlane32_swap_b32"), ("mov2", None), ("sw", "v_permlane16_swap_b32"), ("fin", None)]
        for j in range(8):
            for r in range(4):
                op = "v_mul_f32" if j == 0 else "v_fmac_f32"
                A(f"{op}_dpp v{acc+r}, v{t0}, v{G+4*j+r} row_newbcast:{j} row_mask:0xf bank_mask:0xf")
            k, c = steps[j]
            if k == "dpp":
                self.dpp("v_add_f32", t2, t2, t2, c)
            elif k == "mov":
                A(f"v_mov_b32 v{t3}, v{t2}")
            elif k == "sw":
                A(f"{c} v{t2}, v{t3}")
            elif k == "mov2":
                A(f"v_add_f32 v{t2}, v{t2}, v{t3}")
                A(f"v_mov_b32 v{t3}, v{t2}")
            else:
                A(f"v_add_f32 v{t2}, v{t2}, v{t3}")
        A(f"v_rcp_f32 v{t2}, v{t2}")
        A(f"v_permlane32_swap_b32 v{acc}, v{acc+2}")
        A(f"v_permlane32_swap_b32 v{acc+1}, v{acc+3}")
        A("s_nop 0")
        A(f"v_add_f32 v{acc}, v{acc}, v{acc+2}")
        A(f"v_add_f32 v{acc+1}, v{acc+1}, v{acc+3}")
        A("s_nop 1")
        A(f"v_permlane16_swap_b32 v{acc}, v{acc+1}")
        A("s_nop 0")
        A(f"v_add_f32 v{acc}, v{acc}, v{acc+1}")
        A(f"v_mul_f32 v{acc}, v{acc}, v{t2}")
        A(f"v_cvt_pk_bf16_f32 v{acc}, v{acc}, v{acc}")
        A(f"ds_write_b32 v{aW}, v{acc} offset:{L_W}")
        for i in range(2):
            A(f"ds_read_b128 v[{wj+4*i}:{wj+4*i+3}], v{aR} offset:{L_W + 16*i}")
        A("s_waitcnt vmcnt(0) lgkmcnt(1)")
        for r in range(4):
            A(f"v_and_b32 v{X+r}, v{mk+r}, v{wj}")
        for j in range(8):
            x = X + 4 * (j & 1)
            if j < 7:
                if j + 1 == 4:
                    A("s_waitcnt lgkmcnt(0)")
                xn = X + 4 * ((j + 1) & 1)
                for r in range(4):
                    A(f"v_and_b32 v{xn+r}, v{mk+r}, v{wj+j+1}")
            else:
                A("s_nop 1")
            c = "0" if j == 0 else f"v[{D}:{D+3}]"
            A(f"v_mfma_f32_16x16x32_bf16 v[{D}:{D+3}], a[{4*j}:{4*j+3}], v[{x}:{x+3}], {c}")
        A(f"v_lshlrev_b32 v{t0}, 2, v1")
        self.exec_mask(0xff00ff0000ff00ff)
        A("s_nop 4")
        for r in range(4):
            A(f"ds_write_b32 v{aD}, v{D+r} offset:{L_R + 32*r}")
        self.exec_all()
        A("s_waitcnt lgkmcnt(0)")
        A("s_barrier")
        A("s_cmp_lg_u32 s28, 0")
        A("s_cbranch_scc1 L_end")
        for i in range(8):
            A(f"ds_read_b32 v{wj+i}, v{t0} offset:{L_R + 256*i}")
        A("s_waitcnt lgkmcnt(0)")
        for i in range(2):
            A(f"v_pk_add_f32 v[{wj+4*i}:{wj+4*i+1}], v[{wj+4*i}:{wj+4*i+1}], v[{wj+4*i+2}:{wj+4*i+3}]")
        A(f"v_pk_add_f32 v[{wj}:{wj+1}], v[{wj}:{wj+1}], v[{wj+4}:{wj+5}]")
        A(f"v_add_f32 v{wj}, v{wj}, v{wj+1}")
        A(f"v_bfi_b32 v{wj}, s49, v{vTg}, v{wj}")
        A(f"buffer_store_dword v{wj}, v{t0}, s[44:47], s94 offen sc1")
        self.stamp(5)
        A("s_branch L_end")

    def roleC(self):
        A, C = self.A, self.C
        self.label("L_roleC")
        G = RB
        H = RB + 32
        Z = RB + 36
        vA0, xr = 2, 3
        t0, t1, t2, t3 = 4, 5, 6, 7
        sel, mk, P, X, D = 8, 12, 16, 20, 28
        aG, aS, aO = 44, 45, 46
        C("thread t -> columns 2t,2t+1")
        A("s_lshl_b32 s33, s28, 9")
        A(f"v_lshl_add_u32 v{vA0}, v1, 3, s33")
        A(f"v_lshrrev_b32 v{t0}, 1, v{vA0}")
        self.srd(56, 4, None, 1024)
        A(f"buffer_load_dword v{xr}, v{t0}, s[56:59], 0 offen")
        A(f"v_lshrrev_b32 v{t0}, 1, v1")
        A(f"v_lshlrev_b32 v{t0}, 4, v{t0}")
        A(f"v_and_b32 v{t1}, 1, v1")
        A(f"v_lshl_add_u32 v{t0}, v{t1}, 14, v{t0}")
        A(f"s_add_u32 s33, s33, {WS_HP}")
        A(f"v_add_u32 v{vA0}, s33, v{t0}")
        A(f"v_cmp_eq_u32 s[92:93], 1, v{t1}")
        self.emasks(mk, t0, t1, t2)
        A(f"v_and_b32 v{t0}, 3, v1")
        vals = {0: (0x0c0c0100, 0x0c0c0302), 1: (0x01000c0c, 0x03020c0c)}
        for i in range(4):
            A(f"v_mov_b32 v{sel+i}, 0x0c0c0c0c")
        for e in range(4):
            A(f"v_cmp_eq_u32 vcc, {e}, v{t0}")
            base = sel + (0 if e < 2 else 2)
            A(f"v_mov_b32 v{t1}, {hex(vals[e & 1][0])}")
            A(f"v_mov_b32 v{t2}, {hex(vals[e & 1][1])}")
            A(f"v_cndmask_b32 v{base}, v{base}, v{t1}, vcc")
            A(f"v_cndmask_b32 v{base+1}, v{base+1}, v{t2}, vcc")
        A("s_lshl_b32 s34, s28, 4")
        A(f"v_and_b32 v{t0}, 3, v1")
        A(f"v_lshlrev_b32 v{t0}, 6, v{t0}")
        A(f"v_lshrrev_b32 v{t1}, 4, v1")
        A(f"v_lshl_add_u32 v{t0}, v{t1}, 2, v{t0}")
        A(f"v_add_u32 v{aG}, s34, v{t0}")
        A(f"v_bfe_u32 v{t0}, v1, 3, 1")
        A(f"v_lshlrev_b32 v{t0}, 11, v{t0}")
        A(f"v_lshl_add_u32 v{t0}, v{t1}, 9, v{t0}")
        A(f"v_and_b32 v{t2}, 7, v1")
        A(f"v_lshl_add_u32 v{aS}, v{t2}, 6, v{t0}")
        A(f"v_lshlrev_b32 v{t0}, 7, v{t1}")
        A(f"v_lshl_add_u32 v{aO}, v{t2}, 4, v{t0}")
        A("s_lshl_b32 s94, s3, 11")
        A("s_lshl_b32 s34, s28, 9")
        A("s_add_u32 s94, s94, s34")
        A(f"s_add_u32 s94, s94, {WS_OP}")
        A("s_lshl_b32 s95, s28, 3")
        A(f"v_mov_b32 v{t3}, s95")
        if self.cthr < 16:
            C("phase 1: light poll, lane k<16 reads one dword of partial k")
            p1 = self.newlabel("C_p1"); p1d = self.newlabel("C_p1d")
            A(f"v_lshlrev_b32 v{t2}, 11, v1")
            A(f"v_add_u32 v{t2}, s33, v{t2}")
            A(f"s_mov_b32 s68, {POLL_MAX}")
            A("s_mov_b64 exec, 0xffff")
            self.label(p1)
            A(f"buffer_load_dword v{t0}, v{t2}, s[44:47], 0 offen sc1")
            A("s_waitcnt vmcnt(0)")
            self.mismatch(t1, [t0])
            A(f"v_cmp_ne_u32 vcc, 0, v{t1}")
            A("s_sub_u32 s68, s68, 1")
            A("s_cmp_eq_u32 s68, 0")
            A(f"s_cbranch_scc1 {p1d}")
            A("s_bcnt1_i32_b64 s96, vcc")
            A(f"s_cmp_le_u32 s96, {self.cthr}")
            A(f"s_cbranch_scc1 {p1d}")
            A("s_sleep 2")
            A(f"s_branch {p1}")
            self.label(p1d)
        PM = 76
        lp = self.newlabel("C_round"); dn = self.newlabel("C_done")
        for j in range(8):
            A(f"s_mov_b64 s[{PM+2*j}:{PM+2*j+1}], -1")
        A(f"s_mov_b32 s68, {POLL_MAX}")
        self.label(lp)
        for j in range(8):
            sk = self.newlabel("C_sk")
            A(f"s_mov_b64 exec, s[{PM+2*j}:{PM+2*j+1}]")
            A(f"s_cbranch_execz {sk}")
            so, io = (j * 2048) & ~4095, (j * 2048) & 4095
            A(f"s_mov_b32 s35, {so}")
            A(f"buffer_load_dwordx4 v[{G+4*j}:{G+4*j+3}], v{vA0}, s[44:47], s35 offen offset:{io} sc1")
            self.label(sk)
        A("s_mov_b64 s[96:97], 0")
        A("s_waitcnt vmcnt(0)")
        for j in range(8):
            sk = self.newlabel("C_ck")
            A(f"s_mov_b64 exec, s[{PM+2*j}:{PM+2*j+1}]")
            A(f"s_cbranch_execz {sk}")
            self.mismatch(t0, list(range(G + 4 * j, G + 4 * j + 4)))
            A(f"v_cmp_ne_u32 s[{PM+2*j}:{PM+2*j+1}], 0, v{t0}")
            A(f"s_or_b64 s[96:97], s[96:97], s[{PM+2*j}:{PM+2*j+1}]")
            self.label(sk)
        self.exec_all()
        A("s_cmp_eq_u64 s[96:97], 0")
        A(f"s_cbranch_scc1 {dn}")
        if self.csleep:
            A(f"s_sleep {self.csleep}")
        A("s_sub_u32 s68, s68, 1")
        A("s_cmp_lg_u32 s68, 0")
        A(f"s_cbranch_scc1 {lp}")
        self.label(dn)
        self.stamp(4)
        st = 1
        while st < 8:
            for k in range(0, 8, 2 * st):
                for h in range(2):
                    a, b = G + 4 * k + 2 * h, G + 4 * (k + st) + 2 * h
                    A(f"v_pk_add_f32 v[{a}:{a+1}], v[{a}:{a+1}], v[{b}:{b+1}]")
            st *= 2
        for i in range(2):
            A(f"v_cndmask_b32 v{G+4+i}, v{G+2+i}, v{G+i}, s[92:93]")
        for i in range(2):
            A(f"v_cndmask_b32 v{G+i}, v{G+i}, v{G+2+i}, s[92:93]")
        for i in range(2):
            A(f"v_add_f32_dpp v{G+i}, v{G+4+i}, v{G+i} quad_perm:[1,0,3,2] row_mask:0xf bank_mask:0xf")
        self.unpack(H, H + 1, xr)
        A(f"v_cvt_pk_bf16_f32 v{t0}, v{G}, v{G+1}")
        self.unpack(G, G + 1, t0)
        A(f"v_pk_add_f32 v[{H}:{H+1}], v[{H}:{H+1}], v[{G}:{G+1}]")
        A(f"v_cvt_pk_bf16_f32 v{t0}, v{H}, v{H+1}")
        self.unpack(H, H + 1, t0)
        A("s_nop 0")
        A(f"v_readfirstlane_b32 s33, v{H}")
        A("s_nop 1")
        A(f"v_subrev_f32 v{t0}, s33, v{H}")
        A(f"v_subrev_f32 v{t1}, s33, v{H+1}")
        A(f"v_add_f32 v{Z}, v{t0}, v{t1}")
        A(f"v_mul_f32 v{Z+1}, v{t0}, v{t0}")
        A(f"v_fmac_f32 v{Z+1}, v{t1}, v{t1}")
        self.row_allreduce("v_add_f32", [Z, Z + 1])
        A("s_nop 1")
        A(f"v_permlane32_swap_b32 v{Z}, v{Z+1}")
        A("s_nop 0")
        A(f"v_add_f32 v{Z}, v{Z}, v{Z+1}")
        self.cross_rows_allreduce("v_add_f32", Z, t0, do32=False)
        A("s_nop 0")
        A(f"v_readlane_b32 s34, v{Z}, 0")
        A(f"v_readlane_b32 s35, v{Z}, 32")
        A(f"v_mov_b32 v{t0}, {hex(f32bits(1.0/128))}")
        A("s_nop 0")
        A(f"v_mul_f32 v{t0}, s34, v{t0}")
        A(f"v_mov_b32 v{Z+1}, s35")
        A(f"v_add_f32 v{Z}, s33, v{t0}")
        A(f"v_fma_f32 v{Z+1}, -v{t0}, s34, v{Z+1}")
        A("s_mov_b64 exec, 1")
        A(f"ds_write_b64 v{t3}, v[{Z}:{Z+1}] offset:{L_R}")
        self.exec_all()
        A("s_waitcnt lgkmcnt(0)")
        A("s_barrier")
        A(f"ds_read_b128 v[{Z}:{Z+3}], v{vZ} offset:{L_R}")
        A(f"ds_read_b128 v[{Z+4}:{Z+7}], v{vZ} offset:{L_R+16}")
        A("s_waitcnt lgkmcnt(0)")
        A(f"v_pk_add_f32 v[{Z+8}:{Z+9}], v[{Z}:{Z+1}], v[{Z+2}:{Z+3}]")
        A(f"v_pk_add_f32 v[{Z+10}:{Z+11}], v[{Z+4}:{Z+5}], v[{Z+6}:{Z+7}]")
        A(f"v_pk_add_f32 v[{Z+8}:{Z+9}], v[{Z+8}:{Z+9}], v[{Z+10}:{Z+11}]")
        A(f"v_mul_f32 v{t0}, 0.25, v{Z+8}")
        for w in range(4):
            A(f"v_sub_f32 v{Z+2*w}, v{Z+2*w}, v{t0}")
        A(f"v_mul_f32 v{t1}, v{Z}, v{Z}")
        for w in range(1, 4):
            A(f"v_fmac_f32 v{t1}, v{Z+2*w}, v{Z+2*w}")
        A(f"v_mul_f32 v{t2}, {hex(f32bits(1.0/512))}, v{Z+9}")
        A(f"v_fmac_f32 v{t2}, 0.25, v{t1}")
        A(f"v_cvt_pk_bf16_f32 v{t1}, v{t0}, v{t2}")
        self.unpack(t0, t2, t1)
        A(f"v_add_f32 v{t2}, {hex(f32bits(1e-5))}, v{t2}")
        A(f"v_sub_f32 v{H}, v{H}, v{t0}")
        self.bf16_round1(t2, t2)
        A(f"v_sub_f32 v{H+1}, v{H+1}, v{t0}")
        A(f"v_sqrt_f32 v{t2}, v{t2}")
        A(f"v_cvt_pk_bf16_f32 v{t1}, v{H}, v{H+1}")
        self.bf16_round1(t2, t2)
        self.unpack(H, H + 1, t1)
        A(f"v_rcp_f32 v{t3}, v{t2}")
        A("s_nop 0")
        for i in range(2):
            A(f"v_mul_f32 v{Z+i}, v{H+i}, v{t3}")
        for i in range(2):
            A(f"v_fma_f32 v{H+i}, -v{Z+i}, v{t2}, v{H+i}")
        for i in range(2):
            A(f"v_fma_f32 v{H+i}, v{H+i}, v{t3}, v{Z+i}")
        A(f"v_cvt_pk_bf16_f32 v{t0}, v{H}, v{H+1}")
        self.stamp(7)
        A("s_nop 1")
        for i in range(4):
            A(f"v_mov_b32_dpp v{P+i}, v{t0} quad_perm:[{i},{i},{i},{i}] row_mask:0xf bank_mask:0xf")
        def mkx(j):
            x = X + 2 * (j & 1)
            A(f"v_perm_b32 v{x}, v{P+(j>>1)}, v{P+(j>>1)}, v{sel+(j&1)}")
            A(f"v_perm_b32 v{x+1}, v{P+(j>>1)}, v{P+(j>>1)}, v{sel+2+(j&1)}")
        mkx(0)
        for j in range(8):
            x = X + 2 * (j & 1)
            if j < 7:
                mkx(j + 1)
            else:
                A("s_nop 1")
            for mat in range(2):
                for hf in range(2):
                    d = D + (mat * 2 + hf) * 4
                    c = "0" if j == 0 else f"v[{d}:{d+3}]"
                    a = 32 * mat + 4 * j + 2 * hf
                    A(f"v_mfma_f32_16x16x16_bf16 v[{d}:{d+3}], a[{a}:{a+1}], v[{x}:{x+1}], {c}")
        self.exec_mask(0xf0000f0000f0000f)
        A("s_nop 2")
        for mat in range(2):
            for hf in range(2):
                if mat == 1 and hf == 1:
                    pass
                for r in range(4):
                    off = L_G + (mat * 32 + 8 * r + 4 * hf) * 64
                    A(f"ds_write_b32 v{aG}, v{D+(mat*2+hf)*4+r} offset:{off}")
        self.exec_all()
        A("s_waitcnt lgkmcnt(0)")
        A("s_barrier")
        self.stamp(8)
        for i in range(4):
            A(f"ds_read_b128 v[{Z+4*i}:{Z+4*i+3}], v{aS} offset:{L_G + 16*i}")
        A("s_waitcnt lgkmcnt(2)")
        A(f"v_pk_add_f32 v[{Z}:{Z+1}], v[{Z}:{Z+1}], v[{Z+2}:{Z+3}]")
        A(f"v_pk_add_f32 v[{Z+4}:{Z+5}], v[{Z+4}:{Z+5}], v[{Z+6}:{Z+7}]")
        A(f"v_pk_add_f32 v[{Z}:{Z+1}], v[{Z}:{Z+1}], v[{Z+4}:{Z+5}]")
        A("s_waitcnt lgkmcnt(0)")
        A(f"v_pk_add_f32 v[{Z+8}:{Z+9}], v[{Z+8}:{Z+9}], v[{Z+10}:{Z+11}]")
        A(f"v_pk_add_f32 v[{Z+12}:{Z+13}], v[{Z+12}:{Z+13}], v[{Z+14}:{Z+15}]")
        A(f"v_pk_add_f32 v[{Z+8}:{Z+9}], v[{Z+8}:{Z+9}], v[{Z+12}:{Z+13}]")
        A(f"v_pk_add_f32 v[{Z}:{Z+1}], v[{Z}:{Z+1}], v[{Z+8}:{Z+9}]")
        A(f"v_add_f32 v{Z}, v{Z}, v{Z+1}")
        self.bf16_round1(Z, Z)
        A(f"v_mul_f32 v{t0}, s63, v{Z}")
        A(f"v_exp_f32 v{t0}, v{t0}")
        A(f"v_mov_b32_dpp v{t1}, v{Z} row_ror:8 row_mask:0xf bank_mask:0xf")
        A(f"v_add_f32 v{t0}, 1.0, v{t0}")
        A(f"v_rcp_f32 v{t2}, v{t0}")
        A("s_nop 0")
        self.bf16_round1(t2, t2)
        A(f"v_mul_f32 v{t2}, v{t2}, v{t1}")
        A(f"v_cvt_pk_bf16_f32 v{t2}, v{t2}, v{t2}")
        A("s_nop 1")
        def mkd(j):
            x = X + 4 * (j & 1)
            for r in range(4):
                A(f"v_and_b32_dpp v{x+r}, v{t2}, v{mk+r} row_newbcast:{j} row_mask:0xf bank_mask:0xf")
        mkd(0)
        for j in range(8):
            x = X + 4 * (j & 1)
            if j < 7:
                mkd(j + 1)
            else:
                A("s_nop 1")
            c = "0" if j == 0 else f"v[{D}:{D+3}]"
            A(f"v_mfma_f32_16x16x32_bf16 v[{D}:{D+3}], a[{64+4*j}:{64+4*j+3}], v[{x}:{x+3}], {c}")
        self.exec_mask(0x00ff00ff00ff00ff)
        A("s_nop 5")
        for r in range(4):
            A(f"v_bfi_b32 v{D+r}, s49, v{vTg}, v{D+r}")
        A(f"buffer_store_dwordx4 v[{D}:{D+3}], v{aO}, s[44:47], s94 offen sc1")
        self.exec_all()
        self.stamp(5)
        A("s_branch L_end")

    def roleE(self):
        A, C = self.A, self.C
        self.label("L_roleE")
        a, hp, xr = RB, RB + 8, RB + 10
        vA0, vA1, vA2 = 2, 3, 4
        t0, t1, t2 = 6, 7, 8
        A("s_lshl_b32 s33, s3, 2")
        A("s_add_u32 s33, s33, s28")
        A("s_lshr_b32 s34, s33, 2")
        A("s_lshl_b32 s34, s34, 5")
        A("s_and_b32 s35, s33, 3")
        A("s_lshl_b32 s35, s35, 1")
        A("s_add_u32 s34, s34, s35")
        A(f"v_lshrrev_b32 v{t0}, 4, v1")
        A(f"v_lshlrev_b32 v{t0}, 3, v{t0}")
        A(f"v_add_u32 v{t0}, s34, v{t0}")
        A(f"v_lshlrev_b32 v{vA2}, 1, v{t0}")
        self.srd(56, 4, None, 1024)
        A(f"buffer_load_dword v{xr}, v{vA2}, s[56:59], 0 offen")
        A(f"v_and_b32 v{t1}, 15, v1")
        A(f"v_lshlrev_b32 v{t1}, 11, v{t1}")
        A(f"v_lshl_add_u32 v{vA1}, v{t0}, 2, v{t1}")
        A(f"v_add_u32 v{vA1}, {WS_HP}, v{vA1}")
        A("s_lshl_b32 s35, s33, 5")
        A(f"s_add_u32 s35, s35, {WS_OP}")
        A(f"v_lshlrev_b32 v{vA0}, 11, v1")
        A(f"v_add_u32 v{vA0}, s35, v{vA0}")
        self.srd(52, 22, None, 1024)
        for i in range(8):
            A(f"v_mov_b32 v{a+i}, 0")
        lp = self.newlabel("EH"); dn = self.newlabel("EH_done")
        A(f"s_mov_b32 s68, {POLL_MAX}")
        self.label(lp)
        A(f"buffer_load_dwordx2 v[{hp}:{hp+1}], v{vA1}, s[44:47], 0 offen sc1")
        A("s_waitcnt vmcnt(0)")
        self.mismatch(t0, [hp, hp + 1])
        A(f"v_cmp_ne_u32 vcc, 0, v{t0}")
        A("s_sub_u32 s68, s68, 1")
        A("s_cmp_eq_u32 s68, 0")
        A(f"s_cbranch_scc1 {dn}")
        A(f"s_cbranch_vccz {dn}")
        A("s_sleep 4")
        A(f"s_branch {lp}")
        self.label(dn)
        self.row_allreduce("v_add_f32", [hp, hp + 1])
        A(f"v_cvt_pk_bf16_f32 v{t0}, v{hp}, v{hp+1}")
        self.unpack(hp, hp + 1, t0)
        self.unpack(t0, t1, xr)
        A(f"v_add_f32 v{hp}, v{hp}, v{t0}")
        A(f"v_add_f32 v{hp+1}, v{hp+1}, v{t1}")
        A(f"v_cvt_pk_bf16_f32 v{t0}, v{hp}, v{hp+1}")
        self.unpack(hp, hp + 1, t0)
        lp = self.newlabel("EO"); dn = self.newlabel("EO_done")
        self.exec_mask((1 << NC) - 1)
        A(f"s_mov_b32 s68, {POLL_MAX}")
        self.label(lp)
        A(f"buffer_load_dwordx4 v[{a}:{a+3}], v{vA0}, s[44:47], 0 offen sc1")
        A(f"buffer_load_dwordx4 v[{a+4}:{a+7}], v{vA0}, s[44:47], 0 offen offset:16 sc1")
        A("s_waitcnt vmcnt(0)")
        self.mismatch(t0, list(range(a, a + 8)))
        A(f"v_cmp_ne_u32 vcc, 0, v{t0}")
        A("s_sub_u32 s68, s68, 1")
        A("s_cmp_eq_u32 s68, 0")
        A(f"s_cbranch_scc1 {dn}")
        A("s_mov_b64 exec, vcc")
        A(f"s_cbranch_vccnz {lp}")
        self.label(dn)
        self.exec_all()
        self.stamp(4)
        for e in range(2):
            for r in range(2):
                A(f"v_permlane32_swap_b32 v{a+4*e+r}, v{a+4*e+r+2}")
        A("s_nop 0")
        for e in range(2):
            for r in range(2):
                A(f"v_add_f32 v{a+4*e+r}, v{a+4*e+r}, v{a+4*e+r+2}")
        A("s_nop 1")
        for e in range(2):
            A(f"v_permlane16_swap_b32 v{a+4*e}, v{a+4*e+1}")
        A("s_nop 0")
        for e in range(2):
            A(f"v_add_f32 v{a+4*e}, v{a+4*e}, v{a+4*e+1}")
        self.row_allreduce("v_add_f32", [a, a + 4])
        A(f"v_cvt_pk_bf16_f32 v{t0}, v{a}, v{a+4}")
        self.unpack(a, a + 4, t0)
        A(f"v_add_f32 v{a}, v{a}, v{hp}")
        A(f"v_add_f32 v{a+4}, v{a+4}, v{hp+1}")
        A(f"v_cvt_pk_bf16_f32 v{t0}, v{a}, v{a+4}")
        self.exec_mask(0x0001000100010001)
        A(f"buffer_store_dword v{t0}, v{vA2}, s[52:55], 0 offen")
        self.exec_all()
        self.stamp(5)
        A("s_cmp_lg_u32 s33, 0")
        A("s_cbranch_scc1 L_end")
        C("epoch update")
        A("s_add_u32 s29, s29, 1")
        A(f"v_mov_b32 v{t0}, s29")
        A(f"v_mov_b32 v{t1}, {WS_EPOCH}")
        A("s_mov_b64 exec, 1")
        A(f"buffer_store_dword v{t0}, v{t1}, s[44:47], 0 offen")
        A("s_branch L_end")


if __name__ == "__main__":
    import argparse
    ap = argparse.ArgumentParser()
    ap.add_argument("-o", default="cdna_kernels/" + KN + ".s")
    ap.add_argument("--nr", type=int, default=3)
    ap.add_argument("--ns", type=int, default=5)
    ap.add_argument("--th", type=int, default=3)
    ap.add_argument("--ps", type=int, default=4)
    ap.add_argument("--stamps", action="store_true")
    ap.add_argument("--noq", type=int, default=0)
    ap.add_argument("--notail", action="store_true")
    ap.add_argument("--sizes", default="122,130,130,130")
    ap.add_argument("--early", default="B")
    ap.add_argument("--chunks", default="5")
    ap.add_argument("--th0", type=int, default=0)
    ap.add_argument("--pp", type=int, default=3)
    ap.add_argument("--pgap", type=int, default=6)
    ap.add_argument("--cthr", type=int, default=4)
    ap.add_argument("--gpol", default="nt")
    ap.add_argument("--qpol", default="nt")
    ap.add_argument("--n0", type=int, default=112)
    ap.add_argument("--p1", type=int, default=76)
    ap.add_argument("--p2", type=int, default=96)
    ap.add_argument("--biasc", type=float, default=6.0)
    ap.add_argument("--gain", type=float, default=1.0)
    ap.add_argument("--nobal", action="store_true")
    ap.add_argument("--qrot", type=int, default=0)
    ap.add_argument("--csleep", type=int, default=1)
    ap.add_argument("--mid", default="")
    ap.add_argument("--qc", type=int, default=0)
    ap.add_argument("--pstep", type=int, default=0)
    ap.add_argument("--amode", type=int, default=0)
    ap.add_argument("--arot", type=int, default=0)
    ap.add_argument("--hst", default="sc1")
    ap.add_argument("--defpol", default="")
    ap.add_argument("--hld", default="sc1")
    ap.add_argument("--hrot", type=int, default=0)
    a = ap.parse_args()
    g = Gen(nr=a.nr, ns=a.ns, th=a.th, ps=a.ps, stamps=a.stamps, noq=a.noq, notail=a.notail,
            sizes=tuple(map(int, a.sizes.split(","))), early=a.early, chunks=tuple(map(int, a.chunks.split(","))), th0=a.th0, pp=a.pp, pgap=a.pgap, cthr=a.cthr, gpol=('' if a.gpol == 'none' else ' ' + a.gpol), qpol=('' if a.qpol == 'none' else ' ' + a.qpol),
            n0=a.n0, p1=a.p1, p2=a.p2, biasc=a.biasc, gain=a.gain, bal=not a.nobal, qrot=a.qrot, hrot=a.hrot, amode=a.amode, arot=a.arot, csleep=a.csleep, mid=a.mid, qc=a.qc, pstep=a.pstep)
    txt = g.gen()
    if a.hst != "sc1" or a.hld != "sc1":
        out = []
        for ln in txt.split("\n"):
            if ln.rstrip().endswith(" sc1"):
                if "buffer_store" in ln:
                    ln = ln.rstrip()[:-3] + a.hst.replace("_", " ")
                elif "buffer_load" in ln:
                    ln = ln.rstrip()[:-3] + a.hld.replace("_", " ")
            out.append(ln)
        txt = "\n".join(out)
    import re as _re
    for ch, srd in (("K", r"s\[36:39\]"), ("V", r"s\[40:43\]"), ("W", r"s\[52:55\]"), ("W", r"s\[56:59\]")):
        if ch in a.defpol:
            txt = _re.sub("(" + srd + r".*) nt$", r"\1", txt, flags=_re.M)
    open(a.o, "w").write(txt)
    print("wrote", a.o)
```

```python
import sys, struct

KN = "sequential_preLN__gqa_block_cached__glu_gated_glu__decode"

def f32bits(x):
    return struct.unpack("<I", struct.pack("<f", x))[0]

WS_EPOCH = 0
WS_T     = 4096
WS_PML   = 8192
WS_HP    = 32768
WS_Q     = 65536
WS_PO    = 131072
WS_OP    = WS_PO + 524288
WS_Q1    = 786432
WS_STAMP = 1 << 20
WS_SIZE  = 2 << 20
QR = 4
INV = 0x40000000
WS_CTR2 = 1 << 20 | 1 << 19

L_Q  = 0
L_O  = 1024
L_M  = 9216
L_L  = 10240
L_W  = 11264
L_R  = 13312
L_G  = 17408
L_QP = 21504
L_CTR = 22528
L_EXT = 22536
L_QF = 22544
LDS_BYTES = 22592

NB, NC, NE_WG = 64, 56, 16
B0, C0, E0 = 0, 64, 120
POLL_MAX = 200000

vKo, vVo = 2, 3
vQ, vS, vO = 4, 20, 24
vM, vL = 32, 33
vMk0, vMk1 = 34, 35
vT0, vT1 = 36, 37
vX = 38
vF, vNM = 42, 43
vTk = 44
vIC = 48
vZ = 50
vSt = 51
vTg = 54
vPA = 55
RB = 56


class Gen:
    def __init__(self, nr=3, ns=5, th=3, stamps=False, ps=10, noq=0, notail=False,
                 sizes=(122, 130, 130, 130), early="B", chunks=(2, 2, 1), th0=None, pp=3, pgap=6, cthr=4, gpol=' nt', qpol=' nt', n0=112, p1=76, p2=96, biasc=6.0, gain=1.0, bal=True, qrot=0, hrot=0, amode=0, arot=0, csleep=1, mid='', qc=0, pstep=0, hrot2=0):
        self.L = []
        self.nr, self.ns, self.th, self.ps = nr, ns, th, ps
        self.stamps = stamps
        self.noq = noq
        self.notail = notail
        self.sizes = sizes
        self.early = early
        self.chunks = chunks
        self.qrot = qrot
        self.csleep = csleep
        self.mid = mid
        self.qc = qc
        self.hrot2 = hrot2
        self.pstep = pstep
        self.amode, self.arot = amode, arot
        self.hrot = hrot
        self.n0, self.p1, self.p2, self.biasc, self.gain, self.bal = n0, p1, p2, biasc, gain, bal
        self.gpol, self.qpol = gpol, qpol
        self.pp, self.pgap, self.cthr = pp, pgap, cthr
        self.th0 = th0 if th0 else th
        assert sum(sizes) == 512 and sum(chunks) == ns
        self.lbl = 0
        self.QS = RB + nr * 32
        self.NV = self.QS + 24

    def A(self, s): self.L.append("  " + s)
    def C(self, s): self.L.append("  ; " + s)
    def label(self, name): self.L.append(name + ":")
    def newlabel(self, p="L"):
        self.lbl += 1
        return f"{p}_{self.lbl}"

    def srd(self, d, base_lo, off_sgpr, size):
        A = self.A
        if off_sgpr is not None:
            A(f"s_add_u32 s{d}, s{base_lo}, s{off_sgpr}")
            A(f"s_addc_u32 s{d+1}, s{base_lo+1}, 0")
        else:
            A(f"s_mov_b32 s{d}, s{base_lo}")
            A(f"s_mov_b32 s{d+1}, s{base_lo+1}")
        A(f"s_mov_b32 s{d+2}, {size}")
        A(f"s_mov_b32 s{d+3}, 0x00020000")

    def exec_all(self): self.A("s_mov_b64 exec, -1")
    def exec_mask(self, m):
        lo, hi = m & 0xffffffff, m >> 32
        self.A(f"s_mov_b32 exec_lo, {hex(lo)}")
        self.A(f"s_mov_b32 exec_hi, {hex(hi)}")

    def dpp(self, op, d, s0, s1, ctrl):
        self.A(f"{op}_dpp v{d}, v{s0}, v{s1} {ctrl} row_mask:0xf bank_mask:0xf")

    def row_allreduce(self, op, regs):
        for ctrl in ("quad_perm:[1,0,3,2]", "quad_perm:[2,3,0,1]", "row_half_mirror", "row_mirror"):
            if len(regs) < 3:
                self.A("s_nop 1")
            for r in regs:
                self.dpp(op, r, r, r, ctrl)

    def cross_rows_allreduce(self, op, r, t, do16=True, do32=True):
        A = self.A
        for sw, en in (("v_permlane32_swap_b32", do32), ("v_permlane16_swap_b32", do16)):
            if not en:
                continue
            A(f"v_mov_b32 v{t}, v{r}")
            A("s_nop 1")
            A(f"{sw} v{r}, v{t}")
            A("s_nop 0")
            A(f"{op} v{r}, v{r}, v{t}")

    def wave_allreduce(self, op, r, t):
        self.row_allreduce(op, [r])
        self.cross_rows_allreduce(op, r, t)

    def bf16_round1(self, d, s):
        self.A(f"v_cvt_pk_bf16_f32 v{d}, v{s}, v{s}")
        self.A(f"v_and_b32 v{d}, s60, v{d}")

    def unpack(self, lo, hi, p):
        self.A(f"v_lshlrev_b32 v{lo}, 16, v{p}")
        self.A(f"v_and_b32 v{hi}, s60, v{p}")

    def stamp(self, idx):
        if not self.stamps:
            return
        A = self.A
        A("s_memrealtime s[98:99]")
        A("s_waitcnt lgkmcnt(0)")
        A(f"s_mul_i32 s100, s2, {5*64}")
        A("s_lshl_b32 s101, s28, 6")
        A("s_add_u32 s100, s100, s101")
        A(f"s_add_u32 s100, s100, {WS_STAMP + idx*4}")
        A(f"v_mov_b32 v{vSt}, s98")
        A(f"v_mov_b32 v{vSt+1}, s100")
        A("s_mov_b64 s[98:99], exec")
        A("s_mov_b64 exec, 1")
        A(f"buffer_store_dword v{vSt}, v{vSt+1}, s[44:47], 0 offen")
        A("s_mov_b64 exec, s[98:99]")

    def layernorm(self, X, n, T, cnt_inv, Y=None, ny=None):
        A = self.A
        t0, t1, t2, t3 = T, T + 1, T + 2, T + 3
        A(f"v_add_f32 v{t0}, v{X}, v{X+1}")
        for i in range(2, n):
            A(f"v_add_f32 v{t0}, v{t0}, v{X+i}")
        self.wave_allreduce("v_add_f32", t0, t1)
        A(f"v_mul_f32 v{t0}, {cnt_inv}, v{t0}")
        A(f"v_sub_f32 v{t1}, v{X}, v{t0}")
        A(f"v_mul_f32 v{t2}, v{t1}, v{t1}")
        for i in range(1, n):
            A(f"v_sub_f32 v{t1}, v{X+i}, v{t0}")
            A(f"v_fmac_f32 v{t2}, v{t1}, v{t1}")
        self.wave_allreduce("v_add_f32", t2, t1)
        A(f"v_mul_f32 v{t2}, {cnt_inv}, v{t2}")
        self.bf16_round1(t0, t0)
        self.bf16_round1(t2, t2)
        A(f"v_add_f32 v{t2}, {hex(f32bits(1e-5))}, v{t2}")
        self.bf16_round1(t2, t2)
        A(f"v_sqrt_f32 v{t2}, v{t2}")
        A("s_nop 0")
        self.bf16_round1(t2, t2)
        A(f"v_rcp_f32 v{t3}, v{t2}")
        if Y is not None:
            X, n = Y, ny
        for i in range(n):
            A(f"v_sub_f32 v{X+i}, v{X+i}, v{t0}")
        for i in range(0, n, 2):
            A(f"v_cvt_pk_bf16_f32 v{t1}, v{X+i}, v{X+i+1}")
            self.unpack(X + i, X + i + 1, t1)
        for i in range(n):
            A(f"v_mul_f32 v{t1}, v{X+i}, v{t3}")
            A(f"v_fma_f32 v{X+i}, -v{t1}, v{t2}, v{X+i}")
            A(f"v_fma_f32 v{X+i}, v{X+i}, v{t3}, v{t1}")
        for i in range(0, n, 2):
            A(f"v_cvt_pk_bf16_f32 v{t1}, v{X+i}, v{X+i+1}")
            self.unpack(X + i, X + i + 1, t1)

    def gather_loop(self, loads, regs, vt, active_mask=None, name="G"):
        A = self.A
        lp = self.newlabel(name + "_poll")
        dn = self.newlabel(name + "_done")
        if active_mask is None:
            A("s_mov_b64 s[66:67], -1")
        else:
            A(f"s_mov_b32 s66, {hex(active_mask & 0xffffffff)}")
            A(f"s_mov_b32 s67, {hex(active_mask >> 32)}")
        A(f"s_mov_b32 s68, {POLL_MAX}")
        self.label(lp)
        A("s_mov_b64 exec, s[66:67]")
        loads()
        A("s_waitcnt vmcnt(0)")
        rs = list(regs)
        if len(rs) == 2:
            A(f"v_max_u32 v{vt}, v{rs[0]}, v{rs[1]}")
        else:
            A(f"v_max3_u32 v{vt}, v{rs[0]}, v{rs[1]}, v{rs[2]}")
            i = 3
            while i < len(rs):
                if i + 1 < len(rs):
                    A(f"v_max3_u32 v{vt}, v{vt}, v{rs[i]}, v{rs[i+1]}")
                    i += 2
                else:
                    A(f"v_max_u32 v{vt}, v{vt}, v{rs[i]}")
                    i += 1
        A(f"v_cmp_eq_u32 vcc, -1, v{vt}")
        A("s_sub_u32 s68, s68, 1")
        A("s_cmp_eq_u32 s68, 0")
        A(f"s_cbranch_scc1 {dn}")
        A("s_mov_b64 s[66:67], vcc")
        A(f"s_cbranch_vccz {dn}")
        A("s_sleep 1")
        A(f"s_branch {lp}")
        self.label(dn)
        self.exec_all()

    def maxreduce(self, vt, rs):
        A = self.A
        rs = list(rs)
        if len(rs) == 1:
            A(f"v_mov_b32 v{vt}, v{rs[0]}")
        elif len(rs) == 2:
            A(f"v_max_u32 v{vt}, v{rs[0]}, v{rs[1]}")
        else:
            A(f"v_max3_u32 v{vt}, v{rs[0]}, v{rs[1]}, v{rs[2]}")
            i = 3
            while i < len(rs):
                if i + 1 < len(rs):
                    A(f"v_max3_u32 v{vt}, v{vt}, v{rs[i]}, v{rs[i+1]}")
                    i += 2
                else:
                    A(f"v_max_u32 v{vt}, v{vt}, v{rs[i]}")
                    i += 1

    def gather_pipe(self, loads, nload, regs, vt, P, gap, active_mask=None, name="GP", preinit=True):
        A = self.A
        lp = self.newlabel(name + "_poll")
        dn = self.newlabel(name + "_done")
        if active_mask is None:
            A("s_mov_b64 s[66:67], -1")
        else:
            A(f"s_mov_b32 s66, {hex(active_mask & 0xffffffff)}")
            A(f"s_mov_b32 s67, {hex(active_mask >> 32)}")
        A("s_mov_b64 exec, s[66:67]")
        if preinit:
            for r in regs:
                A(f"v_mov_b32 v{r}, -1")
        A(f"s_mov_b32 s68, {POLL_MAX * P}")
        A("s_waitcnt vmcnt(0)")
        for k in range(P - 1):
            loads()
            A(f"s_sleep {gap}")
        self.label(lp)
        loads()
        A(f"s_waitcnt vmcnt({nload * (P - 1)})")
        self.maxreduce(vt, regs)
        A(f"v_cmp_eq_u32 vcc, -1, v{vt}")
        A("s_sub_u32 s68, s68, 1")
        A("s_cmp_eq_u32 s68, 0")
        A(f"s_cbranch_scc1 {dn}")
        A("s_mov_b64 exec, vcc")
        A(f"s_cbranch_vccnz {lp}")
        self.label(dn)
        self.exec_all()

    def tile_body(self, pre, kb, vb, wait_k, wait_v, after_qk, after_pv):
        A = self.A
        if wait_k is not None:
            A(f"s_waitcnt vmcnt({wait_k})")
        for m in range(4):
            k = kb + 4 * m
            c = "0" if m == 0 else f"v[{vS}:{vS+3}]"
            A(f"v_mfma_f32_16x16x32_bf16 v[{vS}:{vS+3}], {pre}[{k}:{k+3}], v[{vQ+4*m}:{vQ+4*m+3}], {c}")
        n = after_qk()
        if n < 8:
            A(f"s_nop {7 - n}")
        A(f"v_cvt_pk_bf16_f32 v{vT0}, v{vS}, v{vS+1}")
        A(f"v_cvt_pk_bf16_f32 v{vT1}, v{vS+2}, v{vS+3}")
        self.unpack(vS, vS + 1, vT0)
        self.unpack(vS + 2, vS + 3, vT1)
        for r in range(4):
            A(f"v_mul_f32 v{vS+r}, s61, v{vS+r}")
        A(f"v_cvt_pk_bf16_f32 v{vT0}, v{vS}, v{vS+1}")
        A(f"v_cvt_pk_bf16_f32 v{vT1}, v{vS+2}, v{vS+3}")
        self.unpack(vS, vS + 1, vT0)
        self.unpack(vS + 2, vS + 3, vT1)
        A(f"v_max3_f32 v{vT0}, v{vS}, v{vS+1}, v{vS+2}")
        A(f"v_max3_f32 v{vT0}, v{vT0}, v{vS+3}, v{vM}")
        self.cross_rows_allreduce("v_max_f32", vT0, vT1)
        A(f"v_sub_f32 v{vF}, v{vM}, v{vT0}")
        A(f"v_mul_f32 v{vNM}, s63, v{vT0}")
        A(f"v_mul_f32 v{vF}, s62, v{vF}")
        A(f"v_mov_b32 v{vM}, v{vT0}")
        A(f"v_exp_f32 v{vF}, v{vF}")
        for r in range(4):
            A(f"v_fma_f32 v{vS+r}, v{vS+r}, s62, v{vNM}")
        for r in range(4):
            A(f"v_exp_f32 v{vS+r}, v{vS+r}")
        for i in range(8):
            A(f"v_mul_f32 v{vO+i}, v{vF}, v{vO+i}")
        A(f"v_add_f32 v{vT0}, v{vS}, v{vS+1}")
        A(f"v_add_f32 v{vT1}, v{vS+2}, v{vS+3}")
        A(f"v_add_f32 v{vT0}, v{vT0}, v{vT1}")
        A(f"v_fma_f32 v{vL}, v{vL}, v{vF}, v{vT0}")
        for r in range(4):
            A(f"v_cvt_pk_bf16_f32 v{vS+r}, v{vS+r}, v{vS+r}")
        A(f"v_and_b32 v{vX}, v{vMk0}, v{vS}")
        A(f"v_and_b32 v{vX+1}, v{vMk1}, v{vS}")
        if wait_v is not None:
            A(f"s_waitcnt vmcnt({wait_v})")
        for r in range(4):
            x = vX + 2 * (r & 1)
            if r < 3:
                xn = vX + 2 * ((r + 1) & 1)
                A(f"v_and_b32 v{xn}, v{vMk0}, v{vS+r+1}")
                A(f"v_and_b32 v{xn+1}, v{vMk1}, v{vS+r+1}")
            v = vb + 4 * r
            A(f"v_mfma_f32_16x16x16_bf16 v[{vO}:{vO+3}], {pre}[{v}:{v+1}], v[{x}:{x+1}], v[{vO}:{vO+3}]")
            A(f"v_mfma_f32_16x16x16_bf16 v[{vO+4}:{vO+7}], {pre}[{v+2}:{v+3}], v[{x}:{x+1}], v[{vO+4}:{vO+7}]")
        after_pv()

    def tk2off(self):
        A = self.A
        if self.amode == 0:
            A("s_lshl_b32 s34, s33, 12")
            A("s_add_u32 s34, s34, s81")
        elif self.amode in (6, 7):
            LB = self.arot if self.arot else 2
            LB = 0 if LB == 9 else LB
            if LB == 0:
                A("s_lshl_b32 s34, s33, 14")
            else:
                A(f"s_lshr_b32 s34, s33, {LB}")
                A(f"s_lshl_b32 s34, s34, {14 + LB}")
                A(f"s_and_b32 s35, s33, {(1 << LB) - 1}")
                A("s_lshl_b32 s35, s35, 12")
                A("s_add_u32 s34, s34, s35")
            A("s_add_u32 s34, s34, s81")
        elif self.amode == 1:
            A("s_lshr_b32 s34, s33, 2")
            A("s_lshl_b32 s34, s34, 16")
            A("s_and_b32 s35, s33, 3")
            A("s_lshl_b32 s35, s35, 12")
            A("s_add_u32 s34, s34, s35")
            A("s_add_u32 s34, s34, s81")
        elif self.amode in (4, 5):
            lg = (self.arot % 100).bit_length() - 1
            if self.amode == 5:
                A("s_add_u32 s34, s33, s95")
                A("s_and_b32 s34, s34, 127")
                A("s_lshr_b32 s34, s34, 2")
            else:
                A("s_lshr_b32 s34, s33, 2")
            A(f"s_lshl_b32 s34, s34, {14 + lg}")
            A("s_and_b32 s35, s33, 3")
            A(f"s_lshl_b32 s35, s35, {12 + (lg if self.arot >= 100 else 0)}")
            A("s_add_u32 s34, s34, s35")
            A("s_add_u32 s34, s34, s81")
        elif self.amode == 2:
            A("s_add_u32 s34, s33, s95")
            A("s_and_b32 s34, s34, 127")
            A("s_lshl_b32 s34, s34, 12")
            A("s_add_u32 s34, s34, s81")
        elif self.amode == 3:
            A("s_xor_b32 s34, s33, s95")
            A("s_and_b32 s34, s34, 127")
            A("s_lshl_b32 s34, s34, 12")
            A("s_add_u32 s34, s34, s81")

    def loadK(self, pre, kb, soff):
        for m in range(4):
            r = kb + 4 * m
            self.A(f"buffer_load_dwordx4 {pre}[{r}:{r+3}], v{vKo}, s[36:39], s{soff} offen offset:{m*64} nt")

    def loadV(self, pre, vb, soff):
        for m in range(4):
            r = vb + 4 * m
            self.A(f"buffer_load_dwordx4 {pre}[{r}:{r+3}], v{vVo}, s[40:43], s{soff} offen offset:{m*1024} nt")

    def gen(self):
        A, C = self.A, self.C
        NR, NS, TH = self.nr, self.ns, self.th
        self.L.append(f"; @launch grid=(256,1,1) block=(256,1,1) lds={LDS_BYTES}")
        self.L.append('.amdgcn_target "amdgcn-amd-amdhsa--gfx950"')
        self.L.append(".text")
        self.L.append(f".globl {KN}_kernel")
        self.L.append(".p2align 8")
        self.L.append(f".type {KN}_kernel,@function")
        self.label(f"{KN}_kernel")
        A("s_cmp_ge_u32 s2, 256")
        A("s_cbranch_scc1 L_end")
        A("s_load_dwordx16 s[4:19], s[0:1], 0")
        A("s_load_dwordx8 s[20:27], s[0:1], 64")
        if self.bal:
            A("s_memrealtime s[96:97]")
        A("v_lshrrev_b32 v2, 6, v0")
        A("v_and_b32 v1, 63, v0")
        A("s_mov_b32 s60, 0xffff0000")
        A("v_readfirstlane_b32 s28, v2")
        A(f"s_mov_b32 s61, {hex(f32bits(128 ** -0.5))}")
        A(f"s_mov_b32 s62, {hex(f32bits(1.4426950408889634))}")
        A(f"s_mov_b32 s63, {hex(f32bits(-1.4426950408889634))}")
        A("s_lshr_b32 s33, s2, 3")
        A("s_lshr_b32 s31, s33, 2")
        if self.hrot:
            A(f"s_add_u32 s31, s31, {self.hrot}")
            A("s_and_b32 s31, s31, 7")
        A("s_and_b32 s33, s33, 3")
        A("s_and_b32 s32, s2, 7")
        A("s_lshl_b32 s32, s32, 2")
        A("s_add_u32 s32, s32, s33")
        A("s_and_b32 s34, s2, 7")
        A("s_lshl_b32 s34, s34, 3")
        A("s_add_u32 s3, s34, s31")
        C("role class s70: 1=B (sub 0,2) 2=C 3=E 0=none ; s3 = index")
        A("s_mov_b32 s70, 1")
        A("s_bitcmp0_b32 s33, 0")
        A("s_cbranch_scc1 L_role_done")
        A("s_cmp_eq_u32 s33, 1")
        A("s_cbranch_scc0 L_role_s3")
        A("s_mov_b32 s70, 2")
        A(f"s_cmp_lt_u32 s3, {NC}")
        A("s_cbranch_scc1 L_role_done")
        A("s_mov_b32 s70, 3")
        A(f"s_sub_u32 s3, s3, {NC}")
        A("s_branch L_role_done")
        self.label("L_role_s3")
        A("s_cmp_lt_u32 s3, 8")
        A("s_cselect_b32 s70, 3, 0")
        A("s_add_u32 s3, s3, 8")
        self.label("L_role_done")
        A("s_movk_i32 s49, 0xfff")
        A(f"v_lshlrev_b32 v{vVo}, 4, v1")
        A(f"v_and_b32 v{vT0}, 3, v1")
        A(f"v_lshlrev_b32 v{vT0}, 2, v{vT0}")
        A(f"v_bfe_u32 v{vT1}, v1, 2, 2")
        A(f"v_add_u32 v{vT0}, v{vT0}, v{vT1}")
        A(f"v_lshlrev_b32 v{vT0}, 8, v{vT0}")
        A(f"v_lshrrev_b32 v{vT1}, 4, v1")
        A(f"v_lshl_add_u32 v{vKo}, v{vT1}, 4, v{vT0}")
        A(f"v_mov_b32 v{vZ}, 0")
        A(f"v_lshlrev_b32 v{vNM}, 5, v1")
        A(f"v_lshrrev_b32 v{vIC}, 4, v1")
        A(f"v_lshlrev_b32 v{vIC}, 9, v{vIC}")
        A(f"v_and_b32 v{vIC+1}, 15, v1")
        A(f"v_lshl_add_u32 v{vIC}, v{vIC+1}, 3, v{vIC}")
        A("s_mov_b32 s72, 0")
        A(f"v_mov_b32 v{self.QS+4}, 0")
        A(f"v_mov_b32 v{self.QS+5}, 0")
        A("s_mov_b32 s73, 0")
        A("s_waitcnt lgkmcnt(0)")
        A("s_load_dword s29, s[26:27], 0")
        self.srd(44, 26, None, WS_SIZE)
        self.stamp(0)
        if not self.noq:
            self.qphase_issue()
        if self.amode in (4, 5):
            G = self.arot % 100
            lg = G.bit_length() - 1
            A("s_lshr_b32 s33, s2, 3")
            A(f"s_lshr_b32 s34, s33, {lg}")
            A("s_and_b32 s35, s2, 7")
            A(f"s_lshl_b32 s35, s35, {5 - lg}")
            A("s_add_u32 s34, s34, s35")
            A("s_and_b32 s31, s34, 7")
            A("s_lshr_b32 s34, s34, 3")
            A(f"s_lshl_b32 s93, s34, {19 + lg}")
            A(f"s_and_b32 s33, s33, {G-1}")
            A(f"s_lshl_b32 s33, s33, {12 if self.arot >= 100 else 14}")
            A("s_add_u32 s93, s93, s33")
            A("s_lshl_b32 s95, s31, 4")
        C("K/V SRDs: base + ga*16MiB")
        A("s_lshl_b32 s33, s31, 24")
        self.srd(36, 6, 33, 1 << 24)
        self.srd(40, 8, 33, 1 << 24)
        if self.bal:
            A(f"s_mul_i32 s81, s32, {self.n0 * 4096}")
            A("s_mov_b32 s89, s96")
            A("s_mov_b32 s87, 0")
            A("s_mov_b32 s50, 0")
            A("s_mov_b32 s88, 0")
            A(f"v_mov_b32 v{vT1}, -1")
            A(f"ds_write_b32 v{vZ}, v{vT1} offset:{L_EXT+4}")
        else:
            C("WG tile range: start = xcd*512 + prefix[sub], n = sizes[sub]")
            sz = self.sizes
            A("s_and_b32 s33, s32, 3")
            A(f"s_mov_b32 s65, {sz[0]}")
            A("s_mov_b32 s81, 0")
            pre = 0
            for k in range(1, 4):
                pre += sz[k - 1]
                A(f"s_cmp_eq_u32 s33, {k}")
                A(f"s_cselect_b32 s65, {sz[k]}, s65")
                A(f"s_cselect_b32 s81, {pre}, s81")
            A("s_lshr_b32 s33, s32, 2")
            A("s_lshl_b32 s33, s33, 9")
            A("s_add_u32 s81, s81, s33")
            A("s_lshl_b32 s81, s81, 12")
        if self.amode in (6, 7):
            A("s_lshr_b32 s81, s32, 2")
            if self.hrot2:
                A(f"s_mul_i32 s34, s31, {self.hrot2}")
                A("s_add_u32 s81, s81, s34")
                A("s_and_b32 s81, s81, 7")
            A(f"s_mul_i32 s81, s81, {4 * self.n0 * 4096 if self.amode == 6 else 1 << 21}")
            A("s_and_b32 s34, s32, 3")
            LB = self.arot if self.arot else 2
            LB = 0 if LB == 9 else LB
            A(f"s_lshl_b32 s34, s34, {12 + LB}")
            A("s_add_u32 s81, s81, s34")
        if self.amode == 1:
            A("s_lshr_b32 s81, s32, 2")
            A("s_lshl_b32 s81, s81, 21")
            A("s_and_b32 s34, s32, 3")
            A("s_lshl_b32 s34, s34, 14")
            A("s_add_u32 s81, s81, s34")
        if self.amode in (4, 5):
            A("s_mov_b32 s81, s93")
        if self.amode == 2:
            if self.arot >= 100:
                A(f"s_mul_i32 s95, s2, {self.arot - 100}")
                A("s_lshl_b32 s95, s95, 2")
            else:
                A(f"s_mul_i32 s95, s31, {self.arot}")
        if self.amode == 3:
            A(f"s_bfe_i32 s95, s{31 if self.arot else 32}, {0 | (1 << 16)}")
            A("s_and_b32 s95, s95, 124")
        A("s_mov_b32 s94, s28")
        A("s_mov_b32 s33, s94")
        self.tk2off()
        A("s_mov_b32 s64, s34")
        A(f"v_mov_b32 v{vTk+1}, 1")
        A(f"v_mov_b32 v{vT0}, {4*(NR+NS)}")
        A(f"ds_write_b32 v{vZ}, v{vT0} offset:{L_CTR}")
        A(f"ds_write_b32 v{vZ}, v{vZ} offset:{L_QF}")
        halves = []
        for s in range(NR):
            halves += [("K", "v", RB + 32 * s), ("V", "v", RB + 32 * s + 16)]
        for s in range(NS):
            halves += [("K", "a", 32 * s), ("V", "a", 32 * s + 16)]
        def issue_half(hv):
            if hv[0] == "K":
                self.loadK(hv[1], hv[2], 64)
            else:
                self.loadV(hv[1], hv[2], 64)
                A("s_add_u32 s94, s94, 4")
                A("s_mov_b32 s33, s94")
                self.tk2off()
                A("s_mov_b32 s64, s34")
        A("s_waitcnt lgkmcnt(0)")
        A("s_barrier")
        TH0 = self.th0
        for hv in halves[:TH0]:
            issue_half(hv)
        QC = max(self.qc, TH0)
        def qwork(younger):
            self.qphase_compute(younger, younger)
            self.q_publish()
        A("s_mov_b32 s82, 0")
        if not self.noq and QC == TH0:
            qwork(4 * TH0)
        PST = self.pstep if self.pstep else TH
        for k, hv in enumerate(halves):
            if k < TH0:
                continue
            A(f"s_waitcnt vmcnt({4*(TH-1)})")
            issue_half(hv)
            if not self.noq and k + 1 == QC and QC > TH0:
                qwork(4 * TH)
            if not self.noq and k >= self.ps and (k - self.ps) % PST == 0:
                if PST < TH and k != self.ps:
                    sk = self.newlabel("pw")
                    A("s_cmp_lg_u32 s28, 0")
                    A(f"s_cbranch_scc1 {sk}")
                    A(f"s_waitcnt vmcnt({4*PST})")
                    self.label(sk)
                self.q_poll_step(first=(k == self.ps))
        A(f"v_and_b32 v{vT0}, 3, v1")
        A(f"v_mov_b32 v{vMk0}, 0")
        A(f"v_mov_b32 v{vMk1}, 0")
        A(f"v_mov_b32 v{vT1}, 0xffff")
        A(f"v_mov_b32 v{vF}, s60")
        for e, (mk, val) in enumerate(((vMk0, vT1), (vMk0, vF), (vMk1, vT1), (vMk1, vF))):
            A(f"v_cmp_eq_u32 vcc, {e}, v{vT0}")
            A("s_nop 1")
            A(f"v_cndmask_b32 v{mk}, v{mk}, v{val}, vcc")
        for i in range(8):
            A(f"v_mov_b32 v{vO+i}, 0")
        if not self.noq:
            A(f"v_mov_b32 v{vTg}, s71")
        A(f"v_bfe_u32 v{vT0}, v1, 2, 2")
        A(f"v_lshlrev_b32 v{vT0}, 9, v{vT0}")
        A(f"v_lshrrev_b32 v{vT1}, 4, v1")
        A(f"v_lshl_add_u32 v{vT0}, v{vT1}, 6, v{vT0}")
        A(f"v_and_b32 v{vT1}, 3, v1")
        A(f"v_lshl_add_u32 v{vPA}, v{vT1}, 4, v{vT0}")
        A(f"v_mov_b32 v{vM}, 0xff800000")
        A(f"v_mov_b32 v{vL}, 0")
        for s in range(NR):
            A(f"s_mov_b32 s{77+s}, 1")
        A(f"s_mov_b32 s83, {len(self.chunks)}")
        self.stamp(13)
        if not self.noq:
            self.q_poll_final()
            lp = self.newlabel("qflag")
            ok = self.newlabel("qflag_ok")
            A(f"s_mov_b32 s68, {POLL_MAX * 16}")
            self.label(lp)
            A(f"ds_read_b32 v{vT0}, v{vZ} offset:{L_QF}")
            A("s_waitcnt lgkmcnt(0)")
            A(f"v_readfirstlane_b32 s33, v{vT0}")
            A("s_cmp_lg_u32 s33, 0")
            A(f"s_cbranch_scc1 {ok}")
            A("s_sleep 1")
            A("s_sub_u32 s68, s68, 1")
            A("s_cmp_lg_u32 s68, 0")
            A(f"s_cbranch_scc1 {lp}")
            self.label(ok)
        A(f"v_bfe_u32 v{vT0}, v1, 2, 2")
        A(f"v_lshlrev_b32 v{vT0}, 8, v{vT0}")
        A(f"v_lshrrev_b32 v{vT1}, 4, v1")
        A(f"v_lshl_add_u32 v{vT0}, v{vT1}, 4, v{vT0}")
        for m in range(4):
            A(f"ds_read_b128 v[{vQ+4*m}:{vQ+4*m+3}], v{vT0} offset:{L_Q + m*64}")
        self.stamp(1)
        A("s_waitcnt lgkmcnt(0)")
        W = 8 * NR - 4
        self.label("L_loop")
        for s in range(NR):
            C(f"---- ring slot {s}")
            kb, vb = RB + 32 * s, RB + 32 * s + 16
            so, sv = 74 + s, 77 + s
            A(f"s_cmp_eq_u32 s{sv}, 0")
            A("s_cbranch_scc1 L_loop_done")
            A("s_mov_b64 exec, 1")
            A(f"ds_add_rtn_u32 v{vTk}, v{vZ}, v{vTk+1} offset:{L_CTR}")
            A("s_mov_b64 exec, -1")
            def after_qk(s=s, kb=kb, so=so, sv=sv):
                A("s_waitcnt lgkmcnt(0)")
                A(f"v_readfirstlane_b32 s33, v{vTk}")
                if self.bal:
                    A(f"s_cmp_lt_u32 s33, {self.p1}")
                    A(f"s_cbranch_scc1 L_fast{s}")
                    A(f"s_mov_b32 s92, {s}")
                    A("s_branch L_slow")
                    self.label(f"L_ret{s}")
                    A(f"s_mov_b32 s{so}, s34")
                    A(f"s_mov_b32 s{sv}, s35")
                    A(f"s_branch L_ld{s}")
                    self.label(f"L_fast{s}")
                    self.tk2off()
                    A(f"s_mov_b32 s{so}, s34")
                    self.label(f"L_ld{s}")
                else:
                    self.tk2off()
                    A("s_cmp_lt_u32 s33, s65")
                    A(f"s_cselect_b32 s{so}, s34, {hex(INV)}")
                    A(f"s_cselect_b32 s{sv}, 1, 0")
                self.loadK("v", kb, so)
                return 8
            def after_pv(vb=vb, so=so):
                self.loadV("v", vb, so)
            self.tile_body("v", kb, vb, W, W, after_qk, after_pv)
        A("s_cmp_eq_u32 s83, 0")
        A("s_cbranch_scc1 L_loop")
        C("---- backlog: startup tiles held in AGPRs")
        nch = len(self.chunks)
        labs = [self.newlabel("bk") for _ in range(nch)]
        for c in range(1, nch):
            A(f"s_cmp_eq_u32 s83, {nch - c}")
            A(f"s_cbranch_scc1 {labs[c]}")
        t = 0
        for c in range(nch):
            self.label(labs[c])
            A("s_sub_u32 s83, s83, 1")
            if c == 0:
                A(f"s_waitcnt vmcnt({8*NR})")
            for _ in range(self.chunks[c]):
                self.tile_body("a", 32 * t, 32 * t + 16, None, None, lambda: 0, lambda: None)
                t += 1
            if c == nch - 1:
                self.stamp(6)
                if not self.notail:
                    self.role_prefetch(True)
            A("s_branch L_loop")
        if self.bal:
            self.slow_path()
        self.label("L_loop_done")
        self.stamp(2)
        if self.notail:
            A("s_branch L_end")
        C("---- WG combine")
        A("s_nop 3")
        A("s_lshl_b32 s33, s28, 11")
        A(f"v_lshl_add_u32 v{vT0}, v1, 4, s33")
        A(f"ds_write_b128 v{vT0}, v[{vO}:{vO+3}] offset:{L_O}")
        A(f"ds_write_b128 v{vT0}, v[{vO+4}:{vO+7}] offset:{L_O+1024}")
        A("s_lshl_b32 s33, s28, 8")
        A(f"v_lshl_add_u32 v{vT0}, v1, 2, s33")
        A(f"ds_write_b32 v{vT0}, v{vM} offset:{L_M}")
        A(f"ds_write_b32 v{vT0}, v{vL} offset:{L_L}")
        A("s_waitcnt lgkmcnt(0)")
        A("s_barrier")
        self.stamp(11)
        A("s_cmp_ge_u32 s28, 2")
        A("s_cbranch_scc1 L_after_publish")
        m_, l_ = vQ, vQ + 4
        Ob = [vQ + 8, vQ + 12, vS, vO]
        A(f"v_lshlrev_b32 v{vT0}, 2, v1")
        for w in range(4):
            A(f"ds_read_b32 v{m_+w}, v{vT0} offset:{L_M + w*256}")
            A(f"ds_read_b32 v{l_+w}, v{vT0} offset:{L_L + w*256}")
        A("s_lshl_b32 s33, s28, 10")
        A(f"v_lshl_add_u32 v{vT0}, v1, 4, s33")
        for w in range(4):
            A(f"ds_read_b128 v[{Ob[w]}:{Ob[w]+3}], v{vT0} offset:{L_O + w*2048}")
        A("s_lshl_b32 s33, s31, 5")
        A("s_add_u32 s33, s33, s32")
        A("s_lshl_b32 s34, s33, 11")
        A("s_lshl_b32 s35, s28, 8")
        A("s_add_u32 s34, s34, s35")
        A(f"s_add_u32 s34, s34, {WS_PO}")
        A("s_waitcnt lgkmcnt(4)")
        A(f"v_max3_f32 v{vM}, v{m_}, v{m_+1}, v{m_+2}")
        A(f"v_max_f32 v{vM}, v{vM}, v{m_+3}")
        for w in range(4):
            A(f"v_sub_f32 v{m_+w}, v{m_+w}, v{vM}")
        for w in range(4):
            A(f"v_mul_f32 v{m_+w}, s62, v{m_+w}")
        for w in range(4):
            A(f"v_exp_f32 v{m_+w}, v{m_+w}")
        A("s_waitcnt lgkmcnt(0)")
        acc = vO + 4
        for r in range(4):
            A(f"v_mul_f32 v{acc+r}, v{m_}, v{Ob[0]+r}")
        for w in range(1, 4):
            for r in range(4):
                A(f"v_fmac_f32 v{acc+r}, v{m_+w}, v{Ob[w]+r}")
        for r in range(4):
            A(f"v_bfi_b32 v{acc+r}, s49, v{vTg}, v{acc+r}")
        A(f"buffer_store_dwordx4 v[{acc}:{acc+3}], v{vPA}, s[44:47], s34 offen sc1")
        A("s_cmp_lg_u32 s28, 0")
        A("s_cbranch_scc1 L_after_publish")
        A(f"v_mul_f32 v{vL}, v{m_}, v{l_}")
        for w in range(1, 4):
            A(f"v_fmac_f32 v{vL}, v{m_+w}, v{l_+w}")
        self.cross_rows_allreduce("v_add_f32", vL, vT1)
        A("s_lshl_b32 s34, s33, 6")
        A(f"s_add_u32 s34, s34, {WS_PML}")
        A(f"v_lshlrev_b32 v{vT0}, 2, v1")
        A(f"v_mov_b32 v{vM+2}, s30")
        A(f"v_mov_b32 v{vM+3}, s30")
        A("s_mov_b64 exec, 0x1111")
        A(f"buffer_store_dwordx4 v[{vM}:{vM+3}], v{vT0}, s[44:47], s34 offen sc1")
        self.exec_all()
        self.label("L_after_publish")
        self.stamp(3)
        A("s_cmp_eq_u32 s70, 0")
        A("s_cbranch_scc1 L_end")
        A("s_cmp_eq_u32 s70, 1")
        A("s_cbranch_scc1 L_roleB")
        self.role_prefetch(False)
        A("s_cmp_eq_u32 s70, 2")
        A("s_cbranch_scc1 L_roleC")
        A("s_branch L_roleE")
        self.roleB()
        self.roleC()
        self.roleE()
        self.label("L_end")
        A("s_endpgm")
        acc_off = (self.NV + 3) // 4 * 4
        na = max(32 * NS, 96)
        self.L.append('.section .rodata,"a"')
        self.L.append(".p2align 6")
        self.L.append(f".amdhsa_kernel {KN}_kernel")
        self.L.append(f"  .amdhsa_next_free_vgpr {acc_off + na}")
        self.L.append("  .amdhsa_next_free_sgpr 102")
        self.L.append(f"  .amdhsa_accum_offset {acc_off}")
        self.L.append("  .amdhsa_group_segment_fixed_size 0")
        self.L.append("  .amdhsa_kernarg_size 96")
        self.L.append("  .amdhsa_user_sgpr_count 2")
        self.L.append("  .amdhsa_user_sgpr_kernarg_segment_ptr 1")
        self.L.append("  .amdhsa_system_sgpr_workgroup_id_x 1")
        self.L.append("  .amdhsa_float_denorm_mode_32 3")
        self.L.append(".end_amdhsa_kernel")
        return "\n".join(self.L) + "\n"

    def slow_path(self):
        A, C = self.A, self.C
        NR, n0, P1, P2 = self.nr, self.n0, self.p1, self.p2
        POOL = 4096 - 32 * n0
        E = POOL / 32.0
        vG = vTk + 2
        t0, t1, t2, t3, t4, t5 = vT0, vT1, vX, vX + 1, vX + 2, vX + 3
        def gather_issue():
            A(f"v_and_b32 v{t0}, 31, v1")
            A(f"v_lshlrev_b32 v{t0}, 3, v{t0}")
            A("s_lshl_b32 s35, s31, 8")
            A(f"s_add_u32 s35, s35, {WS_T}")
            A(f"buffer_load_dwordx2 v[{vG}:{vG+1}], v{t0}, s[44:47], s35 offen sc1")
        self.label("L_slow")
        A(f"s_cmp_lg_u32 s33, {P1}")
        A("s_cbranch_scc1 L_sl1")
        C("publish progress time")
        A("s_memrealtime s[90:91]")
        A("s_lshl_b32 s35, s31, 8")
        A("s_lshl_b32 s93, s32, 3")
        A("s_add_u32 s35, s35, s93")
        A(f"s_add_u32 s35, s35, {WS_T}")
        A("s_waitcnt lgkmcnt(0)")
        A("s_sub_u32 s34, s90, s89")
        A("s_min_u32 s34, s34, 4095")
        A("s_lshl_b32 s34, s34, 20")
        A("s_and_b32 s90, s90, 0xfffff")
        A("s_or_b32 s34, s34, s90")
        A(f"v_mov_b32 v{t2}, s34")
        A(f"v_mov_b32 v{t3}, s30")
        A("s_mov_b64 exec, 1")
        A(f"buffer_store_dwordx2 v[{t2}:{t3}], v{vZ}, s[44:47], s35 offen sc1")
        A("s_mov_b64 exec, -1")
        self.label("L_sl1")
        A(f"s_cmp_lg_u32 s33, {P2}")
        A("s_cbranch_scc1 L_sl2")
        gather_issue()
        A(f"s_mov_b32 s88, {NR}")
        A("s_branch L_sl3")
        self.label("L_sl2")
        A("s_cmp_eq_u32 s88, 0")
        A("s_cbranch_scc1 L_sl3")
        A("s_sub_u32 s88, s88, 1")
        A("s_cmp_lg_u32 s88, 0")
        A("s_cbranch_scc1 L_sl3")
        A("s_mov_b32 s93, 0")
        self.label("L_alloc")
        A(f"v_cmp_ne_u32 vcc, s30, v{vG+1}")
        A("s_nop 0")
        A("s_cbranch_vccz L_alloc_ok")
        gather_issue()
        A(f"s_mov_b32 s88, {NR}")
        A("s_cmp_eq_u32 s93, 0")
        A("s_cbranch_scc1 L_sl3")
        A("s_mov_b32 s88, 0")
        A("s_waitcnt vmcnt(0)")
        A("s_add_u32 s93, s93, 1")
        A(f"s_cmp_lt_u32 s93, {POLL_MAX}")
        A("s_cbranch_scc1 L_alloc")
        self.label("L_alloc_ok")
        A(f"v_readfirstlane_b32 s34, v{vG}")
        A(f"v_lshrrev_b32 v{t1}, 20, v{vG}")
        A(f"v_cvt_f32_u32 v{t1}, v{t1}")
        A("s_nop 0")
        A(f"v_subrev_u32 v{t0}, s34, v{vG}")
        A(f"v_bfe_i32 v{t0}, v{t0}, 0, 20")
        A(f"v_cvt_f32_i32 v{t0}, v{t0}")
        A(f"v_mov_b32 v{t2}, v{t0}")
        self.row_allreduce("v_add_f32", [t1, t2])
        self.cross_rows_allreduce("v_add_f32", t1, t3, do32=False)
        self.cross_rows_allreduce("v_add_f32", t2, t3, do32=False)
        A(f"v_rcp_f32 v{t1}, v{t1}")
        A(f"v_mul_f32 v{t2}, {hex(f32bits(1.0/32))}, v{t2}")
        A(f"v_sub_f32 v{t0}, v{t0}, v{t2}")
        A(f"v_mul_f32 v{t1}, {hex(f32bits(-32.0 * P1 * self.gain))}, v{t1}")
        A(f"v_mov_b32 v{t2}, {hex(f32bits(E))}")
        A(f"v_fmac_f32 v{t2}, v{t0}, v{t1}")
        A(f"v_and_b32 v{t3}, 3, v1")
        A(f"v_and_b32 v{t4}, 31, v1")
        A(f"v_cmp_eq_u32 vcc, 1, v{t3}")
        A(f"v_cmp_gt_u32 s[90:91], 28, v{t4}")
        A(f"v_mov_b32 v{t3}, {hex(f32bits(self.biasc))}")
        A("s_and_b64 vcc, vcc, s[90:91]")
        A("s_nop 0")
        A(f"v_cndmask_b32 v{t3}, 0, v{t3}, vcc")
        A(f"v_sub_f32 v{t2}, v{t2}, v{t3}")
        A(f"v_max_f32 v{t2}, 0, v{t2}")
        for sh in (1, 2, 4, 8):
            A("s_nop 1")
            A(f"v_add_f32_dpp v{t2}, v{t2}, v{t2} row_shr:{sh} row_mask:0xf bank_mask:0xf bound_ctrl:0")
        A("s_nop 1")
        A(f"v_add_f32_dpp v{t2}, v{t2}, v{t2} row_bcast:15 row_mask:0xa bank_mask:0xf")
        A("s_nop 0")
        A(f"v_readlane_b32 s34, v{t2}, 31")
        A("s_nop 1")
        A(f"v_rcp_f32 v{t3}, s34")
        A("s_max_u32 s35, s32, 1")
        A("s_sub_u32 s35, s35, 1")
        A(f"v_mul_f32 v{t3}, {hex(f32bits(float(POOL)))}, v{t3}")
        A(f"v_mul_f32 v{t2}, v{t2}, v{t3}")
        A(f"v_rndne_f32 v{t2}, v{t2}")
        A(f"v_cvt_u32_f32 v{t2}, v{t2}")
        A(f"v_min_u32 v{t2}, {POOL}, v{t2}")
        A("s_nop 0")
        A(f"v_readlane_b32 s86, v{t2}, s32")
        A(f"v_readlane_b32 s85, v{t2}, s35")
        A("s_cmp_eq_u32 s32, 31")
        A(f"s_cselect_b32 s86, {POOL}, s86")
        A("s_cmp_eq_u32 s32, 0")
        A("s_cselect_b32 s85, 0, s85")
        A("s_sub_u32 s86, s86, s85")
        if self.amode != 7:
            A("s_lshl_b32 s85, s85, 12")
            A(f"s_add_u32 s85, s85, {32 * n0 * 4096}")
        A(f"v_mov_b32 v{t2}, s85")
        A(f"v_mov_b32 v{t3}, s86")
        A(f"ds_write_b64 v{vZ}, v[{t2}:{t3}] offset:{L_EXT}")
        A("s_mov_b32 s87, 1")
        if self.stamps:
            A(f"v_mov_b32 v{vSt}, s86")
            A(f"s_mul_i32 s100, s2, {5*64}")
            A(f"s_add_u32 s100, s100, {WS_STAMP + 4*64}")
            A(f"v_mov_b32 v{vSt+1}, s100")
            A("s_mov_b64 exec, 1")
            A(f"buffer_store_dword v{vSt}, v{vSt+1}, s[44:47], 0 offen")
            A("s_mov_b64 exec, -1")
        self.label("L_sl3")
        A(f"s_cmp_ge_u32 s33, {n0}")
        A("s_cbranch_scc1 L_ext")
        self.tk2off()
        A("s_mov_b32 s35, 1")
        A("s_branch L_slret")
        self.label("L_ext")
        A("s_cmp_lg_u32 s87, 0")
        A("s_cbranch_scc1 L_ext_ok")
        A("s_cmp_eq_u32 s88, 0")
        A("s_cbranch_scc1 L_ext_wait")
        A("s_mov_b32 s88, 0")
        A("s_mov_b32 s93, 1")
        A("s_waitcnt vmcnt(0)")
        A("s_branch L_alloc")
        self.label("L_ext_wait")
        A(f"s_mov_b32 s93, {POLL_MAX * 8}")
        self.label("L_ext_spin")
        A(f"ds_read_b64 v[{t2}:{t3}], v{vZ} offset:{L_EXT}")
        A("s_waitcnt lgkmcnt(0)")
        A(f"v_readfirstlane_b32 s85, v{t2}")
        A(f"v_readfirstlane_b32 s86, v{t3}")
        A("s_cmp_lg_u32 s86, -1")
        A("s_cbranch_scc1 L_ext_got")
        A("s_sleep 1")
        A("s_sub_u32 s93, s93, 1")
        A("s_cmp_lg_u32 s93, 0")
        A("s_cbranch_scc1 L_ext_spin")
        A("s_mov_b32 s86, 0")
        self.label("L_ext_got")
        A("s_mov_b32 s87, 1")
        self.label("L_ext_ok")
        A(f"s_sub_u32 s35, s33, {n0}")
        if self.amode == 7:
            SEG = 512 - 4 * n0
            lg = SEG.bit_length() - 1
            assert SEG == 1 << lg
            A("s_add_u32 s34, s35, s85")
            A(f"s_and_b32 s93, s34, {SEG - 1}")
            A(f"s_lshr_b32 s34, s34, {lg}")
            A("s_lshl_b32 s34, s34, 9")
            A("s_add_u32 s34, s34, s93")
            A(f"s_add_u32 s34, s34, {4 * n0}")
            A("s_lshl_b32 s34, s34, 12")
        else:
            A("s_lshl_b32 s34, s35, 12")
            A("s_add_u32 s34, s34, s85")
        A("s_cmp_lt_u32 s35, s86")
        A(f"s_cselect_b32 s34, s34, {hex(INV)}")
        A("s_cselect_b32 s35, 1, 0")
        if self.mid and not self.notail:
            A("s_cbranch_scc1 L_slret")
            A("s_cmp_lg_u32 s50, 0")
            A("s_cbranch_scc1 L_slret")
            A("s_mov_b32 s50, 1")
            self.role_prefetch("mid")
            A(f"s_mov_b32 s34, {hex(INV)}")
            A("s_mov_b32 s35, 0")
        self.label("L_slret")
        for k in range(NR - 1):
            A(f"s_cmp_eq_u32 s92, {k}")
            A(f"s_cbranch_scc1 L_ret{k}")
        A(f"s_branch L_ret{NR-1}")

    def qphase_issue(self):
        A = self.A
        t0, t1 = vT0, vT1
        R = self.QS
        W, XS, XO = R, R + 16, R + 20
        self.srd(56, 4, None, 1024)
        A(f"buffer_load_dwordx4 v[{XS}:{XS+3}], v{vVo}, s[56:59], 0 offen")
        A("s_and_b32 s33, s2, 7")
        A("s_lshl_b32 s33, s33, 5")
        A("s_lshr_b32 s34, s2, 3")
        A("s_add_u32 s84, s33, s34")
        A("s_and_b32 s33, s34, 3")
        A("s_lshl_b32 s33, s33, 2")
        A("s_add_u32 s33, s33, s28")
        A("s_lshl_b32 s35, s33, 6")
        A(f"v_lshrrev_b32 v{t0}, 3, v1")
        A(f"v_lshl_add_u32 v{t1}, v{t0}, 3, s35")
        A(f"buffer_load_dwordx2 v[{XO}:{XO+1}], v{t1}, s[56:59], 0 offen")
        A("s_lshl_b32 s33, s33, 18")
        A("s_lshr_b32 s34, s84, 2")
        A("s_lshl_b32 s34, s34, 7")
        A("s_add_u32 s34, s34, s33")
        self.srd(52, 10, 34, 31 * 8192 + 128)
        A(f"v_lshlrev_b32 v{t0}, 15, v{t0}")
        A(f"v_and_b32 v{t1}, 7, v1")
        A(f"v_lshl_add_u32 v{t0}, v{t1}, 4, v{t0}")
        for j in range(4):
            A(f"s_mov_b32 s35, {j*8192}")
            A(f"buffer_load_dwordx4 v[{W+4*j}:{W+4*j+3}], v{t0}, s[52:55], s35 offen{self.qpol}")

    def qphase_compute(self, younger, after_stores):
        A = self.A
        R = self.QS
        W, XS, XO = R, R + 16, R + 20
        XF, XN, acc = 4, 12, 16
        t0, t1 = 32, 33
        u0, u1 = 38, 39
        A(f"s_waitcnt vmcnt({younger + 4})")
        self.stamp(7)
        self.stamp(14)
        for i in range(4):
            self.unpack(XF + 2 * i, XF + 2 * i + 1, XS + i)
        for i in range(2):
            self.unpack(XN + 2 * i, XN + 2 * i + 1, XO + i)
        self.layernorm(XF, 8, t0, hex(f32bits(1.0 / 512)), Y=XN, ny=4)
        self.stamp(8)
        for j in range(4):
            A(f"s_waitcnt vmcnt({younger + 3 - j})")
            for i in range(4):
                self.unpack(u0, u1, W + 4 * j + i)
                if j == 0:
                    A(f"v_mul_f32 v{acc+2*i}, v{XN+j}, v{u0}")
                    A(f"v_mul_f32 v{acc+2*i+1}, v{XN+j}, v{u1}")
                else:
                    A(f"v_fmac_f32 v{acc+2*i}, v{XN+j}, v{u0}")
                    A(f"v_fmac_f32 v{acc+2*i+1}, v{XN+j}, v{u1}")
        self.stamp(15)
        A("s_nop 1")
        for i in range(4):
            A(f"v_permlane32_swap_b32 v{acc+i}, v{acc+i+4}")
        A("s_nop 0")
        for i in range(4):
            A(f"v_add_f32 v{acc+i}, v{acc+i}, v{acc+i+4}")
        A("s_nop 1")
        for i in range(2):
            A(f"v_permlane16_swap_b32 v{acc+i}, v{acc+i+2}")
        A("s_nop 0")
        for i in range(2):
            A(f"v_add_f32 v{acc+i}, v{acc+i}, v{acc+i+2}")
        A("s_lshl_b32 s35, s28, 8")
        A(f"v_and_b32 v{t0}, 7, v1")
        self.dpp("v_add_f32", acc, acc, acc, "row_ror:8")
        self.dpp("v_add_f32", acc + 1, acc + 1, acc + 1, "row_ror:8")
        A(f"v_lshlrev_b32 v{t0}, 5, v{t0}")
        A(f"v_lshrrev_b32 v{t1}, 4, v1")
        A(f"v_lshl_add_u32 v{t0}, v{t1}, 3, v{t0}")
        A(f"v_add_u32 v{t0}, s35, v{t0}")
        self.exec_mask(0x00ff00ff00ff00ff)
        A(f"ds_write_b64 v{t0}, v[{acc}:{acc+1}] offset:{L_QP}")
        self.exec_all()
        A("s_waitcnt lgkmcnt(0)")
        A("s_mul_i32 s30, s29, 0x9e3779b1")
        A("s_add_u32 s30, s30, 0x7f4a7c15")
        A("s_add_u32 s71, s29, 1")
        A("s_and_b32 s71, s71, s49")
        A("s_barrier")
        self.stamp(9)

    def q_publish(self):
        A = self.A
        sk = self.newlabel("nopub")
        P = 4
        A("s_cmp_lg_u32 s28, 0")
        A(f"s_cbranch_scc1 {sk}")
        A(f"v_lshlrev_b32 v{vT0}, 2, v1")
        for w in range(4):
            A(f"ds_read_b32 v{P+2*w}, v{vT0} offset:{L_QP + 256*w}")
        A(f"v_lshlrev_b32 v{vT0}, 3, v1")
        A("s_lshl_b32 s33, s84, 9")
        A(f"s_add_u32 s33, s33, {WS_Q1}")
        A(f"v_mov_b32 v{P+1}, s30")
        A("s_waitcnt lgkmcnt(0)")
        A(f"v_add_f32 v{P}, v{P}, v{P+2}")
        A(f"v_add_f32 v{P+4}, v{P+4}, v{P+6}")
        A(f"v_add_f32 v{P}, v{P}, v{P+4}")
        A(f"buffer_store_dwordx2 v[{P}:{P+1}], v{vT0}, s[44:47], s33 offen sc1")
        A(f"s_and_b32 s73, s32, {QR-1}")
        A("s_lshl_b32 s73, s73, 14")
        A("s_lshl_b32 s33, s31, 11")
        A("s_add_u32 s73, s73, s33")
        A(f"s_add_u32 s73, s73, {WS_Q}")
        A("s_and_b32 s72, s84, -4")
        A("s_lshl_b32 s72, s72, 9")
        A("s_and_b32 s33, s84, 3")
        A("s_lshl_b32 s33, s33, 7")
        A("s_add_u32 s72, s72, s33")
        A(f"s_add_u32 s72, s72, {WS_Q1}")
        self.label(sk)

    def s2_issue(self):
        self.A(f"buffer_load_dwordx2 v[8:9], v{vIC}, s[44:47], s72 offen sc1")

    def s2_check(self, fail):
        A = self.A
        A(f"v_cmp_ne_u32 vcc, s30, v9")
        A("s_nop 0")
        A(f"s_cbranch_vccnz {fail}")
        self.cross_rows_allreduce("v_add_f32", 8, vT1)
        A(f"v_and_b32 v{vT0}, 15, v1")
        A(f"v_lshlrev_b32 v{vT0}, 2, v{vT0}")
        A(f"v_mov_b32_dpp v{vT1}, v8 quad_perm:[1,0,3,2] row_mask:0xf bank_mask:0xf")
        A(f"v_lshrrev_b32 v10, 4, v1")
        A(f"v_lshl_add_u32 v{vT0}, v10, 14, v{vT0}")
        A(f"v_cvt_pk_bf16_f32 v8, v8, v{vT1}")
        A("s_lshl_b32 s33, s84, 6")
        A(f"s_add_u32 s33, s33, {WS_Q}")
        self.exec_mask(0x5555555555555555)
        A(f"buffer_store_dwordx2 v[8:9], v{vT0}, s[44:47], s33 offen sc1")
        self.exec_all()
        A("s_mov_b32 s82, 1")
        self.stamp(10)

    def q_poll_issue(self):
        g = 12
        self.A(f"buffer_load_dwordx4 v[{g}:{g+3}], v{vNM}, s[44:47], s73 offen sc1")
        self.A(f"buffer_load_dwordx4 v[{g+4}:{g+7}], v{vNM}, s[44:47], s73 offen offset:16 sc1")

    def q_check(self, fail):
        A = self.A
        g = 12
        A(f"v_xor_b32 v{vT0}, s30, v{g+1}")
        A(f"v_xor_b32 v{vT1}, s30, v{g+3}")
        A(f"v_or_b32 v{vT0}, v{vT0}, v{vT1}")
        A(f"v_xor_b32 v{vT1}, s30, v{g+5}")
        A(f"v_or_b32 v{vT0}, v{vT0}, v{vT1}")
        A(f"v_xor_b32 v{vT1}, s30, v{g+7}")
        A(f"v_or_b32 v{vT0}, v{vT0}, v{vT1}")
        A(f"v_cmp_ne_u32 vcc, 0, v{vT0}")
        A("s_nop 0")
        A(f"s_cbranch_vccnz {fail}")
        A(f"v_mov_b32 v{g+1}, v{g+2}")
        A(f"v_mov_b32 v{g+2}, v{g+4}")
        A(f"v_mov_b32 v{g+3}, v{g+6}")
        A(f"ds_write_b128 v{vVo}, v[{g}:{g+3}] offset:{L_Q}")
        A(f"ds_write_b32 v{vZ}, v{vTk+1} offset:{L_QF}")
        A("s_mov_b32 s82, 2")
        self.stamp(12)

    def q_poll_step(self, first):
        A = self.A
        sk = self.newlabel("qp_skip")
        st1 = self.newlabel("qp_st1")
        a0 = self.newlabel("qp_a0")
        a1 = self.newlabel("qp_a1")
        A("s_cmp_lg_u32 s28, 0")
        A(f"s_cbranch_scc1 {sk}")
        if first:
            self.s2_issue()
        else:
            A("s_cmp_eq_u32 s82, 2")
            A(f"s_cbranch_scc1 {sk}")
            A("s_cmp_eq_u32 s82, 1")
            A(f"s_cbranch_scc1 {st1}")
            self.s2_check(a0)
            A(f"s_branch {a1}")
            self.label(a0)
            self.s2_issue()
            A(f"s_branch {sk}")
            self.label(st1)
            self.q_check(a1)
            A(f"s_branch {sk}")
            self.label(a1)
            self.q_poll_issue()
        self.label(sk)

    def q_poll_final(self):
        A = self.A
        sk = self.newlabel("qf_skip")
        lp = self.newlabel("qf_loop")
        st1 = self.newlabel("qf_st1")
        a0 = self.newlabel("qf_a0")
        a1 = self.newlabel("qf_a1")
        nx = self.newlabel("qf_nx")
        A("s_cmp_lg_u32 s28, 0")
        A(f"s_cbranch_scc1 {sk}")
        A(f"s_mov_b32 s68, {POLL_MAX}")
        self.label(lp)
        A("s_cmp_eq_u32 s82, 2")
        A(f"s_cbranch_scc1 {sk}")
        A("s_waitcnt vmcnt(0)")
        A("s_cmp_eq_u32 s82, 1")
        A(f"s_cbranch_scc1 {st1}")
        self.s2_check(a0)
        A(f"s_branch {a1}")
        self.label(a0)
        self.s2_issue()
        A(f"s_branch {nx}")
        self.label(st1)
        self.q_check(a1)
        A(f"s_branch {sk}")
        self.label(a1)
        self.q_poll_issue()
        self.label(nx)
        A("s_sub_u32 s68, s68, 1")
        A("s_cmp_lg_u32 s68, 0")
        A(f"s_cbranch_scc1 {lp}")
        self.label(sk)
        A("s_waitcnt lgkmcnt(0)")

    def mismatch(self, vt, regs):
        A = self.A
        A(f"v_xor_b32 v{vt}, s71, v{regs[0]}")
        for r in regs[1:]:
            A(f"v_bitop3_b32 v{vt}, v{vt}, v{r}, s71 bitop3:0xf6")
        A(f"v_and_b32 v{vt}, s49, v{vt}")

    def role_prefetch(self, early):
        A, C = self.A, self.C
        t0, t1 = vT0, vT1
        def when(chs):
            if any(c in self.early for c in chs): return True
            if any(c in self.mid for c in chs): return "mid"
            return False
        doB = when("B") == early
        doG = when("CG") == early
        doD = when("CD") == early
        if not (doB or doG or doD):
            return
        done = self.newlabel("pf_done")
        notB = self.newlabel("pf_notB")
        A("s_cmp_lg_u32 s70, 1")
        A(f"s_cbranch_scc1 {notB}")
        if doB:
            C("role B weights: head = ga*4 + (sub&2) + (w>>1), ph = w&1, cb = xcd")
            A("s_lshl_b32 s33, s31, 2")
            A("s_and_b32 s34, s32, 2")
            A("s_add_u32 s33, s33, s34")
            A("s_lshr_b32 s34, s28, 1")
            A("s_add_u32 s33, s33, s34")
            A("s_lshl_b32 s33, s33, 17")
            A("s_and_b32 s34, s28, 1")
            A("s_lshl_b32 s34, s34, 12")
            A("s_add_u32 s33, s33, s34")
            A("s_lshr_b32 s34, s32, 2")
            A("s_lshl_b32 s34, s34, 7")
            A("s_add_u32 s33, s33, s34")
            self.srd(52, 12, 33, 123 * 1024 + 128)
            A(f"v_lshrrev_b32 v{t0}, 4, v1")
            A(f"v_lshlrev_b32 v{t0}, 15, v{t0}")
            A(f"v_bfe_u32 v{t1}, v1, 3, 1")
            A(f"v_lshl_add_u32 v{t0}, v{t1}, 11, v{t0}")
            A(f"v_and_b32 v{t1}, 7, v1")
            A(f"v_lshl_add_u32 v{t0}, v{t1}, 4, v{t0}")
            for j in range(8):
                off = (8 * (j & 3) + (j >> 2)) * 1024
                so, io = off & ~4095, off & 4095
                A(f"s_mov_b32 s34, {so}")
                A(f"buffer_load_dwordx4 a[{4*j}:{4*j+3}], v{t0}, s[52:55], s34 offen offset:{io} nt")
        A(f"s_branch {done}")
        self.label(notB)
        A("s_cmp_lg_u32 s70, 2")
        A(f"s_cbranch_scc1 {done}")
        if doG:
            C("role C gate/up weights")
            A("s_lshl_b32 s34, s3, 6")
            A(f"s_mul_i32 s35, s28, {128*3584}")
            A("s_add_u32 s34, s34, s35")
            self.srd(52, 16, 34, 128 * 3584 - 3584 + 64)
            self.srd(56, 18, 34, 128 * 3584 - 3584 + 64)
            A(f"v_lshrrev_b32 v{t0}, 2, v1")
            A(f"v_mul_u32_u24 v{t0}, {8*3584}, v{t0}")
            A(f"v_and_b32 v{t1}, 3, v1")
            A(f"v_lshl_add_u32 v{t0}, v{t1}, 4, v{t0}")
            for j in range(8):
                A(f"s_mov_b32 s35, {j*3584}")
                A(f"buffer_load_dwordx4 a[{4*j}:{4*j+3}], v{t0}, s[52:55], s35 offen{self.gpol}")
                A(f"buffer_load_dwordx4 a[{32+4*j}:{32+4*j+3}], v{t0}, s[56:59], s35 offen{self.gpol}")
        if doD:
            C("role C down weights")
            A("s_lshl_b32 s34, s3, 15")
            A("s_lshl_b32 s35, s28, 8")
            A("s_add_u32 s34, s34, s35")
            self.srd(52, 20, 34, 32768 - 768)
            A(f"v_lshrrev_b32 v{t0}, 4, v1")
            A(f"v_lshlrev_b32 v{t0}, 13, v{t0}")
            A(f"v_and_b32 v{t1}, 15, v1")
            A(f"v_lshl_add_u32 v{t0}, v{t1}, 4, v{t0}")
            for j in range(8):
                off = j * 1024
                so, io = off & ~4095, off & 4095
                A(f"s_mov_b32 s35, {so}")
                A(f"buffer_load_dwordx4 a[{64+4*j}:{64+4*j+3}], v{t0}, s[52:55], s35 offen offset:{io} nt")
        self.label(done)

    def emasks(self, mk, t0, t1, t2):
        A = self.A
        A(f"v_and_b32 v{t0}, 1, v1")
        A(f"v_mov_b32 v{t1}, 0xffff")
        A(f"v_mov_b32 v{t2}, s60")
        A(f"v_cmp_eq_u32 vcc, 1, v{t0}")
        A("s_nop 1")
        A(f"v_cndmask_b32 v{t1}, v{t1}, v{t2}, vcc")
        A(f"v_bfe_u32 v{t0}, v1, 1, 2")
        for r in range(4):
            A(f"v_cmp_eq_u32 vcc, {r}, v{t0}")
            A("s_nop 1")
            A(f"v_cndmask_b32 v{mk+r}, 0, v{t1}, vcc")

    def red8_rows(self, op, regs, t):
        for ctrl in ("quad_perm:[1,0,3,2]", "quad_perm:[2,3,0,1]", "row_half_mirror"):
            self.A("s_nop 1")
            for r in regs:
                self.dpp(op, r, r, r, ctrl)
        for r in regs:
            self.cross_rows_allreduce(op, r, t)

    def roleB(self):
        A, C = self.A, self.C
        self.label("L_roleB")
        G = RB
        vML = 4
        vA0, vA1 = 2, 3
        t0, t1, t2, t3 = 8, 9, 10, 11
        mk, acc, X, D, wj = 12, 16, 20, 28, 32
        aW, aR, aD = 40, 41, 42
        PM = 76
        C("hl = (sub&2) + (w>>1) ; ph = w&1")
        A("s_and_b32 s33, s32, 2")
        A("s_lshr_b32 s34, s28, 1")
        A("s_add_u32 s33, s33, s34")
        A("s_lshl_b32 s34, s31, 16")
        A("s_lshl_b32 s35, s33, 9")
        A("s_add_u32 s34, s34, s35")
        A("s_and_b32 s35, s28, 1")
        A("s_lshl_b32 s35, s35, 8")
        A("s_add_u32 s34, s34, s35")
        A(f"s_add_u32 s34, s34, {WS_PO}")
        A(f"v_lshrrev_b32 v{t0}, 4, v1")
        A(f"v_lshlrev_b32 v{t2}, 11, v{t0}")
        A(f"v_and_b32 v{t1}, 15, v1")
        A(f"v_lshl_add_u32 v{vA0}, v{t1}, 4, v{t2}")
        A(f"v_add_u32 v{vA0}, s34, v{vA0}")
        A("s_lshl_b32 s34, s31, 11")
        A("s_lshl_b32 s35, s33, 4")
        A("s_add_u32 s34, s34, s35")
        A(f"s_add_u32 s34, s34, {WS_PML}")
        A(f"v_and_b32 v{t1}, 7, v1")
        A(f"v_lshlrev_b32 v{t1}, 8, v{t1}")
        A(f"v_lshl_add_u32 v{vA1}, v{t0}, 6, v{t1}")
        A(f"v_add_u32 v{vA1}, s34, v{vA1}")
        lp = self.newlabel("B_round")
        dn = self.newlabel("B_done")
        first = self.newlabel("B_first")
        for j in range(8):
            A(f"s_mov_b64 s[{PM+2*j}:{PM+2*j+1}], -1")
        A("s_mov_b64 s[66:67], -1")
        A(f"s_mov_b32 s68, {POLL_MAX}")
        A("s_mov_b32 s93, 1")
        self.label(lp)
        noml = self.newlabel("B_noml")
        A("s_mov_b64 exec, s[66:67]")
        A(f"s_cbranch_execz {noml}")
        A(f"buffer_load_dwordx4 v[{vML}:{vML+3}], v{vA1}, s[44:47], 0 offen sc1")
        self.label(noml)
        for j in range(8):
            sk = self.newlabel("B_sk")
            A(f"s_mov_b64 exec, s[{PM+2*j}:{PM+2*j+1}]")
            A(f"s_cbranch_execz {sk}")
            A(f"s_mov_b32 s35, {j*8192}")
            A(f"buffer_load_dwordx4 v[{G+4*j}:{G+4*j+3}], v{vA0}, s[44:47], s35 offen sc1")
            self.label(sk)
        self.exec_all()
        A("s_cmp_eq_u32 s93, 0")
        A(f"s_cbranch_scc1 {first}")
        A("s_mov_b32 s93, 0")
        lateB = "B" not in self.early and "B" not in self.mid
        if lateB:
            self.role_prefetch(False)
        self.emasks(mk, t0, t1, t2)
        A("s_lshl_b32 s34, s28, 8")
        A(f"v_and_b32 v{t0}, 15, v1")
        A(f"v_lshlrev_b32 v{t0}, 4, v{t0}")
        A(f"v_lshrrev_b32 v{t1}, 4, v1")
        A(f"v_lshl_add_u32 v{t0}, v{t1}, 2, v{t0}")
        A(f"v_add_u32 v{aW}, s34, v{t0}")
        A(f"v_lshrrev_b32 v{t0}, 3, v1")
        A(f"v_lshlrev_b32 v{t0}, 5, v{t0}")
        A(f"v_add_u32 v{aR}, s34, v{t0}")
        A("s_lshl_b32 s34, s28, 9")
        A(f"v_lshrrev_b32 v{t0}, 5, v1")
        A(f"v_lshlrev_b32 v{t0}, 8, v{t0}")
        A(f"v_bfe_u32 v{t1}, v1, 4, 1")
        A(f"v_lshl_add_u32 v{t0}, v{t1}, 7, v{t0}")
        A(f"v_and_b32 v{t1}, 7, v1")
        A(f"v_lshl_add_u32 v{t0}, v{t1}, 2, v{t0}")
        A(f"v_add_u32 v{aD}, s34, v{t0}")
        A("s_lshl_b32 s94, s31, 1")
        A("s_bfe_u32 s35, s32, 0x10001")
        A("s_add_u32 s94, s94, s35")
        A("s_lshl_b32 s94, s94, 11")
        A("s_lshr_b32 s35, s32, 2")
        A("s_lshl_b32 s35, s35, 8")
        A("s_add_u32 s94, s94, s35")
        A(f"s_add_u32 s94, s94, {WS_HP}")
        w1 = self.newlabel("B_w1")
        A(f"s_waitcnt vmcnt({8 if lateB else 0})")
        A(f"s_branch {w1}")
        self.label(first)
        A("s_waitcnt vmcnt(0)")
        self.label(w1)
        A(f"v_xor_b32 v{t0}, s30, v{vML+2}")
        A(f"v_bitop3_b32 v{t0}, v{t0}, v{vML+3}, s30 bitop3:0xf6")
        A(f"v_cmp_ne_u32 s[66:67], 0, v{t0}")
        A("s_mov_b64 s[96:97], 0")
        for j in range(8):
            sk = self.newlabel("B_ck")
            A(f"s_mov_b64 exec, s[{PM+2*j}:{PM+2*j+1}]")
            A(f"s_cbranch_execz {sk}")
            self.mismatch(t0, list(range(G + 4 * j, G + 4 * j + 4)))
            A(f"v_cmp_ne_u32 s[{PM+2*j}:{PM+2*j+1}], 0, v{t0}")
            A(f"s_or_b64 s[96:97], s[96:97], s[{PM+2*j}:{PM+2*j+1}]")
            self.label(sk)
        self.exec_all()
        A("s_or_b64 s[96:97], s[96:97], s[66:67]")
        A(f"s_cbranch_scc0 {dn}")
        A("s_sub_u32 s68, s68, 1")
        A("s_cmp_lg_u32 s68, 0")
        A(f"s_cbranch_scc1 {lp}")
        self.label(dn)
        self.stamp(4)
        A(f"v_mov_b32 v{t0}, v{vML}")
        self.red8_rows("v_max_f32", [t0], t1)
        A(f"v_sub_f32 v{t0}, v{vML}, v{t0}")
        A(f"v_mul_f32 v{t0}, s62, v{t0}")
        A(f"v_exp_f32 v{t0}, v{t0}")
        A("s_nop 0")
        A(f"v_mul_f32 v{t2}, v{t0}, v{vML+1}")
        steps = [("dpp", "quad_perm:[1,0,3,2]"), ("dpp", "quad_perm:[2,3,0,1]"), ("dpp", "row_half_mirror"),
                 ("mov", None), ("sw", "v_permlane32_swap_b32"), ("mov2", None), ("sw", "v_permlane16_swap_b32"), ("fin", None)]
        for j in range(8):
            for r in range(4):
                op = "v_mul_f32" if j == 0 else "v_fmac_f32"
                A(f"{op}_dpp v{acc+r}, v{t0}, v{G+4*j+r} row_newbcast:{j} row_mask:0xf bank_mask:0xf")
            k, c = steps[j]
            if k == "dpp":
                self.dpp("v_add_f32", t2, t2, t2, c)
            elif k == "mov":
                A(f"v_mov_b32 v{t3}, v{t2}")
            elif k == "sw":
                A(f"{c} v{t2}, v{t3}")
            elif k == "mov2":
                A(f"v_add_f32 v{t2}, v{t2}, v{t3}")
                A(f"v_mov_b32 v{t3}, v{t2}")
            else:
                A(f"v_add_f32 v{t2}, v{t2}, v{t3}")
        A(f"v_rcp_f32 v{t2}, v{t2}")
        A(f"v_permlane32_swap_b32 v{acc}, v{acc+2}")
        A(f"v_permlane32_swap_b32 v{acc+1}, v{acc+3}")
        A("s_nop 0")
        A(f"v_add_f32 v{acc}, v{acc}, v{acc+2}")
        A(f"v_add_f32 v{acc+1}, v{acc+1}, v{acc+3}")
        A("s_nop 1")
        A(f"v_permlane16_swap_b32 v{acc}, v{acc+1}")
        A("s_nop 0")
        A(f"v_add_f32 v{acc}, v{acc}, v{acc+1}")
        A(f"v_mul_f32 v{acc}, v{acc}, v{t2}")
        A(f"v_cvt_pk_bf16_f32 v{acc}, v{acc}, v{acc}")
        A(f"ds_write_b32 v{aW}, v{acc} offset:{L_W}")
        for i in range(2):
            A(f"ds_read_b128 v[{wj+4*i}:{wj+4*i+3}], v{aR} offset:{L_W + 16*i}")
        A("s_waitcnt vmcnt(0) lgkmcnt(1)")
        for r in range(4):
            A(f"v_and_b32 v{X+r}, v{mk+r}, v{wj}")
        for j in range(8):
            x = X + 4 * (j & 1)
            if j < 7:
                if j + 1 == 4:
                    A("s_waitcnt lgkmcnt(0)")
                xn = X + 4 * ((j + 1) & 1)
                for r in range(4):
                    A(f"v_and_b32 v{xn+r}, v{mk+r}, v{wj+j+1}")
            else:
                A("s_nop 1")
            c = "0" if j == 0 else f"v[{D}:{D+3}]"
            A(f"v_mfma_f32_16x16x32_bf16 v[{D}:{D+3}], a[{4*j}:{4*j+3}], v[{x}:{x+3}], {c}")
        A(f"v_lshlrev_b32 v{t0}, 2, v1")
        self.exec_mask(0xff00ff0000ff00ff)
        A("s_nop 4")
        for r in range(4):
            A(f"ds_write_b32 v{aD}, v{D+r} offset:{L_R + 32*r}")
        self.exec_all()
        A("s_waitcnt lgkmcnt(0)")
        A("s_barrier")
        A("s_cmp_lg_u32 s28, 0")
        A("s_cbranch_scc1 L_end")
        for i in range(8):
            A(f"ds_read_b32 v{wj+i}, v{t0} offset:{L_R + 256*i}")
        A("s_waitcnt lgkmcnt(0)")
        for i in range(2):
            A(f"v_pk_add_f32 v[{wj+4*i}:{wj+4*i+1}], v[{wj+4*i}:{wj+4*i+1}], v[{wj+4*i+2}:{wj+4*i+3}]")
        A(f"v_pk_add_f32 v[{wj}:{wj+1}], v[{wj}:{wj+1}], v[{wj+4}:{wj+5}]")
        A(f"v_add_f32 v{wj}, v{wj}, v{wj+1}")
        A(f"v_bfi_b32 v{wj}, s49, v{vTg}, v{wj}")
        A(f"buffer_store_dword v{wj}, v{t0}, s[44:47], s94 offen sc1")
        self.stamp(5)
        A("s_branch L_end")

    def roleC(self):
        A, C = self.A, self.C
        self.label("L_roleC")
        G = RB
        H = RB + 32
        Z = RB + 36
        vA0, xr = 2, 3
        t0, t1, t2, t3 = 4, 5, 6, 7
        sel, mk, P, X, D = 8, 12, 16, 20, 28
        aG, aS, aO = 44, 45, 46
        C("thread t -> columns 2t,2t+1")
        A("s_lshl_b32 s33, s28, 9")
        A(f"v_lshl_add_u32 v{vA0}, v1, 3, s33")
        A(f"v_lshrrev_b32 v{t0}, 1, v{vA0}")
        self.srd(56, 4, None, 1024)
        A(f"buffer_load_dword v{xr}, v{t0}, s[56:59], 0 offen")
        A(f"v_lshrrev_b32 v{t0}, 1, v1")
        A(f"v_lshlrev_b32 v{t0}, 4, v{t0}")
        A(f"v_and_b32 v{t1}, 1, v1")
        A(f"v_lshl_add_u32 v{t0}, v{t1}, 14, v{t0}")
        A(f"s_add_u32 s33, s33, {WS_HP}")
        A(f"v_add_u32 v{vA0}, s33, v{t0}")
        A(f"v_cmp_eq_u32 s[92:93], 1, v{t1}")
        self.emasks(mk, t0, t1, t2)
        A(f"v_and_b32 v{t0}, 3, v1")
        vals = {0: (0x0c0c0100, 0x0c0c0302), 1: (0x01000c0c, 0x03020c0c)}
        for i in range(4):
            A(f"v_mov_b32 v{sel+i}, 0x0c0c0c0c")
        for e in range(4):
            A(f"v_cmp_eq_u32 vcc, {e}, v{t0}")
            base = sel + (0 if e < 2 else 2)
            A(f"v_mov_b32 v{t1}, {hex(vals[e & 1][0])}")
            A(f"v_mov_b32 v{t2}, {hex(vals[e & 1][1])}")
            A(f"v_cndmask_b32 v{base}, v{base}, v{t1}, vcc")
            A(f"v_cndmask_b32 v{base+1}, v{base+1}, v{t2}, vcc")
        A("s_lshl_b32 s34, s28, 4")
        A(f"v_and_b32 v{t0}, 3, v1")
        A(f"v_lshlrev_b32 v{t0}, 6, v{t0}")
        A(f"v_lshrrev_b32 v{t1}, 4, v1")
        A(f"v_lshl_add_u32 v{t0}, v{t1}, 2, v{t0}")
        A(f"v_add_u32 v{aG}, s34, v{t0}")
        A(f"v_bfe_u32 v{t0}, v1, 3, 1")
        A(f"v_lshlrev_b32 v{t0}, 11, v{t0}")
        A(f"v_lshl_add_u32 v{t0}, v{t1}, 9, v{t0}")
        A(f"v_and_b32 v{t2}, 7, v1")
        A(f"v_lshl_add_u32 v{aS}, v{t2}, 6, v{t0}")
        A(f"v_lshlrev_b32 v{t0}, 7, v{t1}")
        A(f"v_lshl_add_u32 v{aO}, v{t2}, 4, v{t0}")
        A("s_lshl_b32 s94, s3, 11")
        A("s_lshl_b32 s34, s28, 9")
        A("s_add_u32 s94, s94, s34")
        A(f"s_add_u32 s94, s94, {WS_OP}")
        A("s_lshl_b32 s95, s28, 3")
        A(f"v_mov_b32 v{t3}, s95")
        if self.cthr < 16:
            C("phase 1: light poll, lane k<16 reads one dword of partial k")
            p1 = self.newlabel("C_p1"); p1d = self.newlabel("C_p1d")
            A(f"v_lshlrev_b32 v{t2}, 11, v1")
            A(f"v_add_u32 v{t2}, s33, v{t2}")
            A(f"s_mov_b32 s68, {POLL_MAX}")
            A("s_mov_b64 exec, 0xffff")
            self.label(p1)
            A(f"buffer_load_dword v{t0}, v{t2}, s[44:47], 0 offen sc1")
            A("s_waitcnt vmcnt(0)")
            self.mismatch(t1, [t0])
            A(f"v_cmp_ne_u32 vcc, 0, v{t1}")
            A("s_sub_u32 s68, s68, 1")
            A("s_cmp_eq_u32 s68, 0")
            A(f"s_cbranch_scc1 {p1d}")
            A("s_bcnt1_i32_b64 s96, vcc")
            A(f"s_cmp_le_u32 s96, {self.cthr}")
            A(f"s_cbranch_scc1 {p1d}")
            A("s_sleep 2")
            A(f"s_branch {p1}")
            self.label(p1d)
        PM = 76
        lp = self.newlabel("C_round"); dn = self.newlabel("C_done")
        for j in range(8):
            A(f"s_mov_b64 s[{PM+2*j}:{PM+2*j+1}], -1")
        A(f"s_mov_b32 s68, {POLL_MAX}")
        self.label(lp)
        for j in range(8):
            sk = self.newlabel("C_sk")
            A(f"s_mov_b64 exec, s[{PM+2*j}:{PM+2*j+1}]")
            A(f"s_cbranch_execz {sk}")
            so, io = (j * 2048) & ~4095, (j * 2048) & 4095
            A(f"s_mov_b32 s35, {so}")
            A(f"buffer_load_dwordx4 v[{G+4*j}:{G+4*j+3}], v{vA0}, s[44:47], s35 offen offset:{io} sc1")
            self.label(sk)
        A("s_mov_b64 s[96:97], 0")
        A("s_waitcnt vmcnt(0)")
        for j in range(8):
            sk = self.newlabel("C_ck")
            A(f"s_mov_b64 exec, s[{PM+2*j}:{PM+2*j+1}]")
            A(f"s_cbranch_execz {sk}")
            self.mismatch(t0, list(range(G + 4 * j, G + 4 * j + 4)))
            A(f"v_cmp_ne_u32 s[{PM+2*j}:{PM+2*j+1}], 0, v{t0}")
            A(f"s_or_b64 s[96:97], s[96:97], s[{PM+2*j}:{PM+2*j+1}]")
            self.label(sk)
        self.exec_all()
        A("s_cmp_eq_u64 s[96:97], 0")
        A(f"s_cbranch_scc1 {dn}")
        if self.csleep:
            A(f"s_sleep {self.csleep}")
        A("s_sub_u32 s68, s68, 1")
        A("s_cmp_lg_u32 s68, 0")
        A(f"s_cbranch_scc1 {lp}")
        self.label(dn)
        self.stamp(4)
        st = 1
        while st < 8:
            for k in range(0, 8, 2 * st):
                for h in range(2):
                    a, b = G + 4 * k + 2 * h, G + 4 * (k + st) + 2 * h
                    A(f"v_pk_add_f32 v[{a}:{a+1}], v[{a}:{a+1}], v[{b}:{b+1}]")
            st *= 2
        for i in range(2):
            A(f"v_cndmask_b32 v{G+4+i}, v{G+2+i}, v{G+i}, s[92:93]")
        for i in range(2):
            A(f"v_cndmask_b32 v{G+i}, v{G+i}, v{G+2+i}, s[92:93]")
        for i in range(2):
            A(f"v_add_f32_dpp v{G+i}, v{G+4+i}, v{G+i} quad_perm:[1,0,3,2] row_mask:0xf bank_mask:0xf")
        self.unpack(H, H + 1, xr)
        A(f"v_cvt_pk_bf16_f32 v{t0}, v{G}, v{G+1}")
        self.unpack(G, G + 1, t0)
        A(f"v_pk_add_f32 v[{H}:{H+1}], v[{H}:{H+1}], v[{G}:{G+1}]")
        A(f"v_cvt_pk_bf16_f32 v{t0}, v{H}, v{H+1}")
        self.unpack(H, H + 1, t0)
        A("s_nop 0")
        A(f"v_readfirstlane_b32 s33, v{H}")
        A("s_nop 1")
        A(f"v_subrev_f32 v{t0}, s33, v{H}")
        A(f"v_subrev_f32 v{t1}, s33, v{H+1}")
        A(f"v_add_f32 v{Z}, v{t0}, v{t1}")
        A(f"v_mul_f32 v{Z+1}, v{t0}, v{t0}")
        A(f"v_fmac_f32 v{Z+1}, v{t1}, v{t1}")
        self.row_allreduce("v_add_f32", [Z, Z + 1])
        A("s_nop 1")
        A(f"v_permlane32_swap_b32 v{Z}, v{Z+1}")
        A("s_nop 0")
        A(f"v_add_f32 v{Z}, v{Z}, v{Z+1}")
        self.cross_rows_allreduce("v_add_f32", Z, t0, do32=False)
        A("s_nop 0")
        A(f"v_readlane_b32 s34, v{Z}, 0")
        A(f"v_readlane_b32 s35, v{Z}, 32")
        A(f"v_mov_b32 v{t0}, {hex(f32bits(1.0/128))}")
        A("s_nop 0")
        A(f"v_mul_f32 v{t0}, s34, v{t0}")
        A(f"v_mov_b32 v{Z+1}, s35")
        A(f"v_add_f32 v{Z}, s33, v{t0}")
        A(f"v_fma_f32 v{Z+1}, -v{t0}, s34, v{Z+1}")
        A("s_mov_b64 exec, 1")
        A(f"ds_write_b64 v{t3}, v[{Z}:{Z+1}] offset:{L_R}")
        self.exec_all()
        A("s_waitcnt lgkmcnt(0)")
        A("s_barrier")
        A(f"ds_read_b128 v[{Z}:{Z+3}], v{vZ} offset:{L_R}")
        A(f"ds_read_b128 v[{Z+4}:{Z+7}], v{vZ} offset:{L_R+16}")
        A("s_waitcnt lgkmcnt(0)")
        A(f"v_pk_add_f32 v[{Z+8}:{Z+9}], v[{Z}:{Z+1}], v[{Z+2}:{Z+3}]")
        A(f"v_pk_add_f32 v[{Z+10}:{Z+11}], v[{Z+4}:{Z+5}], v[{Z+6}:{Z+7}]")
        A(f"v_pk_add_f32 v[{Z+8}:{Z+9}], v[{Z+8}:{Z+9}], v[{Z+10}:{Z+11}]")
        A(f"v_mul_f32 v{t0}, 0.25, v{Z+8}")
        for w in range(4):
            A(f"v_sub_f32 v{Z+2*w}, v{Z+2*w}, v{t0}")
        A(f"v_mul_f32 v{t1}, v{Z}, v{Z}")
        for w in range(1, 4):
            A(f"v_fmac_f32 v{t1}, v{Z+2*w}, v{Z+2*w}")
        A(f"v_mul_f32 v{t2}, {hex(f32bits(1.0/512))}, v{Z+9}")
        A(f"v_fmac_f32 v{t2}, 0.25, v{t1}")
        A(f"v_cvt_pk_bf16_f32 v{t1}, v{t0}, v{t2}")
        self.unpack(t0, t2, t1)
        A(f"v_add_f32 v{t2}, {hex(f32bits(1e-5))}, v{t2}")
        A(f"v_sub_f32 v{H}, v{H}, v{t0}")
        self.bf16_round1(t2, t2)
        A(f"v_sub_f32 v{H+1}, v{H+1}, v{t0}")
        A(f"v_sqrt_f32 v{t2}, v{t2}")
        A(f"v_cvt_pk_bf16_f32 v{t1}, v{H}, v{H+1}")
        self.bf16_round1(t2, t2)
        self.unpack(H, H + 1, t1)
        A(f"v_rcp_f32 v{t3}, v{t2}")
        A("s_nop 0")
        for i in range(2):
            A(f"v_mul_f32 v{Z+i}, v{H+i}, v{t3}")
        for i in range(2):
            A(f"v_fma_f32 v{H+i}, -v{Z+i}, v{t2}, v{H+i}")
        for i in range(2):
            A(f"v_fma_f32 v{H+i}, v{H+i}, v{t3}, v{Z+i}")
        A(f"v_cvt_pk_bf16_f32 v{t0}, v{H}, v{H+1}")
        self.stamp(7)
        A("s_nop 1")
        for i in range(4):
            A(f"v_mov_b32_dpp v{P+i}, v{t0} quad_perm:[{i},{i},{i},{i}] row_mask:0xf bank_mask:0xf")
        def mkx(j):
            x = X + 2 * (j & 1)
            A(f"v_perm_b32 v{x}, v{P+(j>>1)}, v{P+(j>>1)}, v{sel+(j&1)}")
            A(f"v_perm_b32 v{x+1}, v{P+(j>>1)}, v{P+(j>>1)}, v{sel+2+(j&1)}")
        mkx(0)
        for j in range(8):
            x = X + 2 * (j & 1)
            if j < 7:
                mkx(j + 1)
            else:
                A("s_nop 1")
            for mat in range(2):
                for hf in range(2):
                    d = D + (mat * 2 + hf) * 4
                    c = "0" if j == 0 else f"v[{d}:{d+3}]"
                    a = 32 * mat + 4 * j + 2 * hf
                    A(f"v_mfma_f32_16x16x16_bf16 v[{d}:{d+3}], a[{a}:{a+1}], v[{x}:{x+1}], {c}")
        self.exec_mask(0xf0000f0000f0000f)
        A("s_nop 2")
        for mat in range(2):
            for hf in range(2):
                if mat == 1 and hf == 1:
                    pass
                for r in range(4):
                    off = L_G + (mat * 32 + 8 * r + 4 * hf) * 64
                    A(f"ds_write_b32 v{aG}, v{D+(mat*2+hf)*4+r} offset:{off}")
        self.exec_all()
        A("s_waitcnt lgkmcnt(0)")
        A("s_barrier")
        self.stamp(8)
        for i in range(4):
            A(f"ds_read_b128 v[{Z+4*i}:{Z+4*i+3}], v{aS} offset:{L_G + 16*i}")
        A("s_waitcnt lgkmcnt(2)")
        A(f"v_pk_add_f32 v[{Z}:{Z+1}], v[{Z}:{Z+1}], v[{Z+2}:{Z+3}]")
        A(f"v_pk_add_f32 v[{Z+4}:{Z+5}], v[{Z+4}:{Z+5}], v[{Z+6}:{Z+7}]")
        A(f"v_pk_add_f32 v[{Z}:{Z+1}], v[{Z}:{Z+1}], v[{Z+4}:{Z+5}]")
        A("s_waitcnt lgkmcnt(0)")
        A(f"v_pk_add_f32 v[{Z+8}:{Z+9}], v[{Z+8}:{Z+9}], v[{Z+10}:{Z+11}]")
        A(f"v_pk_add_f32 v[{Z+12}:{Z+13}], v[{Z+12}:{Z+13}], v[{Z+14}:{Z+15}]")
        A(f"v_pk_add_f32 v[{Z+8}:{Z+9}], v[{Z+8}:{Z+9}], v[{Z+12}:{Z+13}]")
        A(f"v_pk_add_f32 v[{Z}:{Z+1}], v[{Z}:{Z+1}], v[{Z+8}:{Z+9}]")
        A(f"v_add_f32 v{Z}, v{Z}, v{Z+1}")
        self.bf16_round1(Z, Z)
        A(f"v_mul_f32 v{t0}, s63, v{Z}")
        A(f"v_exp_f32 v{t0}, v{t0}")
        A(f"v_mov_b32_dpp v{t1}, v{Z} row_ror:8 row_mask:0xf bank_mask:0xf")
        A(f"v_add_f32 v{t0}, 1.0, v{t0}")
        A(f"v_rcp_f32 v{t2}, v{t0}")
        A("s_nop 0")
        self.bf16_round1(t2, t2)
        A(f"v_mul_f32 v{t2}, v{t2}, v{t1}")
        A(f"v_cvt_pk_bf16_f32 v{t2}, v{t2}, v{t2}")
        A("s_nop 1")
        def mkd(j):
            x = X + 4 * (j & 1)
            for r in range(4):
                A(f"v_and_b32_dpp v{x+r}, v{t2}, v{mk+r} row_newbcast:{j} row_mask:0xf bank_mask:0xf")
        mkd(0)
        for j in range(8):
            x = X + 4 * (j & 1)
            if j < 7:
                mkd(j + 1)
            else:
                A("s_nop 1")
            c = "0" if j == 0 else f"v[{D}:{D+3}]"
            A(f"v_mfma_f32_16x16x32_bf16 v[{D}:{D+3}], a[{64+4*j}:{64+4*j+3}], v[{x}:{x+3}], {c}")
        self.exec_mask(0x00ff00ff00ff00ff)
        A("s_nop 5")
        for r in range(4):
            A(f"v_bfi_b32 v{D+r}, s49, v{vTg}, v{D+r}")
        A(f"buffer_store_dwordx4 v[{D}:{D+3}], v{aO}, s[44:47], s94 offen sc1")
        self.exec_all()
        self.stamp(5)
        A("s_branch L_end")

    def roleE(self):
        A, C = self.A, self.C
        self.label("L_roleE")
        a, hp, xr = RB, RB + 8, RB + 10
        vA0, vA1, vA2 = 2, 3, 4
        t0, t1, t2 = 6, 7, 8
        A("s_lshl_b32 s33, s3, 2")
        A("s_add_u32 s33, s33, s28")
        A("s_lshr_b32 s34, s33, 2")
        A("s_lshl_b32 s34, s34, 5")
        A("s_and_b32 s35, s33, 3")
        A("s_lshl_b32 s35, s35, 1")
        A("s_add_u32 s34, s34, s35")
        A(f"v_lshrrev_b32 v{t0}, 4, v1")
        A(f"v_lshlrev_b32 v{t0}, 3, v{t0}")
        A(f"v_add_u32 v{t0}, s34, v{t0}")
        A(f"v_lshlrev_b32 v{vA2}, 1, v{t0}")
        self.srd(56, 4, None, 1024)
        A(f"buffer_load_dword v{xr}, v{vA2}, s[56:59], 0 offen")
        A(f"v_and_b32 v{t1}, 15, v1")
        A(f"v_lshlrev_b32 v{t1}, 11, v{t1}")
        A(f"v_lshl_add_u32 v{vA1}, v{t0}, 2, v{t1}")
        A(f"v_add_u32 v{vA1}, {WS_HP}, v{vA1}")
        A("s_lshl_b32 s35, s33, 5")
        A(f"s_add_u32 s35, s35, {WS_OP}")
        A(f"v_lshlrev_b32 v{vA0}, 11, v1")
        A(f"v_add_u32 v{vA0}, s35, v{vA0}")
        self.srd(52, 22, None, 1024)
        for i in range(8):
            A(f"v_mov_b32 v{a+i}, 0")
        lp = self.newlabel("EH"); dn = self.newlabel("EH_done")
        A(f"s_mov_b32 s68, {POLL_MAX}")
        self.label(lp)
        A(f"buffer_load_dwordx2 v[{hp}:{hp+1}], v{vA1}, s[44:47], 0 offen sc1")
        A("s_waitcnt vmcnt(0)")
        self.mismatch(t0, [hp, hp + 1])
        A(f"v_cmp_ne_u32 vcc, 0, v{t0}")
        A("s_sub_u32 s68, s68, 1")
        A("s_cmp_eq_u32 s68, 0")
        A(f"s_cbranch_scc1 {dn}")
        A(f"s_cbranch_vccz {dn}")
        A("s_sleep 4")
        A(f"s_branch {lp}")
        self.label(dn)
        self.row_allreduce("v_add_f32", [hp, hp + 1])
        A(f"v_cvt_pk_bf16_f32 v{t0}, v{hp}, v{hp+1}")
        self.unpack(hp, hp + 1, t0)
        self.unpack(t0, t1, xr)
        A(f"v_add_f32 v{hp}, v{hp}, v{t0}")
        A(f"v_add_f32 v{hp+1}, v{hp+1}, v{t1}")
        A(f"v_cvt_pk_bf16_f32 v{t0}, v{hp}, v{hp+1}")
        self.unpack(hp, hp + 1, t0)
        lp = self.newlabel("EO"); dn = self.newlabel("EO_done")
        self.exec_mask((1 << NC) - 1)
        A(f"s_mov_b32 s68, {POLL_MAX}")
        self.label(lp)
        A(f"buffer_load_dwordx4 v[{a}:{a+3}], v{vA0}, s[44:47], 0 offen sc1")
        A(f"buffer_load_dwordx4 v[{a+4}:{a+7}], v{vA0}, s[44:47], 0 offen offset:16 sc1")
        A("s_waitcnt vmcnt(0)")
        self.mismatch(t0, list(range(a, a + 8)))
        A(f"v_cmp_ne_u32 vcc, 0, v{t0}")
        A("s_sub_u32 s68, s68, 1")
        A("s_cmp_eq_u32 s68, 0")
        A(f"s_cbranch_scc1 {dn}")
        A("s_mov_b64 exec, vcc")
        A(f"s_cbranch_vccnz {lp}")
        self.label(dn)
        self.exec_all()
        self.stamp(4)
        for e in range(2):
            for r in range(2):
                A(f"v_permlane32_swap_b32 v{a+4*e+r}, v{a+4*e+r+2}")
        A("s_nop 0")
        for e in range(2):
            for r in range(2):
                A(f"v_add_f32 v{a+4*e+r}, v{a+4*e+r}, v{a+4*e+r+2}")
        A("s_nop 1")
        for e in range(2):
            A(f"v_permlane16_swap_b32 v{a+4*e}, v{a+4*e+1}")
        A("s_nop 0")
        for e in range(2):
            A(f"v_add_f32 v{a+4*e}, v{a+4*e}, v{a+4*e+1}")
        self.row_allreduce("v_add_f32", [a, a + 4])
        A(f"v_cvt_pk_bf16_f32 v{t0}, v{a}, v{a+4}")
        self.unpack(a, a + 4, t0)
        A(f"v_add_f32 v{a}, v{a}, v{hp}")
        A(f"v_add_f32 v{a+4}, v{a+4}, v{hp+1}")
        A(f"v_cvt_pk_bf16_f32 v{t0}, v{a}, v{a+4}")
        self.exec_mask(0x0001000100010001)
        A(f"buffer_store_dword v{t0}, v{vA2}, s[52:55], 0 offen")
        self.exec_all()
        self.stamp(5)
        A("s_cmp_lg_u32 s33, 0")
        A("s_cbranch_scc1 L_end")
        C("epoch update")
        A("s_add_u32 s29, s29, 1")
        A(f"v_mov_b32 v{t0}, s29")
        A(f"v_mov_b32 v{t1}, {WS_EPOCH}")
        A("s_mov_b64 exec, 1")
        A(f"buffer_store_dword v{t0}, v{t1}, s[44:47], 0 offen")
        A("s_branch L_end")


if __name__ == "__main__":
    import argparse
    ap = argparse.ArgumentParser()
    ap.add_argument("-o", default="cdna_kernels/" + KN + ".s")
    ap.add_argument("--nr", type=int, default=3)
    ap.add_argument("--ns", type=int, default=5)
    ap.add_argument("--th", type=int, default=3)
    ap.add_argument("--ps", type=int, default=4)
    ap.add_argument("--stamps", action="store_true")
    ap.add_argument("--noq", type=int, default=0)
    ap.add_argument("--notail", action="store_true")
    ap.add_argument("--sizes", default="122,130,130,130")
    ap.add_argument("--early", default="B")
    ap.add_argument("--chunks", default="5")
    ap.add_argument("--th0", type=int, default=0)
    ap.add_argument("--pp", type=int, default=3)
    ap.add_argument("--pgap", type=int, default=6)
    ap.add_argument("--cthr", type=int, default=4)
    ap.add_argument("--gpol", default="nt")
    ap.add_argument("--qpol", default="nt")
    ap.add_argument("--n0", type=int, default=112)
    ap.add_argument("--p1", type=int, default=76)
    ap.add_argument("--p2", type=int, default=96)
    ap.add_argument("--biasc", type=float, default=6.0)
    ap.add_argument("--gain", type=float, default=1.0)
    ap.add_argument("--nobal", action="store_true")
    ap.add_argument("--qrot", type=int, default=0)
    ap.add_argument("--csleep", type=int, default=1)
    ap.add_argument("--mid", default="")
    ap.add_argument("--exit0", type=int, default=0)
    ap.add_argument("--qc", type=int, default=0)
    ap.add_argument("--hrot2", type=int, default=0)
    ap.add_argument("--pstep", type=int, default=0)
    ap.add_argument("--amode", type=int, default=0)
    ap.add_argument("--arot", type=int, default=0)
    ap.add_argument("--hst", default="sc1")
    ap.add_argument("--defpol", default="")
    ap.add_argument("--hld", default="sc1")
    ap.add_argument("--hrot", type=int, default=0)
    a = ap.parse_args()
    g = Gen(nr=a.nr, ns=a.ns, th=a.th, ps=a.ps, stamps=a.stamps, noq=a.noq, notail=a.notail,
            sizes=tuple(map(int, a.sizes.split(","))), early=a.early, chunks=tuple(map(int, a.chunks.split(","))), th0=a.th0, pp=a.pp, pgap=a.pgap, cthr=a.cthr, gpol=('' if a.gpol == 'none' else ' ' + a.gpol), qpol=('' if a.qpol == 'none' else ' ' + a.qpol),
            n0=a.n0, p1=a.p1, p2=a.p2, biasc=a.biasc, gain=a.gain, bal=not a.nobal, qrot=a.qrot, hrot=a.hrot, amode=a.amode, arot=a.arot, csleep=a.csleep, mid=a.mid, qc=a.qc, pstep=a.pstep, hrot2=a.hrot2)
    txt = g.gen()
    if a.hst != "sc1" or a.hld != "sc1":
        out = []
        for ln in txt.split("\n"):
            if ln.rstrip().endswith(" sc1"):
                if "buffer_store" in ln:
                    ln = ln.rstrip()[:-3] + a.hst.replace("_", " ")
                elif "buffer_load" in ln:
                    ln = ln.rstrip()[:-3] + a.hld.replace("_", " ")
            out.append(ln)
        txt = "\n".join(out)
    import re as _re
    for ch, srd in (("K", r"s\[36:39\]"), ("V", r"s\[40:43\]"), ("W", r"s\[52:55\]"), ("W", r"s\[56:59\]")):
        if ch in a.defpol:
            txt = _re.sub("(" + srd + r".*) nt$", r"\1", txt, flags=_re.M)
    if a.exit0 == 1:
        txt = txt.replace("s_cmp_ge_u32 s2, 256", "s_cmp_ge_u32 s2, 0", 1)
    if a.exit0 == 2:
        txt = txt.replace("s_cmp_ge_u32 s2, 256", "s_cmp_ge_u32 s2, 0", 1)
        txt = _re.sub(r"next_free_vgpr \d+", "next_free_vgpr 32", txt)
        txt = _re.sub(r"accum_offset \d+", "accum_offset 32", txt)
        txt = _re.sub(r"lds=\d+", "lds=0", txt)
    open(a.o, "w").write(txt)
    print("wrote", a.o)
```
